```python
import torch

def _softmax(x, axis=-1):
    return torch.softmax(x, dim=axis)
def _gelu(x):
    return torch.nn.functional.gelu(x, approximate="tanh")
def _silu(x):
    return torch.nn.functional.silu(x)
def _sigmoid(x):
    return torch.sigmoid(x)
def _layernorm(x, axis=-1, eps=1e-5):
    m = x.mean(dim=axis, keepdim=True)
    v = x.var(dim=axis, keepdim=True, unbiased=False)
    return (x - m) / torch.sqrt(v + eps)
def _scatter_add(tgt, idx, src, axis=0):
    return tgt.clone().index_add_(axis, idx, src)
def _segment_sum(src, seg, n):
    out = torch.zeros((n,) + src.shape[1:], dtype=src.dtype)
    return out.index_add_(0, seg, src)
def _pad(x, pw):
    flat = tuple(v for pair in reversed(pw) for v in pair)
    return torch.nn.functional.pad(x, flat)

kernel_name = 'parallel_sum__mha_block__dense_activation_relu__prompt'

def setup_inputs():

    _w = (lambda a: (lambda t: t.to(torch.bfloat16) if t.is_floating_point() else t)(torch.as_tensor(a)))
    def _A_setup():
        B, S, D, H = 1, 2048, 448, 16
        return {
            "x": _w((lambda *s: torch.randn(*s, dtype=torch.bfloat16) * 0.05)(B, S, D)),
            "wqkv": _w((lambda *s: torch.randn(*s, dtype=torch.bfloat16) * 0.2)(D, 3 * D)),
            "wo": _w((lambda *s: torch.randn(*s, dtype=torch.bfloat16) * 0.1)(D, D)),
        }
    _A_in = _A_setup()

    def _B_setup():
        B, S, D, Dff = 1, 2048, 448, 1792
        return {
            "x": _w((lambda *s: torch.randn(*s, dtype=torch.bfloat16) * 0.05)(B, S, D)),
            "w1": _w((lambda *s: torch.randn(*s, dtype=torch.bfloat16) * 0.2)(D, Dff)),
            "w2": _w((lambda *s: torch.randn(*s, dtype=torch.bfloat16) * 0.2)(Dff, D)),
        }
    _B_in = _B_setup()

    return {
        "A_x": _A_in["x"],
        "A_wqkv": _A_in["wqkv"],
        "A_wo": _A_in["wo"],
        "B_x": _B_in["x"],
        "B_w1": _B_in["w1"],
        "B_w2": _B_in["w2"],
    }

def reference(A_x, A_wqkv, A_wo, B_x, B_w1, B_w2):
    def _A_ref(x, wqkv, wo):
        B, S, D = x.shape
        H = 16
        Dh = D // H
        qkv = (lambda x, *d: x.permute(*d))((x @ wqkv).reshape(B, S, 3, H, Dh), 2, 0, 3, 1, 4)
        q, k, v = qkv[0], qkv[1], qkv[2]
        scores = torch.einsum("bhqd,bhkd->bhqk", q, k) * (Dh ** -0.5)
        p = _softmax(scores, axis=-1)
        o = torch.einsum("bhqk,bhkd->bhqd", p, v)
        return (lambda x, *d: x.permute(*d))(o, 0, 2, 1, 3).reshape(B, S, D) @ wo

    def _B_ref(x, w1, w2):
        h = torch.einsum("bsd,df->bsf", x, w1)
        zero = torch.zeros_like(h)
        h = torch.maximum(h, zero)
        return torch.einsum("bsf,fd->bsd", h, w2)

    x = A_x
    xn = _layernorm(x, axis=-1)
    return x + _A_ref(xn, A_wqkv, A_wo) + _B_ref(xn, B_w1, B_w2)
```

```python
class Asm:
    def __init__(self):
        self.lines = []
        self.nlabel = 0
    def __call__(self, s):
        for l in s.strip("\n").split("\n"):
            self.lines.append("  " + l.strip())
    def label(self, name):
        self.lines.append(name + ":")
    def newlabel(self, base="L"):
        self.nlabel += 1
        return f"{base}_{self.nlabel}"
    def raw(self, s):
        self.lines.append(s)
    def comment(self, s):
        self.lines.append("  ; " + s)
    def text(self):
        return "\n".join(self.lines) + "\n"

def vr(base, n):
    return f"v[{base}:{base+n-1}]"
def ar(base, n):
    return f"a[{base}:{base+n-1}]"
def sr(base, n):
    return f"s[{base}:{base+n-1}]"

def kernel_desc(name, nvgpr, accum, nsgpr=96):
    return f""".amdhsa_kernel {name}
  .amdhsa_next_free_vgpr {nvgpr}
  .amdhsa_next_free_sgpr {nsgpr}
  .amdhsa_accum_offset {accum}
  .amdhsa_group_segment_fixed_size 0
  .amdhsa_kernarg_size 72
  .amdhsa_user_sgpr_count 2
  .amdhsa_user_sgpr_kernarg_segment_ptr 1
  .amdhsa_system_sgpr_workgroup_id_x 1
.end_amdhsa_kernel
"""
```

```python
from asmlib import *
import gen as G
from gen import LgkmTracker, f32bits, OOB, WS_SIZE, QF_OFF, KV_OFF, HF_OFF, WF_OFF, PF_OFF, S, D

BIAS = 80.0

def reduce_scatter(a, vACC, vT, vWA, vRA, sWAVE, sTMP, vL16):
    a("s_barrier")
    for j in range(1, 4):
        a(f"""
        s_xor_b32 s{sTMP}, s{sWAVE}, {j}
        s_mul_i32 s{sTMP}, s{sTMP}, 12288
        v_add_u32 v{vWA}, s{sTMP}, v{vL16}
        """)
        for g in range(4):
            a(f"ds_write_b128 v{vWA}, {vr(vACC+16*j+4*g,4)} offset:{(j-1)*4096+g*1024}")
    a(f"""
    s_mul_i32 s{sTMP}, s{sWAVE}, 12288
    v_add_u32 v{vRA}, s{sTMP}, v{vL16}
    s_waitcnt lgkmcnt(0)
    s_barrier
    """)
    for j in range(3):
        for g in range(4):
            a(f"ds_read_b128 {vr(vT+16*j+4*g,4)}, v{vRA} offset:{j*4096+g*1024}")
    for j in range(3):
        for g in range(4):
            a(f"s_waitcnt lgkmcnt({11 - (4*j+g)})")
            for r in range(4):
                i = 4*g + r
                a(f"v_add_f32 v{vACC+i}, v{vACC+i}, v{vT+16*j+i}")

def gemm_addr(a, sXCD, sJ, sWAVE, sMT, sNT, sTMP, sTMP2, vL16, vH0, vH1, vW0, vW1, step0_mul, step0_add):
    a(f"""
    s_mul_i32 s{sTMP}, s{sJ}, 37
    s_lshr_b32 s{sTMP}, s{sTMP}, 8
    s_mul_i32 s{sTMP2}, s{sTMP}, 7
    s_sub_u32 s{sNT}, s{sJ}, s{sTMP2}
    s_lshl_b32 s{sMT}, s{sXCD}, 2
    s_add_u32 s{sMT}, s{sMT}, s{sTMP}
    s_lshl_b32 s{sMT}, s{sMT}, 1
    s_and_b32 s{sTMP}, s{sWAVE}, 1
    s_add_u32 s{sMT}, s{sMT}, s{sTMP}
    s_lshl_b32 s{sNT}, s{sNT}, 1
    s_lshr_b32 s{sTMP}, s{sWAVE}, 1
    s_add_u32 s{sNT}, s{sNT}, s{sTMP}
    s_mul_i32 s{sTMP2}, s{sWAVE}, {step0_mul}
    s_add_u32 s{sTMP2}, s{sTMP2}, {step0_add}
    s_mul_i32 s{sTMP}, s{sMT}, 144
    s_add_u32 s{sTMP}, s{sTMP}, s{sTMP2}
    s_lshl_b32 s{sTMP}, s{sTMP}, 10
    s_add_u32 s{sTMP}, s{sTMP}, {HF_OFF}
    v_add_u32 v{vH0}, s{sTMP}, v{vL16}
    s_xor_b32 s{sTMP}, s{sMT}, 1
    s_mul_i32 s{sTMP}, s{sTMP}, 144
    s_add_u32 s{sTMP}, s{sTMP}, s{sTMP2}
    s_lshl_b32 s{sTMP}, s{sTMP}, 10
    s_add_u32 s{sTMP}, s{sTMP}, {HF_OFF}
    v_add_u32 v{vH1}, s{sTMP}, v{vL16}
    s_mul_i32 s{sTMP2}, s{sTMP2}, 14
    s_add_u32 s{sTMP}, s{sTMP2}, s{sNT}
    s_lshl_b32 s{sTMP}, s{sTMP}, 10
    s_add_u32 s{sTMP}, s{sTMP}, {WF_OFF}
    v_add_u32 v{vW0}, s{sTMP}, v{vL16}
    s_xor_b32 s{sTMP}, s{sNT}, 1
    s_add_u32 s{sTMP}, s{sTMP2}, s{sTMP}
    s_lshl_b32 s{sTMP}, s{sTMP}, 10
    s_add_u32 s{sTMP}, s{sTMP}, {WF_OFF}
    v_add_u32 v{vW1}, s{sTMP}, v{vL16}
    """)

def gemm_step_mfma(a, vACC, f, first):
    for j in range(4):
        w = f + 8 + 4*(j >> 1); h = f + 4*(j & 1)
        c = "0" if first else vr(vACC+16*j, 16)
        a(f"v_mfma_f32_32x32x16_bf16 {vr(vACC+16*j,16)}, {vr(w,4)}, {vr(h,4)}, {c}")

def gen_k2(a):
    sWS, sX = 8, 12
    sXCD, sSL, sWAVE, sTMP, sTMP2, sHEAD, sQB = 16, 17, 18, 19, 20, 21, 22
    sKV, sRD, sWR, sIT, sLB, sMT, sNT, sHO, sWO, sFB = 23, 24, 25, 26, 27, 28, 29, 30, 31, 32
    vLANE, vL16 = 1, 2
    a.label("k2_kernel")
    a(f"""
    s_cmp_ge_u32 s2, 480
    s_cbranch_scc1 k2_end
    s_load_dwordx2 s[{sWS}:{sWS+1}], s[0:1], 64
    s_load_dwordx2 s[{sX}:{sX+1}], s[0:1], 0
    v_and_b32 v{vLANE}, 63, v0
    v_lshrrev_b32 v3, 6, v0
    v_lshlrev_b32 v{vL16}, 4, v{vLANE}
    v_readfirstlane_b32 s{sWAVE}, v3
    s_and_b32 s{sXCD}, s2, 7
    s_lshr_b32 s{sSL}, s2, 3
    s_mov_b32 s{sWS+2}, {WS_SIZE:#x}
    s_mov_b32 s{sWS+3}, 0x00020000
    s_mov_b32 s{sX+2}, {S*D*2}
    s_mov_b32 s{sX+3}, 0x00020000
    s_cmp_ge_u32 s{sSL}, 32
    s_cbranch_scc1 k2_gemm
    """)
    vKA, vVA, vKAb, vVAb, vHH, vHHI, vT0 = 3, 4, 5, 6, 7, 8, 9
    vQ = 16
    vO = 48
    vS = [112, 128]
    vP = [144, 152]
    vK = [160, 168]
    vV = [176, 184]
    vNM = 192
    a(f"""
    s_and_b32 s{sHEAD}, s{sSL}, 1
    s_lshl_b32 s{sTMP}, s{sXCD}, 1
    s_add_u32 s{sHEAD}, s{sHEAD}, s{sTMP}
    s_lshr_b32 s{sQB}, s{sSL}, 1
    s_lshl_b32 s{sKV}, s{sHEAD}, 18
    s_add_u32 s{sKV}, s{sKV}, {KV_OFF}
    s_lshl_b32 s{sLB}, s{sWAVE}, 14
    s_waitcnt lgkmcnt(0)
    """)
    a(f"buffer_load_dwordx4 {vr(vK[1],4)}, v{vL16}, {sr(sWS,4)}, s{sKV} offen")
    a(f"buffer_load_dwordx4 {vr(vK[1]+4,4)}, v{vL16}, {sr(sWS,4)}, s{sKV} offen offset:1024")
    for j in range(4):
        a(f"""
        s_xor_b32 s{sTMP}, s{sWAVE}, {j}
        s_lshl_b32 s{sTMP2}, s{sQB}, 2
        s_add_u32 s{sTMP}, s{sTMP}, s{sTMP2}
        s_lshl_b32 s{sTMP2}, s{sHEAD}, 6
        s_add_u32 s{sTMP}, s{sTMP}, s{sTMP2}
        s_lshl_b32 s{sTMP}, s{sTMP}, 11
        buffer_load_dwordx4 {vr(vQ+8*j,4)}, v{vL16}, {sr(sWS,4)}, s{sTMP} offen
        buffer_load_dwordx4 {vr(vQ+8*j+4,4)}, v{vL16}, {sr(sWS,4)}, s{sTMP} offen offset:1024
        """)
    a(f"""
    s_lshl_b32 s{sTMP}, s{sWAVE}, 16
    s_add_u32 s{sWR}, s{sKV}, s{sTMP}
    s_mov_b32 m0, s{sLB}
    """)
    def dma_tile():
        for i in range(4):
            a(f"buffer_load_dwordx4 v{vL16}, {sr(sWS,4)}, s{sWR} offen offset:{1024*i} lds")
    for t in range(4):
        a("s_nop 0")
        dma_tile()
        a(f"s_add_u32 s{sWR}, s{sWR}, 4096")
        if t < 3:
            a(f"s_add_u32 m0, m0, 4096")
    a(f"""
    v_lshrrev_b32 v{vHH}, 5, v{vLANE}
    v_add_u32 v{vKAb}, s{sLB}, v{vL16}
    v_bfe_u32 v{vT0}, v{vLANE}, 4, 1
    v_lshlrev_b32 v{vVAb}, 10, v{vT0}
    v_and_b32 v{vT0}, 1, v{vLANE}
    v_lshl_add_u32 v{vVAb}, v{vT0}, 9, v{vVAb}
    v_bfe_u32 v{vT0}, v{vLANE}, 1, 1
    v_lshl_add_u32 v{vVAb}, v{vT0}, 3, v{vVAb}
    v_bfe_u32 v{vT0}, v{vLANE}, 2, 2
    v_lshl_add_u32 v{vT0}, v{vHH}, 2, v{vT0}
    v_lshl_add_u32 v{vVAb}, v{vT0}, 4, v{vVAb}
    v_add_u32 v{vVAb}, s{sLB}, v{vVAb}
    v_add_u32 v{vVAb}, 2048, v{vVAb}
    v_sub_u32 v{vHHI}, v{vHH}, 1
    v_sub_u32 v{vHH}, 0, v{vHH}
    """)
    for i in range(8):
        a(f"v_mov_b32 v{vP[1]+i}, 0")
        a(f"v_mov_b32 v{vV[1]+i}, 0")
    a("s_waitcnt vmcnt(16)")
    for j in range(4):
        a(f"v_mfma_f32_32x32x16_bf16 {vr(vO+16*j,16)}, {vr(vK[1],4)}, {vr(vQ+8*j,4)}, 0")
        a(f"v_mfma_f32_32x32x16_bf16 {vr(vO+16*j,16)}, {vr(vK[1]+4,4)}, {vr(vQ+8*j+4,4)}, {vr(vO+16*j,16)}")
    a("s_waitcnt vmcnt(12)")
    def read_k(st, addr):
        a(f"ds_read_b128 {vr(vK[st],4)}, v{addr}")
        a(f"ds_read_b128 {vr(vK[st]+4,4)}, v{addr} offset:1024")
    def read_v_ins(st, addr):
        return [f"ds_read_b64_tr_b16 {vr(vV[st]+4*s_+2*p,2)}, v{addr} offset:{(16*s_+8*p)*16}" for s_ in range(2) for p in range(2)]
    read_k(0, vKAb)
    for x in read_v_ins(0, vVAb): a(x)
    a("s_nop 7")
    for j in range(4):
        o = vO + 16*j
        t = vT0 + (j & 1) * 2
        a(f"v_max3_f32 v{t}, v{o}, v{o+1}, v{o+2}")
        for i in range(3, 15, 2):
            a(f"v_max3_f32 v{t}, v{t}, v{o+i}, v{o+i+1}")
        a(f"v_max_f32 v{t}, v{t}, v{o+15}")
        a(f"v_mov_b32 v{t+1}, v{t}")
        a("s_nop 1")
        a(f"v_permlane32_swap_b32 v{t}, v{t+1}")
        a("s_nop 1")
        a(f"v_max_f32 v{t}, v{t}, v{t+1}")
        a(f"v_add_f32 v{t}, {f32bits(BIAS):#x}, v{t}")
        a(f"v_cvt_pk_bf16_f32 v{t}, -v{t}, 0")
        a(f"v_and_b32 v{t}, v{t}, v{vHH}")
        a(f"v_or_b32 v{vQ+8*j+6}, v{vQ+8*j+6}, v{t}")
    for i in range(64):
        a(f"v_mov_b32 v{vO+i}, 0")
    a(f"""
    s_mov_b32 s{sRD}, 0
    s_mov_b32 s{sIT}, 0
    s_waitcnt lgkmcnt(0)
    """)
    a(f"v_mfma_f32_32x32x16_bf16 {vr(vS[0],16)}, {vr(vK[0],4)}, {vr(vQ,4)}, 0")
    a(f"v_mfma_f32_32x32x16_bf16 {vr(vS[0],16)}, {vr(vK[0]+4,4)}, {vr(vQ+4,4)}, {vr(vS[0],16)}")
    a("s_nop 7")
    a("s_nop 3")

    def body(st):
        for j in range(4):
            sc = vS[j % 2]; sn = vS[(j + 1) % 2]
            pc = vP[j % 2]; pp = vP[(j + 1) % 2]
            kn = vK[st] if j < 3 else vK[1 - st]
            qn = vQ + 8 * ((j + 1) % 4)
            vv = vV[st] if j > 0 else vV[1 - st]
            op = vO + 16 * ((j + 3) % 4)
            mf = [
                f"v_mfma_f32_32x32x16_bf16 {vr(sn,16)}, {vr(kn,4)}, {vr(qn,4)}, 0",
                f"v_mfma_f32_32x32x16_bf16 {vr(sn,16)}, {vr(kn+4,4)}, {vr(qn+4,4)}, {vr(sn,16)}",
                f"v_mfma_f32_32x32x16_bf16 {vr(op,16)}, {vr(vv,4)}, {vr(pp,4)}, {vr(op,16)}",
                f"v_mfma_f32_32x32x16_bf16 {vr(op,16)}, {vr(vv+4,4)}, {vr(pp+4,4)}, {vr(op,16)}",
            ]
            if j == 3:
                a("s_waitcnt lgkmcnt(0)")
            for g in range(4):
                a(mf[g])
                if j == 0 and g == 0:
                    a(f"s_add_u32 m0, s{sLB}, s{sRD}")
                    a(f"s_add_u32 s{sRD}, s{sRD}, 4096")
                    dma_tile()
                    a(f"s_add_u32 s{sWR}, s{sWR}, 4096")
                    a(f"s_and_b32 s{sRD}, s{sRD}, 0x3fff")
                    a(f"v_add_u32 v{vKA}, s{sRD}, v{vKAb}")
                    a(f"v_add_u32 v{vVA}, s{sRD}, v{vVAb}")
                if j == 1 and g == 0:
                    a("s_waitcnt vmcnt(12)")
                    read_k(1 - st, vKA)
                    for x in read_v_ins(1 - st, vVA): a(x)
                for r in range(4):
                    a(f"v_exp_f32 v{sc+4*g+r}, v{sc+4*g+r}")
                a(f"v_cvt_pk_bf16_f32 v{pc+2*g}, v{sc+4*g}, v{sc+4*g+1}")
                a(f"v_cvt_pk_bf16_f32 v{pc+2*g+1}, v{sc+4*g+2}, v{sc+4*g+3}")
    a.raw(".p2align 6")
    a.label("k2_loop")
    body(0)
    body(1)
    a(f"""
    s_add_u32 s{sIT}, s{sIT}, 1
    s_cmp_lt_u32 s{sIT}, 8
    s_cbranch_scc1 k2_loop
    """)
    a("s_nop 1")
    a(f"v_mfma_f32_32x32x16_bf16 {vr(vO+48,16)}, {vr(vV[1],4)}, {vr(vP[1],4)}, {vr(vO+48,16)}")
    a(f"v_mfma_f32_32x32x16_bf16 {vr(vO+48,16)}, {vr(vV[1]+4,4)}, {vr(vP[1]+4,4)}, {vr(vO+48,16)}")
    a("s_waitcnt vmcnt(0)")
    a("s_nop 7")
    a("s_nop 3")
    reduce_scatter(a, vO, vS[0], vT0, vT0+1, sWAVE, sTMP, vL16)
    a(f"s_mov_b32 s{sFB}, 0")
    a.label("k2_norm")
    a(f"""
    v_mov_b32 v{vT0}, v{vO+12}
    v_mov_b32 v{vT0+1}, v{vO+12}
    s_nop 1
    v_permlane32_swap_b32 v{vT0}, v{vT0+1}
    s_nop 1
    v_rcp_f32 v{vT0}, v{vT0+1}
    v_mov_b32 v{vT0+2}, 0
    """)
    for i in range(16):
        a(f"v_mul_f32 v{vS[0]+i}, v{vO+i}, v{vT0}")
    for i in range(16):
        a(f"v_fma_f32 v{vT0+2}, v{vS[0]+i}, 0, v{vT0+2}")
    a(f"""
    s_mov_b32 s{sTMP}, {f32bits(2.0**-90):#x}
    v_cmp_nle_f32 vcc, s{sTMP}, v{vT0+1}
    s_mov_b32 s{sTMP}, {f32bits(2.0**100):#x}
    v_cmp_nge_f32 s[34:35], s{sTMP}, v{vT0+1}
    v_cmp_u_f32 s[36:37], v{vT0+2}, v{vT0+2}
    s_or_b64 vcc, vcc, s[34:35]
    s_or_b64 vcc, vcc, s[36:37]
    s_cmp_lg_u32 s{sFB}, 0
    s_cbranch_scc1 k2_store
    s_cbranch_vccnz k2_fallback
    """)
    a.label("k2_store")
    for i in range(8):
        a(f"v_cvt_pk_bf16_f32 v{vP[0]+i}, v{vS[0]+2*i}, v{vS[0]+2*i+1}")
    a(f"""
    v_and_b32 v{vP[0]+6}, v{vP[0]+6}, v{vHHI}
    v_and_b32 v{vP[0]+7}, v{vP[0]+7}, v{vHHI}
    s_lshl_b32 s{sTMP}, s{sQB}, 2
    s_add_u32 s{sTMP}, s{sTMP}, s{sWAVE}
    s_mul_i32 s{sTMP}, s{sTMP}, 144
    s_lshl_b32 s{sTMP2}, s{sHEAD}, 1
    s_add_u32 s{sTMP}, s{sTMP}, s{sTMP2}
    s_lshl_b32 s{sTMP}, s{sTMP}, 10
    s_add_u32 s{sTMP}, s{sTMP}, {HF_OFF + 112*1024}
    buffer_store_dwordx4 {vr(vP[0],4)}, v{vL16}, {sr(sWS,4)}, s{sTMP} offen
    buffer_store_dwordx4 {vr(vP[0]+4,4)}, v{vL16}, {sr(sWS,4)}, s{sTMP} offen offset:1024
    s_endpgm
    """)
    a.label("k2_fallback")
    a(f"""
    v_and_b32 v{vQ+6}, v{vQ+6}, v{vHHI}
    v_mov_b32 v{vT0}, 0xff800000
    s_mov_b32 s{sWR}, s{sKV}
    s_mov_b32 s{sIT}, 0
    """)
    a.label("k2_fb1")
    a(f"""
    buffer_load_dwordx4 {vr(vK[0],4)}, v{vL16}, {sr(sWS,4)}, s{sWR} offen
    buffer_load_dwordx4 {vr(vK[0]+4,4)}, v{vL16}, {sr(sWS,4)}, s{sWR} offen offset:1024
    s_waitcnt vmcnt(0)
    v_mfma_f32_32x32x16_bf16 {vr(vS[0],16)}, {vr(vK[0],4)}, {vr(vQ,4)}, 0
    v_mfma_f32_32x32x16_bf16 {vr(vS[0],16)}, {vr(vK[0]+4,4)}, {vr(vQ+4,4)}, {vr(vS[0],16)}
    s_nop 15
    s_nop 3
    """)
    for i in range(0, 16, 2):
        a(f"v_max3_f32 v{vT0}, v{vT0}, v{vS[0]+i}, v{vS[0]+i+1}")
    a(f"""
    s_add_u32 s{sWR}, s{sWR}, 4096
    s_add_u32 s{sIT}, s{sIT}, 1
    s_cmp_lt_u32 s{sIT}, 64
    s_cbranch_scc1 k2_fb1
    v_mov_b32 v{vT0+1}, v{vT0}
    s_nop 1
    v_permlane32_swap_b32 v{vT0}, v{vT0+1}
    s_nop 1
    v_max_f32 v{vT0}, v{vT0}, v{vT0+1}
    """)
    for i in range(16):
        a(f"v_sub_f32 v{vNM+i}, 0, v{vT0}")
        a(f"v_mov_b32 v{vO+i}, 0")
    a(f"""
    s_lshl_b32 s{sTMP}, s{sWAVE}, 12
    s_add_u32 s{sTMP}, s{sTMP}, 49152
    s_mov_b32 m0, s{sTMP}
    s_sub_u32 s{sTMP}, s{sTMP}, s{sLB}
    v_add_u32 v{vKA}, s{sTMP}, v{vKAb}
    v_add_u32 v{vVA}, s{sTMP}, v{vVAb}
    s_mov_b32 s{sWR}, s{sKV}
    s_mov_b32 s{sIT}, 0
    """)
    a.label("k2_fb2")
    dma_tile()
    a("s_waitcnt vmcnt(0)")
    read_k(0, vKA)
    for x in read_v_ins(0, vVA): a(x)
    a(f"""
    s_waitcnt lgkmcnt(0)
    v_mfma_f32_32x32x16_bf16 {vr(vS[0],16)}, {vr(vK[0],4)}, {vr(vQ,4)}, {vr(vNM,16)}
    v_mfma_f32_32x32x16_bf16 {vr(vS[0],16)}, {vr(vK[0]+4,4)}, {vr(vQ+4,4)}, {vr(vS[0],16)}
    s_nop 15
    s_nop 3
    """)
    for i in range(16):
        a(f"v_exp_f32 v{vS[0]+i}, v{vS[0]+i}")
    a("s_nop 0")
    for i in range(8):
        a(f"v_cvt_pk_bf16_f32 v{vP[0]+i}, v{vS[0]+2*i}, v{vS[0]+2*i+1}")
    a(f"""
    s_nop 1
    v_mfma_f32_32x32x16_bf16 {vr(vO,16)}, {vr(vV[0],4)}, {vr(vP[0],4)}, {vr(vO,16)}
    v_mfma_f32_32x32x16_bf16 {vr(vO,16)}, {vr(vV[0]+4,4)}, {vr(vP[0]+4,4)}, {vr(vO,16)}
    s_add_u32 s{sWR}, s{sWR}, 4096
    s_add_u32 s{sIT}, s{sIT}, 1
    s_cmp_lt_u32 s{sIT}, 64
    s_cbranch_scc1 k2_fb2
    s_nop 15
    s_nop 3
    s_mov_b32 s{sFB}, 1
    s_branch k2_norm
    """)

    a.label("k2_gemm")
    vH0, vH1, vW0, vW1, vXA = 3, 4, 5, 6, 7
    vXD = 8
    vACC = 16
    vF = 80
    a(f"s_sub_u32 s{sSL}, s{sSL}, 32")
    gemm_addr(a, sXCD, sSL, sWAVE, sMT, sNT, sTMP, sTMP2, vL16, vH0, vH1, vW0, vW1, 28, 0)
    a(f"""
    s_mov_b32 s{sHO}, 0
    s_mov_b32 s{sWO}, 0
    s_waitcnt lgkmcnt(0)
    """)
    def loads(k):
        f = vF + 16*k
        a(f"buffer_load_dwordx4 {vr(f,4)}, v{vH0}, {sr(sWS,4)}, s{sHO} offen")
        a(f"buffer_load_dwordx4 {vr(f+8,4)}, v{vW0}, {sr(sWS,4)}, s{sWO} offen")
        a(f"buffer_load_dwordx4 {vr(f+4,4)}, v{vH1}, {sr(sWS,4)}, s{sHO} offen")
        a(f"buffer_load_dwordx4 {vr(f+12,4)}, v{vW1}, {sr(sWS,4)}, s{sWO} offen")
        a(f"s_add_u32 s{sHO}, s{sHO}, 1024")
        a(f"s_add_u32 s{sWO}, s{sWO}, 14336")
    a(f"""
    v_and_b32 v{vXA}, 31, v{vLANE}
    s_lshl_b32 s{sTMP}, s{sMT}, 5
    v_add_u32 v{vXA}, s{sTMP}, v{vXA}
    s_movk_i32 s{sTMP}, 896
    v_mul_lo_u32 v{vXA}, v{vXA}, s{sTMP}
    v_lshrrev_b32 v{vXD}, 5, v{vLANE}
    v_lshl_add_u32 v{vXA}, v{vXD}, 3, v{vXA}
    s_lshl_b32 s{sTMP}, s{sNT}, 6
    """)
    for g in range(4):
        a(f"buffer_load_dwordx2 {vr(vXD+2*g,2)}, v{vXA}, {sr(sX,4)}, s{sTMP} offen offset:{16*g}")
    for k in range(7):
        loads(k)
    for i in range(64):
        a(f"v_mov_b32 v{vACC+i}, 0")
    a(f"s_mov_b32 s{sIT}, 0")
    a.label("k2_gloop")
    a(f"""
    s_cmp_eq_u32 s{sIT}, 3
    s_cselect_b32 s{sHO}, {OOB:#x}, s{sHO}
    s_cselect_b32 s{sWO}, {OOB:#x}, s{sWO}
    """)
    for k in range(7):
        a("s_waitcnt vmcnt(24)")
        gemm_step_mfma(a, vACC, vF + 16*k, False)
        loads(k)
    a(f"""
    s_add_u32 s{sIT}, s{sIT}, 1
    s_cmp_lt_u32 s{sIT}, 4
    s_cbranch_scc1 k2_gloop
    s_waitcnt vmcnt(0)
    s_nop 7
    s_nop 3
    """)
    reduce_scatter(a, vACC, vF, vH0, vH1, sWAVE, sTMP, vL16)
    for g in range(4):
        for p in range(2):
            a(f"v_lshlrev_b32 v{vF}, 16, v{vXD+2*g+p}")
            a(f"v_and_b32 v{vF+1}, 0xffff0000, v{vXD+2*g+p}")
            a(f"v_add_f32 v{vACC+4*g+2*p}, v{vACC+4*g+2*p}, v{vF}")
            a(f"v_add_f32 v{vACC+4*g+2*p+1}, v{vACC+4*g+2*p+1}, v{vF+1}")
    a(f"""
    s_mul_i32 s{sTMP}, s{sMT}, 14
    s_add_u32 s{sTMP}, s{sTMP}, s{sNT}
    s_lshl_b32 s{sTMP}, s{sTMP}, 12
    s_add_u32 s{sTMP}, s{sTMP}, {PF_OFF}
    """)
    for g in range(4):
        a(f"buffer_store_dwordx4 {vr(vACC+4*g,4)}, v{vL16}, {sr(sWS,4)}, s{sTMP} offen offset:{1024*g}")
    a.label("k2_end")
    a("s_endpgm")
    return dict(name="k2_kernel", grid=480, block=256, lds=65536, nvgpr=208, accum=208)

def gen_k3(a):
    sWS, sO = 8, 12
    sXCD, sSL, sWAVE, sTMP, sTMP2, sMT, sNT = 16, 17, 18, 19, 20, 21, 22
    vLANE, vL16, vH0, vH1, vW0, vW1, vOA = 1, 2, 3, 4, 5, 6, 7
    vPF = 8
    vACC = 24
    vF = 88
    a.label("k3_kernel")
    a(f"""
    s_cmp_ge_u32 s2, 224
    s_cbranch_scc1 k3_end
    s_load_dwordx2 s[{sWS}:{sWS+1}], s[0:1], 64
    s_load_dwordx2 s[{sO}:{sO+1}], s[0:1], 48
    v_and_b32 v{vLANE}, 63, v0
    v_lshrrev_b32 v3, 6, v0
    v_lshlrev_b32 v{vL16}, 4, v{vLANE}
    v_readfirstlane_b32 s{sWAVE}, v3
    s_and_b32 s{sXCD}, s2, 7
    s_lshr_b32 s{sSL}, s2, 3
    s_mov_b32 s{sWS+2}, {WS_SIZE:#x}
    s_mov_b32 s{sWS+3}, 0x00020000
    s_mov_b32 s{sO+2}, {S*D*2}
    s_mov_b32 s{sO+3}, 0x00020000
    """)
    gemm_addr(a, sXCD, sSL, sWAVE, sMT, sNT, sTMP, sTMP2, vL16, vH0, vH1, vW0, vW1, 8, 112)
    a("s_waitcnt lgkmcnt(0)")
    a(f"s_mov_b32 s{sTMP2}, 0")
    for k in range(8):
        f = vF + 16*k
        ho = 1024*(k % 4)
        hs = "0" if k < 4 else f"s{sTMP}"
        if k == 4:
            a(f"s_movk_i32 s{sTMP}, 4096")
        a(f"buffer_load_dwordx4 {vr(f,4)}, v{vH0}, {sr(sWS,4)}, {hs} offen offset:{ho}")
        a(f"buffer_load_dwordx4 {vr(f+8,4)}, v{vW0}, {sr(sWS,4)}, s{sTMP2} offen")
        a(f"buffer_load_dwordx4 {vr(f+4,4)}, v{vH1}, {sr(sWS,4)}, {hs} offen offset:{ho}")
        a(f"buffer_load_dwordx4 {vr(f+12,4)}, v{vW1}, {sr(sWS,4)}, s{sTMP2} offen")
        a(f"s_add_u32 s{sTMP2}, s{sTMP2}, 14336")
    a(f"""
    s_mul_i32 s{sTMP}, s{sMT}, 14
    s_add_u32 s{sTMP}, s{sTMP}, s{sNT}
    s_lshl_b32 s{sTMP}, s{sTMP}, 12
    s_add_u32 s{sTMP}, s{sTMP}, {PF_OFF}
    """)
    for g in range(4):
        a(f"buffer_load_dwordx4 {vr(vPF+4*g,4)}, v{vL16}, {sr(sWS,4)}, s{sTMP} offen offset:{1024*g}")
    a(f"""
    v_and_b32 v{vOA}, 31, v{vLANE}
    s_lshl_b32 s{sTMP}, s{sMT}, 5
    v_add_u32 v{vOA}, s{sTMP}, v{vOA}
    s_movk_i32 s{sTMP}, 896
    v_mul_lo_u32 v{vOA}, v{vOA}, s{sTMP}
    v_lshrrev_b32 v{vH0}, 5, v{vLANE}
    v_lshl_add_u32 v{vOA}, v{vH0}, 4, v{vOA}
    s_lshl_b32 s{sNT}, s{sNT}, 6
    """)
    for k in range(8):
        a(f"s_waitcnt vmcnt({4 + 4*(7-k)})")
        gemm_step_mfma(a, vACC, vF + 16*k, k == 0)
    a("s_nop 7")
    a("s_nop 3")
    reduce_scatter(a, vACC, vF, vH0, vH1, sWAVE, sTMP, vL16)
    a("s_waitcnt vmcnt(0)")
    for i in range(16):
        a(f"v_add_f32 v{vACC+i}, v{vACC+i}, v{vPF+i}")
    for i in range(8):
        a(f"v_cvt_pk_bf16_f32 v{vF+i}, v{vACC+2*i}, v{vACC+2*i+1}")
    a("s_nop 1")
    for q in range(2):
        a(f"v_permlane32_swap_b32 v{vF+4*q}, v{vF+4*q+2}")
        a(f"v_permlane32_swap_b32 v{vF+4*q+1}, v{vF+4*q+3}")
    a("s_nop 1")
    for q in range(2):
        a(f"buffer_store_dwordx4 {vr(vF+4*q,4)}, v{vOA}, {sr(sO,4)}, s{sNT} offen offset:{32*q}")
    a.label("k3_end")
    a("s_endpgm")
    return dict(name="k3_kernel", grid=224, block=256, lds=49152, nvgpr=216, accum=216)
```

```python
import sys, math, struct
from asmlib import *

NAME = "parallel_sum__mha_block__dense_activation_relu__prompt"
S, D, H, DH, DFF = 2048, 448, 16, 28, 1792

QF_OFF = 0
KV_OFF = 2 << 20
HF_OFF = 6 << 20
WF_OFF = 16 << 20
PF_OFF = 20 << 20
WS_SIZE = 0x10000000
OOB = 0x40000000

def f32bits(x):
    return struct.unpack("<I", struct.pack("<f", x))[0]

QSCALE = math.log2(math.e) / math.sqrt(DH)

class LgkmTracker:
    def __init__(self, a):
        self.a = a
        self.q = []
    def issue(self, tag):
        self.q.append(tag)
    def need(self, tag):
        if tag in self.q:
            idx = len(self.q) - 1 - self.q[::-1].index(tag)
            n = len(self.q) - 1 - idx
            n = min(n, 15)
            self.a(f"s_waitcnt lgkmcnt({n})")
            self.q = self.q[len(self.q) - n:] if n > 0 else []
    def drain(self):
        self.a("s_waitcnt lgkmcnt(0)")
        self.q = []

def gen_k1(a):
    SLOT = 28672
    CSB = 5 * SLOT
    sX, sW, sWS = 8, 12, 16
    sMT32, sCOL, sWAVE, sT, sTMP, sTMP2, sPITCH, sSOFF, sM0B = 20, 21, 22, 23, 24, 25, 26, 27, 28
    sWQKV, sW1 = 30, 32
    sDST, sSCALE, sRELU, sC0, sHM, sTG, sSLOT, sTAU = 34, 35, 36, 37, 38, 39, 40, 41
    sW2, sWO = 42, 44
    sSLOTN = 46
    vLANE, vL16, vROW4, vC16, vDMA, vTR, vTRC, vTRN, vTR2, vCSR, vCSW = 1, 2, 3, 4, 5, 6, 7, 8, 9, 10, 11
    vNMEAN, vRSTD, vA, vHH, vHHI, vMASK, vCONST, vXO = 12, 13, 14, 15, 16, 17, 18, 19
    vS0 = 20
    vCP = 28
    vCT = 32
    vWR = 40
    vCS = 68
    vY = 84
    vPK = 100
    vACC = [112, 128]
    vXF = 144

    a.label("k1_kernel")
    a(f"""
    s_cmp_ge_u32 s2, 256
    s_cbranch_scc1 k1_end
    s_load_dwordx4 s[4:7], s[0:1], 0
    s_load_dwordx2 s[{sWO}:{sWO+1}], s[0:1], 16
    s_load_dwordx4 s[48:51], s[0:1], 32
    s_load_dwordx2 s[{sWS}:{sWS+1}], s[0:1], 64
    v_and_b32 v{vLANE}, 63, v0
    v_lshrrev_b32 v{vS0}, 6, v0
    v_lshlrev_b32 v{vL16}, 4, v{vLANE}
    v_readfirstlane_b32 s{sWAVE}, v{vS0}
    s_and_b32 s{sTMP}, s2, 7
    s_lshr_b32 s{sTMP2}, s2, 3
    s_mov_b32 s{sWS+2}, {WS_SIZE:#x}
    s_mov_b32 s{sWS+3}, 0x00020000
    s_mov_b32 s{sX+3}, 0x00020000
    s_mov_b32 s{sW+3}, 0x00020000
    """)
    a(f"""
    v_lshrrev_b32 v{vHH}, 5, v{vLANE}
    v_bfe_u32 v{vS0+1}, v{vLANE}, 2, 2
    v_bfe_u32 v{vS0+2}, v{vLANE}, 4, 1
    v_and_b32 v{vS0+3}, 3, v{vLANE}
    v_lshlrev_b32 v{vS0+2}, 5, v{vS0+2}
    v_lshl_add_u32 v{vS0+2}, v{vS0+3}, 3, v{vS0+2}
    s_cmp_ge_u32 s{sTMP2}, 30
    s_cbranch_scc1 k1_tr
    """)
    a(f"""
    s_and_b32 s{sCOL}, s{sTMP}, 1
    s_mul_i32 s{sCOL}, s{sCOL}, 30
    s_add_u32 s{sCOL}, s{sCOL}, s{sTMP2}
    s_and_b32 s{sMT32}, s{sCOL}, 3
    s_lshr_b32 s{sCOL}, s{sCOL}, 2
    s_lshr_b32 s{sTMP}, s{sTMP}, 1
    s_lshl_b32 s{sTMP}, s{sTMP}, 2
    s_add_u32 s{sMT32}, s{sMT32}, s{sTMP}
    s_lshl_b32 s{sMT32}, s{sMT32}, 2
    s_add_u32 s{sMT32}, s{sMT32}, s{sWAVE}
    s_mul_i32 s{sCOL}, s{sCOL}, 7
    """)
    a(f"""
    v_and_b32 v{vS0+4}, 31, v{vLANE}
    s_lshl_b32 s{sTMP}, s{sMT32}, 5
    v_add_u32 v{vS0+4}, s{sTMP}, v{vS0+4}
    s_movk_i32 s{sTMP}, 896
    v_mul_lo_u32 v{vXO}, v{vS0+4}, s{sTMP}
    v_lshl_add_u32 v{vXO}, v{vHH}, 4, v{vXO}
    v_lshrrev_b32 v{vROW4}, 2, v{vLANE}
    v_lshlrev_b32 v{vC16}, 4, v{vS0+3}
    v_lshl_add_u32 v{vTR}, v{vHH}, 3, v{vS0+1}
    v_lshl_add_u32 v{vTR}, v{vTR}, 6, v{vS0+2}
    s_mul_i32 s{sTMP}, s{sWAVE}, 7168
    v_add_u32 v{vTR2}, s{sTMP}, v{vTR}
    v_lshlrev_b32 v{vCSR}, 4, v{vHH}
    v_add_u32 v{vCSR}, {CSB}, v{vCSR}
    v_and_b32 v{vCSW}, 31, v{vLANE}
    v_lshlrev_b32 v{vCSW}, 2, v{vCSW}
    v_add_u32 v{vCSW}, {CSB+128}, v{vCSW}
    v_sub_u32 v{vHHI}, v{vHH}, 1
    v_sub_u32 v{vHH}, 0, v{vHH}
    v_lshlrev_b32 v{vS0+5}, 2, v0
    v_add_u32 v{vS0+5}, {CSB}, v{vS0+5}
    v_mov_b32 v{vS0+6}, 0
    ds_write_b32 v{vS0+5}, v{vS0+6}
    s_waitcnt lgkmcnt(0)
    s_mov_b32 s{sX}, s4
    s_mov_b32 s{sX+1}, s5
    s_mov_b32 s{sX+2}, {S*D*2}
    s_mov_b32 s{sWQKV}, s6
    s_mov_b32 s{sWQKV+1}, s7
    s_mov_b32 s{sW1}, s48
    s_mov_b32 s{sW1+1}, s49
    """)
    for s in range(28):
        a(f"buffer_load_dwordx4 {vr(vXF+4*s,4)}, v{vXO}, {sr(sX,4)}, 0 offen offset:{32*s}")

    def dma_tile():
        a(f"""
        s_cmp_lt_u32 s{sTAU}, 48
        s_cselect_b32 s{sW}, s{sWQKV}, s{sW1}
        s_cselect_b32 s{sW+1}, s{sWQKV+1}, s{sW1+1}
        s_cselect_b32 s{sPITCH}, 21, 28
        s_cselect_b32 s{sTMP}, 56, 64
        s_cselect_b32 s{sTMP2}, 0, {48*64}
        s_lshl_b32 s{sPITCH}, s{sPITCH}, 7
        s_mul_i32 s{sW+2}, s{sPITCH}, {D}
        s_mul_i32 s{sSOFF}, s{sTAU}, s{sTMP}
        s_sub_u32 s{sSOFF}, s{sSOFF}, s{sTMP2}
        v_mad_u32_u24 v{vDMA}, v{vROW4}, s{sPITCH}, v{vC16}
        s_mul_i32 s{sTMP}, s{sWAVE}, 112
        s_mul_i32 s{sTMP}, s{sTMP}, s{sPITCH}
        s_add_u32 s{sSOFF}, s{sSOFF}, s{sTMP}
        s_mul_i32 s{sM0B}, s{sWAVE}, 7168
        s_add_u32 m0, s{sM0B}, s{sSLOTN}
        s_lshl_b32 s{sPITCH}, s{sPITCH}, 4
        """)
        for i in range(7):
            a(f"buffer_load_dwordx4 v{vDMA}, {sr(sW,4)}, s{sSOFF} offen lds")
            if i < 6:
                a(f"s_add_u32 m0, m0, 1024")
                a(f"s_add_u32 s{sSOFF}, s{sSOFF}, s{sPITCH}")

    a(f"""
    s_mov_b32 s{sTAU}, s{sCOL}
    s_mov_b32 s{sSLOTN}, 0
    """)
    a.label("k1_pre")
    dma_tile()
    a(f"""
    s_add_u32 s{sTAU}, s{sTAU}, 1
    s_add_u32 s{sSLOTN}, s{sSLOTN}, {SLOT}
    s_cmp_lt_u32 s{sSLOTN}, {5*SLOT}
    s_cbranch_scc1 k1_pre
    """)
    for i in range(8):
        a(f"v_mov_b32 v{vS0+i}, 0")
    a(f"s_mov_b32 s{sTMP}, 0x3f803f80")
    for s in range(28):
        if s % 2 == 0:
            a(f"s_waitcnt vmcnt({35 + 26 - s})")
        for j in range(4):
            a(f"v_dot2c_f32_bf16 v{vS0+j}, s{sTMP}, v{vXF+4*s+j}")
            a(f"v_dot2c_f32_bf16 v{vS0+4+j}, v{vXF+4*s+j}, v{vXF+4*s+j}")
    a(f"""
    s_nop 2
    v_add_f32 v{vS0}, v{vS0}, v{vS0+1}
    v_add_f32 v{vS0+2}, v{vS0+2}, v{vS0+3}
    v_add_f32 v{vS0+4}, v{vS0+4}, v{vS0+5}
    v_add_f32 v{vS0+6}, v{vS0+6}, v{vS0+7}
    v_add_f32 v{vS0}, v{vS0}, v{vS0+2}
    v_add_f32 v{vS0+4}, v{vS0+4}, v{vS0+6}
    v_mov_b32 v{vS0+1}, v{vS0}
    v_mov_b32 v{vS0+5}, v{vS0+4}
    s_nop 1
    v_permlane32_swap_b32 v{vS0}, v{vS0+1}
    v_permlane32_swap_b32 v{vS0+4}, v{vS0+5}
    s_nop 1
    v_add_f32 v{vS0}, v{vS0}, v{vS0+1}
    v_add_f32 v{vS0+4}, v{vS0+4}, v{vS0+5}
    v_mul_f32 v{vNMEAN}, {f32bits(-1.0/D):#x}, v{vS0}
    v_mul_f32 v{vS0+4}, {f32bits(1.0/D):#x}, v{vS0+4}
    v_fma_f32 v{vS0+4}, -v{vNMEAN}, v{vNMEAN}, v{vS0+4}
    v_max_f32 v{vS0+4}, 0, v{vS0+4}
    v_add_f32 v{vS0+4}, {f32bits(1e-5):#x}, v{vS0+4}
    v_rsq_f32 v{vRSTD}, v{vS0+4}
    """)
    a(f"""
    s_mov_b32 s{sT}, 0
    s_mov_b32 s{sSLOT}, 0
    v_mov_b32 v{vTRC}, v{vTR}
    s_waitcnt vmcnt(28)
    s_barrier
    """)
    DIST = 5
    lg = LgkmTracker(a)
    def tr_read(step, addr):
        r = vWR + 4 * (step % 7)
        a(f"ds_read_b64_tr_b16 {vr(r,2)}, v{addr} offset:{1024*step}")
        lg.issue(("w", step % 7))
        a(f"ds_read_b64_tr_b16 {vr(r+2,2)}, v{addr} offset:{1024*step+256}")
        lg.issue(("w", step % 7))
    for s in range(DIST):
        tr_read(s, vTRC)
    entry_q = list(lg.q)

    def epi_params():
        return [
            f"s_add_u32 s{sTG}, s{sCOL}, s{sT}",
            f"s_sub_u32 s{sTG}, s{sTG}, 1",
            f"s_mul_i32 s{sDST}, s{sMT32}, 144",
            f"s_lshl_b32 s{sTMP}, s{sTG}, 1",
            f"s_add_u32 s{sDST}, s{sDST}, s{sTMP}",
            f"s_lshl_b32 s{sDST}, s{sDST}, 10",
            f"s_add_u32 s{sDST}, s{sDST}, {HF_OFF - 96*1024}",
            f"s_and_b32 s{sTMP}, s{sTG}, 15",
            f"s_lshl_b32 s{sTMP}, s{sTMP}, 6",
            f"s_add_u32 s{sTMP}, s{sTMP}, s{sMT32}",
            f"s_lshl_b32 s{sTMP2}, s{sTMP}, 12",
            f"s_add_u32 s{sTMP2}, s{sTMP2}, {KV_OFF + 2048}",
            f"s_cmp_lt_u32 s{sTG}, 48",
            f"s_cselect_b32 s{sDST}, s{sTMP2}, s{sDST}",
            f"s_cselect_b32 s{sRELU}, 0x80008000, 0",
            f"s_cselect_b32 s{sHM}, 0, -1",
            f"s_cselect_b32 s{sC0}, 0x3f80, 0",
            f"s_sub_u32 s{sTMP2}, s{sTMP2}, 2048",
            f"s_cmp_lt_u32 s{sTG}, 32",
            f"s_cselect_b32 s{sDST}, s{sTMP2}, s{sDST}",
            f"s_lshl_b32 s{sTMP2}, s{sTMP}, 11",
            f"s_cmp_lt_u32 s{sTG}, 16",
            f"s_cselect_b32 s{sDST}, s{sTMP2}, s{sDST}",
            f"s_cselect_b32 s{sC0}, 0, s{sC0}",
            f"s_cselect_b32 s{sSCALE}, {f32bits(QSCALE):#x}, 1.0",
            f"s_cmp_ge_u32 s{sTG}, 104",
            f"s_cselect_b32 s{sDST}, {OOB:#x}, s{sDST}",
            f"s_cmp_eq_u32 s{sT}, 0",
            f"s_cselect_b32 s{sDST}, {OOB:#x}, s{sDST}",
        ]

    def epi_ops(acc):
        ops = []
        for g in range(4):
            ops.append(("lds", f"ds_read_b128 {vr(vCS+4*g,4)}, v{vCSR} offset:{32*g}", ("cs", g)))
        ops.append(("v", f"v_mul_f32 v{vA}, s{sSCALE}, v{vRSTD}"))
        ops.append(("v", f"v_or_b32 v{vMASK}, s{sHM}, v{vHHI}"))
        ops.append(("v", f"v_and_b32 v{vCONST}, s{sC0}, v{vHH}"))
        for g in range(4):
            ops.append(("need", ("cs", g)))
            for r in range(4):
                i = 4*g + r
                ops.append(("v", f"v_fma_f32 v{vY+i}, v{vCS+i}, v{vNMEAN}, v{acc+i}"))
            for r in range(4):
                i = 4*g + r
                ops.append(("v", f"v_mul_f32 v{vY+i}, v{vY+i}, v{vA}"))
            for p in range(2):
                ops.append(("v", f"v_cvt_pk_bf16_f32 v{vPK+2*g+p}, v{vY+4*g+2*p}, v{vY+4*g+2*p+1}"))
            for p in range(2):
                ops.append(("v", f"v_pk_max_i16 v{vPK+2*g+p}, v{vPK+2*g+p}, s{sRELU}"))
        ops.append(("v", f"v_and_or_b32 v{vPK+6}, v{vPK+6}, v{vMASK}, v{vCONST}"))
        ops.append(("v", f"v_and_b32 v{vPK+7}, v{vPK+7}, v{vMASK}"))
        ops.append(("st", f"buffer_store_dwordx4 {vr(vPK,4)}, v{vL16}, {sr(sWS,4)}, s{sDST} offen"))
        ops.append(("st", f"buffer_store_dwordx4 {vr(vPK+4,4)}, v{vL16}, {sr(sWS,4)}, s{sDST} offen offset:1024"))
        ops.append(("v", f"v_add_u32 v{vCSR}, 128, v{vCSR}"))
        return ops

    def cs_ops():
        ops = []
        ops.append(("v", f"v_add_u32 v{vS0}, s{sSLOT}, v{vTR2}"))
        ops.append(("v", f"v_mov_b32 v{vCP}, 0"))
        ops.append(("v", f"v_mov_b32 v{vCP+1}, 0"))
        def rd(i):
            r = vCT + 4*(i % 2)
            return [("lds", f"ds_read_b64_tr_b16 {vr(r,2)}, v{vS0} offset:{1024*i}", ("c", i % 2)),
                    ("lds", f"ds_read_b64_tr_b16 {vr(r+2,2)}, v{vS0} offset:{1024*i+256}", ("c", i % 2))]
        ops += rd(0) + rd(1)
        for i in range(7):
            r = vCT + 4*(i % 2)
            ops.append(("need", ("c", i % 2)))
            for j in range(4):
                ops.append(("v", f"v_dot2c_f32_bf16 v{vCP + (j % 2)}, s{sONE}, v{r+j}"))
            if i + 2 < 7:
                ops += rd(i + 2)
        ops.append(("v", "s_nop 2"))
        ops.append(("v", f"v_add_f32 v{vCP}, v{vCP}, v{vCP+1}"))
        ops.append(("lds", f"ds_add_f32 v{vCSW}, v{vCP}", ("csw",)))
        ops.append(("v", f"v_add_u32 v{vCSW}, 128, v{vCSW}"))
        return ops

    sONE = 47
    a(f"s_mov_b32 s{sONE}, 0x3f803f80")

    def emit_op(op):
        if op[0] == "v" or op[0] == "st":
            a(op[1])
        elif op[0] == "lds":
            a(op[1]); lg.issue(op[2])
        elif op[0] == "need":
            lg.need(op[1])

    MID = 14
    def half(par, waits):
        acc = vACC[par]; accp = vACC[1 - par]
        pre = [("v", x) for x in epi_params()]
        first = cs_ops()
        eo = epi_ops(accp)
        n_e1 = 4 + 3 + 13
        q1 = pre + first + eo[:n_e1]
        q2 = eo[n_e1:]
        def cost(ops): return sum(1 for o in ops if o[0] != "need")
        per1 = -(-cost(q1) // MID)
        per2 = -(-cost(q2) // (28 - MID - 2))
        for s in range(28):
            lg.need(("w", s % 7))
            r = vWR + 4*(s % 7)
            c = "0" if s == 0 else vr(acc, 16)
            a(f"v_mfma_f32_32x32x16_bf16 {vr(acc,16)}, {vr(r,4)}, {vr(vXF+4*s,4)}, {c}")
            if s + DIST < 28:
                tr_read(s + DIST, vTRC)
            else:
                tr_read(s + DIST - 28, vTRN)
            q, per = (q1, per1) if s < MID else (q2, per2)
            n = 0
            while q and n < per:
                op = q.pop(0)
                emit_op(op)
                if op[0] != "need": n += 1
            if s == MID - 1:
                assert not q1
                done = a.newlabel("k1_w")
                lg.need(("csw",))
                for k, (n_, tval) in enumerate(waits):
                    a(f"s_waitcnt vmcnt({n_})")
                    if k < len(waits) - 1:
                        a(f"s_cmp_eq_u32 s{sT}, {tval}")
                        a(f"s_cbranch_scc1 {done}")
                a.label(done)
                a("s_barrier")
                a(f"""
                s_add_u32 s{sTMP}, s{sSLOT}, {SLOT}
                s_cmp_ge_u32 s{sTMP}, {5*SLOT}
                s_cselect_b32 s{sTMP}, 0, s{sTMP}
                s_mov_b32 s{sSLOT}, s{sTMP}
                v_add_u32 v{vTRN}, s{sTMP}, v{vTR}
                """)
                skip = a.newlabel("k1_nd")
                tdma = 2 if par == 0 else 1
                a(f"""
                s_cmp_lg_u32 s{sT}, {tdma}
                s_cbranch_scc1 {skip}
                s_add_u32 s{sTAU}, s{sCOL}, {tdma+4}
                s_mov_b32 s{sSLOTN}, {(tdma-1)*SLOT}
                """)
                dma_tile()
                a.label(skip)
        assert not q2
        a(f"v_mov_b32 v{vTRC}, v{vTRN}")
        a(f"s_add_u32 s{sT}, s{sT}, 1")

    a.label("k1_loop")
    half(0, [(21, 0), (18, 2), (13, 4)])
    assert lg.q == entry_q, (lg.q, entry_q)
    a(f"""
    s_cmp_eq_u32 s{sT}, 7
    s_cbranch_scc1 k1_fin
    """)
    half(1, [(20, 3), (16, 1), (6, 5)])
    assert lg.q == entry_q
    a("s_branch k1_loop")
    a.label("k1_fin")
    for x in epi_params():
        a(x)
    for op in epi_ops(vACC[0]):
        emit_op(op)
    a("s_endpgm")

    a.label("k1_tr")
    vB, vO = 20 + 8, 20 + 9
    a(f"""
    s_sub_u32 s{sTMP2}, s{sTMP2}, 30
    s_lshl_b32 s{sTMP2}, s{sTMP2}, 3
    s_add_u32 s{sCOL}, s{sTMP2}, s{sTMP}
    s_waitcnt lgkmcnt(0)
    s_mov_b32 s{sX}, s50
    s_mov_b32 s{sX+1}, s51
    s_mov_b32 s{sX+2}, {DFF*D*2}
    s_mov_b32 s{sW}, s{sWO}
    s_mov_b32 s{sW+1}, s{sWO+1}
    s_mov_b32 s{sW+2}, {D*D*2}
    s_mul_i32 s{sSOFF}, s{sCOL}, {112*896}
    s_lshl_b32 s{sTMP}, s{sWAVE}, 10
    s_mov_b32 m0, s{sTMP}
    s_add_u32 s{sSOFF}, s{sSOFF}, s{sTMP}
    """)
    a.label("k1_tr_l1")
    a(f"""
    buffer_load_dwordx4 v{vL16}, {sr(sX,4)}, s{sSOFF} offen lds
    s_add_u32 s{sSOFF}, s{sSOFF}, 4096
    s_add_u32 m0, m0, 4096
    s_cmp_lt_u32 m0, {112*896}
    s_cbranch_scc1 k1_tr_l1
    s_mul_i32 s{sSOFF}, s{sCOL}, {28*896}
    s_add_u32 m0, s{sTMP}, {112*896}
    s_add_u32 s{sSOFF}, s{sSOFF}, s{sTMP}
    """)
    a.label("k1_tr_l2")
    a(f"""
    buffer_load_dwordx4 v{vL16}, {sr(sW,4)}, s{sSOFF} offen lds
    s_add_u32 s{sSOFF}, s{sSOFF}, 4096
    s_add_u32 m0, m0, 4096
    s_cmp_lt_u32 m0, {112*896 + 25*1024}
    s_cbranch_scc1 k1_tr_l2
    """)
    a(f"""
    v_lshl_add_u32 v{vB}, v{vHH}, 2, v{vS0+1}
    s_movk_i32 s{sTMP}, 896
    v_mul_lo_u32 v{vB}, v{vB}, s{sTMP}
    v_add_u32 v{vB}, v{vB}, v{vS0+2}
    v_sub_u32 v{vHHI}, v{vHH}, 1
    s_mov_b32 s{sT}, s{sWAVE}
    s_waitcnt vmcnt(0)
    s_barrier
    """)
    a.label("k1_tr_l3")
    a(f"""
    s_mul_i32 s{sTMP}, s{sT}, 37
    s_lshr_b32 s{sTMP}, s{sTMP}, 8
    s_mul_i32 s{sTMP2}, s{sTMP}, 7
    s_sub_u32 s{sTMP2}, s{sT}, s{sTMP2}
    s_mul_i32 s{sSOFF}, s{sTMP}, {16*896}
    s_lshl_b32 s{sDST}, s{sTMP2}, 7
    s_add_u32 s{sSOFF}, s{sSOFF}, s{sDST}
    v_add_u32 v{vO}, s{sSOFF}, v{vB}
    ds_read_b64_tr_b16 v[40:41], v{vO}
    ds_read_b64_tr_b16 v[42:43], v{vO} offset:{8*896}
    ds_read_b64_tr_b16 v[44:45], v{vO} offset:64
    ds_read_b64_tr_b16 v[46:47], v{vO} offset:{8*896+64}
    s_mul_i32 s{sDST}, s{sCOL}, 7
    s_add_u32 s{sDST}, s{sDST}, s{sTMP}
    s_lshl_b32 s{sSCALE}, s{sCOL}, 1
    s_add_u32 s{sSCALE}, s{sSCALE}, s{sTMP}
    s_add_u32 s{sSCALE}, s{sSCALE}, {112-7}
    s_cmp_lt_u32 s{sTMP}, 7
    s_cselect_b32 s{sDST}, s{sDST}, s{sSCALE}
    s_mul_i32 s{sDST}, s{sDST}, 14
    s_lshl_b32 s{sTMP2}, s{sTMP2}, 1
    s_add_u32 s{sDST}, s{sDST}, s{sTMP2}
    s_lshl_b32 s{sDST}, s{sDST}, 10
    s_add_u32 s{sDST}, s{sDST}, {WF_OFF}
    s_cmp_eq_u32 s{sTMP}, 8
    s_cselect_b32 s{sHM}, 0, -1
    v_or_b32 v{vMASK}, s{sHM}, v{vHHI}
    s_waitcnt lgkmcnt(0)
    v_and_b32 v42, v42, v{vMASK}
    v_and_b32 v43, v43, v{vMASK}
    v_and_b32 v46, v46, v{vMASK}
    v_and_b32 v47, v47, v{vMASK}
    buffer_store_dwordx4 v[40:43], v{vL16}, {sr(sWS,4)}, s{sDST} offen
    buffer_store_dwordx4 v[44:47], v{vL16}, {sr(sWS,4)}, s{sDST} offen offset:1024
    s_add_u32 s{sT}, s{sT}, 4
    s_cmp_lt_u32 s{sT}, 63
    s_cbranch_scc1 k1_tr_l3
    """)
    a.label("k1_end")
    a("s_endpgm")
    return dict(name="k1_kernel", grid=256, block=256, lds=CSB + 1024, nvgpr=256, accum=256)

def build(kernels):
    hdr = open("cdna_kernels/" + NAME + ".s.ref").read().split("\n")
    out = [l for l in hdr if l.startswith(";") and "@launch" not in l and "Override" not in l and "grid=ceil" not in l]
    body = Asm()
    descs = []
    for g in kernels:
        body.raw(".p2align 8")
        info = g(body)
        descs.append(info)
    for d in descs:
        out.append(f"; @launch kernel={d['name']} grid=({d['grid']},1,1) block=({d['block']},1,1) lds={d['lds']}")
    out.append('.amdgcn_target "amdgcn-amd-amdhsa--gfx950"')
    out.append(".text")
    for d in descs:
        out.append(f".globl {d['name']}")
        out.append(f".type {d['name']},@function")
    txt = "\n".join(out) + "\n" + body.text()
    txt += '.section .rodata,"a"\n'
    for d in descs:
        txt += ".p2align 6\n" + kernel_desc(d['name'], d['nvgpr'], d['accum'])
    return txt

if __name__ == "__main__":
    ks = [gen_k1]
    try:
        from gen23 import gen_k2, gen_k3
        ks += [gen_k2, gen_k3]
    except ImportError:
        pass
    txt = build(ks)
    path = sys.argv[1] if len(sys.argv) > 1 else "cdna_kernels/" + NAME + ".s"
    open(path, "w").write(txt)
    print("wrote", path, len(txt))
```

```python
class Asm:
    def __init__(self):
        self.lines = []
        self.nlabel = 0
    def __call__(self, s):
        for l in s.strip("\n").split("\n"):
            self.lines.append("  " + l.strip())
    def label(self, name):
        self.lines.append(name + ":")
    def newlabel(self, base="L"):
        self.nlabel += 1
        return f"{base}_{self.nlabel}"
    def raw(self, s):
        self.lines.append(s)
    def comment(self, s):
        self.lines.append("  ; " + s)
    def text(self):
        return "\n".join(self.lines) + "\n"

def vr(base, n):
    return f"v[{base}:{base+n-1}]"
def ar(base, n):
    return f"a[{base}:{base+n-1}]"
def sr(base, n):
    return f"s[{base}:{base+n-1}]"

def kernel_desc(name, nvgpr, accum, nsgpr=100):
    return f""".amdhsa_kernel {name}
  .amdhsa_next_free_vgpr {nvgpr}
  .amdhsa_next_free_sgpr {nsgpr}
  .amdhsa_accum_offset {accum}
  .amdhsa_group_segment_fixed_size 0
  .amdhsa_kernarg_size 72
  .amdhsa_user_sgpr_count 2
  .amdhsa_user_sgpr_kernarg_segment_ptr 1
  .amdhsa_system_sgpr_workgroup_id_x 1
.end_amdhsa_kernel
"""

import os
STAMP = bool(int(os.environ.get("STAMP", "0")))
ST_OFF = 64 << 20
VST = 11
def stamp(a, idx, sref=80):
    if not STAMP: return
    if idx == 0: a(f"v_mov_b32 v{VST}, 0")
    a(f"""
    s_memtime s[96:97]
    s_memrealtime s[98:99]
    s_waitcnt lgkmcnt(0)
    v_writelane_b32 v{VST}, s96, {2*idx}
    v_writelane_b32 v{VST}, s98, {2*idx+1}
    """)
def stamp_flush(a, kidx, sWS, sWAVE, vtmp, sref=80, n=32, wpw=4):
    if not STAMP: return
    a(f"s_waitcnt vmcnt(0)")
    stamp(a, n-1, sref)
    a(f"""
    v_mbcnt_lo_u32_b32 v{vtmp+1}, -1, 0
    v_mbcnt_hi_u32_b32 v{vtmp+1}, -1, v{vtmp+1}
    v_lshlrev_b32 v{vtmp+1}, 2, v{vtmp+1}
    s_mul_i32 s96, s2, {wpw}
    s_add_u32 s96, s96, s{sWAVE}
    s_lshl_b32 s96, s96, 8
    s_add_u32 s96, s96, {ST_OFF + kidx*(1<<20)}
    buffer_store_dword v{VST}, v{vtmp+1}, s[{sWS}:{sWS+3}], s96 offen
    """)
```

```python
import os
from asmlib import *
from mega import *

def reduce_write(a, vACC, vWA, sBASE):
    a(f"v_add_u32 v{vWA}, s{sBASE}, v{vL16}")
    for j in range(1, 4):
        for g in range(4):
            a(f"ds_write_b128 v{vWA}, {vr(vACC+16*j+4*g,4)} offset:{(j-1)*4096+g*1024}")
def reduce_read(a, vACC, vT, vRA, region0):
    for j in range(1, 4):
        a(f"""
        s_xor_b32 s{sTMP}, s{sWAVE}, {j}
        s_lshl_b32 s{sTMP}, s{sTMP}, 14
        s_add_u32 s{sTMP}, s{sTMP}, {region0 + (j-1)*4096}
        v_add_u32 v{vRA}, s{sTMP}, v{vL16}
        """)
        for g in range(4):
            a(f"ds_read_b128 {vr(vT+16*(j-1)+4*g,4)}, v{vRA} offset:{g*1024}")
    for j in range(3):
        for g in range(4):
            a(f"s_waitcnt lgkmcnt({11 - (4*j+g)})")
            for r in range(4):
                i = 4*g + r
                a(f"v_add_f32 v{vACC+i}, v{vACC+i}, v{vT+16*j+i}")

def gen_attn(a):
    sHEAD, sQB, sKV, sRD, sWR, sLB, sFB, sWV = sR, sR+1, sR+2, sR+3, sR+4, sR+5, sR+6, sR+7
    vKA, vVA, vKAb, vVAb, vHH, vHHI, vT0 = 3, 4, 5, 6, 7, 8, 12
    vQ = 16; vO = 48; vS = [112, 128]; vP = [144, 152]; vK = [160, 168]; vV = [176, 184]; vNM = 192
    vFA = 208
    set_srd(a, sCc, pDBG, 256)
    a(f"s_setprio {os.environ.get('ATT_PRIO', '3')}")
    a(f"""
    s_and_b32 s{sHEAD}, s{sSL}, 1
    s_lshl_b32 s{sTMP}, s{sXCD}, 1
    s_add_u32 s{sHEAD}, s{sHEAD}, s{sTMP}
    s_lshr_b32 s{sQB}, s{sSL}, 1
    s_lshl_b32 s{sKV}, s{sHEAD}, 17
    s_add_u32 s{sKV}, s{sKV}, {KF_OFF}
    s_lshl_b32 s{sLB}, s{sWAVE}, 14
    v_lshrrev_b32 v{vHH}, 5, v{vLANE}
    v_add_u32 v{vKAb}, s{sLB}, v{vL16}
    v_bfe_u32 v{vT0}, v{vLANE}, 4, 1
    v_lshlrev_b32 v{vVAb}, 10, v{vT0}
    v_and_b32 v{vT0}, 1, v{vLANE}
    v_lshl_add_u32 v{vVAb}, v{vT0}, 9, v{vVAb}
    v_bfe_u32 v{vT0}, v{vLANE}, 1, 1
    v_lshl_add_u32 v{vVAb}, v{vT0}, 3, v{vVAb}
    v_bfe_u32 v{vT0}, v{vLANE}, 2, 2
    v_lshl_add_u32 v{vT0}, v{vHH}, 2, v{vT0}
    v_lshl_add_u32 v{vVAb}, v{vT0}, 4, v{vVAb}
    v_add_u32 v{vVAb}, s{sLB}, v{vVAb}
    v_add_u32 v{vVAb}, 2048, v{vVAb}
    v_sub_u32 v{vHHI}, v{vHH}, 1
    v_sub_u32 v{vHH}, 0, v{vHH}
    """)
    a(f"""
    s_add_u32 s{sTMP}, s{sHEAD}, 16
    s_mul_i32 s{sTMP}, s{sTMP}, 43
    s_lshr_b32 s{sTMP}, s{sTMP}, 7
    s_lshl_b32 s{sTMP}, s{sTMP}, 6
    v_mov_b32 v{vFA}, s{sTMP}
    s_lshl_b32 s{sTMP3}, s{sWAVE}, 4
    s_add_u32 s{sTMP}, s{sTMP}, s{sTMP3}
    v_and_b32 v{vT0}, 15, v{vLANE}
    v_add_u32 v{vT0+1}, s{sTMP}, v{vT0}
    s_mov_b32 exec_lo, 0xffff
    s_mov_b32 exec_hi, 0
    v_mov_b32 v{vFA}, v{vT0+1}
    s_mov_b64 exec, -1
    s_add_u32 s{sTMP}, s{sHEAD}, 32
    s_mul_i32 s{sTMP}, s{sTMP}, 43
    s_lshr_b32 s{sTMP}, s{sTMP}, 7
    s_lshl_b32 s{sTMP}, s{sTMP}, 6
    s_add_u32 s{sTMP}, s{sTMP}, s{sTMP3}
    v_add_u32 v{vT0+1}, s{sTMP}, v{vT0}
    s_mov_b32 exec_lo, 0xffff0000
    s_mov_b32 exec_hi, 0
    v_mov_b32 v{vFA}, v{vT0+1}
    s_mov_b64 exec, -1
    s_mul_i32 s{sTMP}, s{sHEAD}, 43
    s_lshr_b32 s{sTMP}, s{sTMP}, 7
    s_lshl_b32 s{sTMP}, s{sTMP}, 6
    s_lshl_b32 s{sTMP3}, s{sQB}, 2
    s_add_u32 s{sTMP}, s{sTMP}, s{sTMP3}
    v_and_b32 v{vT0}, 3, v{vLANE}
    v_add_u32 v{vT0+1}, s{sTMP}, v{vT0}
    s_mov_b32 exec_lo, 0
    s_mov_b32 exec_hi, 0xffff
    v_mov_b32 v{vFA}, v{vT0+1}
    s_mov_b64 exec, -1
    v_lshlrev_b32 v{vFA}, 3, v{vFA}
    v_add_u32 v{vFA}, {F1_OFF}, v{vFA}
    """)
    for i in range(8):
        a(f"v_mov_b32 v{vP[1]+i}, 0")
        a(f"v_mov_b32 v{vV[1]+i}, 0")
    get_tag(a, vT0, vT0+2)
    stamp(a, 6)
    poll_flags(a, vFA, vT0+2)
    stamp(a, 7)
    a(f"buffer_load_dwordx4 {vr(vK[1],4)}, v{vL16}, {sr(sWS,4)}, s{sKV} offen sc1")
    a(f"buffer_load_dwordx4 {vr(vK[1]+4,4)}, v{vL16}, {sr(sWS,4)}, s{sKV} offen offset:1024 sc1")
    a(f"""
    s_lshl_b32 s{sTMP2}, s{sQB}, 2
    s_lshl_b32 s{sTMP3}, s{sHEAD}, 6
    s_add_u32 s{sTMP2}, s{sTMP2}, s{sTMP3}
    """)
    for j in range(4):
        a(f"""
        s_xor_b32 s{sTMP}, s{sWAVE}, {j}
        s_add_u32 s{sTMP}, s{sTMP}, s{sTMP2}
        s_lshl_b32 s{sTMP}, s{sTMP}, 11
        buffer_load_dwordx4 {vr(vQ+8*j,4)}, v{vL16}, {sr(sWS,4)}, s{sTMP} offen sc1
        buffer_load_dwordx4 {vr(vQ+8*j+4,4)}, v{vL16}, {sr(sWS,4)}, s{sTMP} offen offset:1024 sc1
        """)
    prog_wait(a, vT0, CP, 10)
    a(f"""
    s_lshl_b32 s{sTMP}, s{sWAVE}, 15
    s_add_u32 s{sWR}, s{sKV}, s{sTMP}
    s_mov_b32 m0, s{sLB}
    """)
    def dma_tile():
        a(f"s_add_u32 s{sWV}, s{sWR}, {VF_OFF - KF_OFF - 2048}")
        for i in range(4):
            a(f"buffer_load_dwordx4 v{vL16}, {sr(sWS,4)}, s{sWR if i < 2 else sWV} offen offset:{1024*i} sc1 lds")
    for t in range(4):
        dma_tile()
        a(f"s_add_u32 s{sWR}, s{sWR}, 2048")
        if t < 3:
            a(f"s_add_u32 m0, m0, 4096")
    stamp(a, 8)
    a("s_waitcnt vmcnt(16)")
    stamp(a, 9)
    for j in range(4):
        a(f"v_mfma_f32_32x32x16_bf16 {vr(vO+16*j,16)}, {vr(vK[1],4)}, {vr(vQ+8*j,4)}, 0")
        a(f"v_mfma_f32_32x32x16_bf16 {vr(vO+16*j,16)}, {vr(vK[1]+4,4)}, {vr(vQ+8*j+4,4)}, {vr(vO+16*j,16)}")
    a("s_waitcnt vmcnt(12)")
    def read_k(st, addr):
        a(f"ds_read_b128 {vr(vK[st],4)}, v{addr}")
        a(f"ds_read_b128 {vr(vK[st]+4,4)}, v{addr} offset:1024")
    def read_v_ins(st, addr):
        return [f"ds_read_b64_tr_b16 {vr(vV[st]+4*s_+2*p,2)}, v{addr} offset:{(16*s_+8*p)*16}" for s_ in range(2) for p in range(2)]
    read_k(0, vKAb)
    for x in read_v_ins(0, vVAb): a(x)
    a("s_nop 7")
    for j in range(4):
        o = vO + 16*j
        t = vT0 + (j & 1) * 2
        a(f"v_max3_f32 v{t}, v{o}, v{o+1}, v{o+2}")
        for i in range(3, 15, 2):
            a(f"v_max3_f32 v{t}, v{t}, v{o+i}, v{o+i+1}")
        a(f"v_max_f32 v{t}, v{t}, v{o+15}")
        a(f"v_mov_b32 v{t+1}, v{t}")
        a(f"v_mfma_f32_32x32x16_bf16 {vr(o,16)}, {vr(vP[1],4)}, {vr(vP[1],4)}, 0")
        a("s_nop 0")
        a(f"v_permlane32_swap_b32 v{t}, v{t+1}")
        a("s_nop 1")
        a(f"v_max_f32 v{t}, v{t}, v{t+1}")
        a(f"v_add_f32 v{t}, {f32bits(BIAS - 1.0):#x}, v{t}")
        a(f"v_cvt_pk_bf16_f32 v{t}, -v{t}, 0")
        a(f"v_and_b32 v{t}, v{t}, v{vHH}")
        a(f"v_and_or_b32 v{vQ+8*j+6}, v{vQ+8*j+6}, v{vHHI}, v{t}")
    a(f"""
    s_mov_b32 s{sRD}, 0
    s_mov_b32 s{sIT}, 0
    s_waitcnt lgkmcnt(0)
    """)
    a(f"v_mfma_f32_32x32x16_bf16 {vr(vS[0],16)}, {vr(vK[0],4)}, {vr(vQ,4)}, 0")
    a(f"v_mfma_f32_32x32x16_bf16 {vr(vS[0],16)}, {vr(vK[0]+4,4)}, {vr(vQ+4,4)}, {vr(vS[0],16)}")
    a("s_nop 7")
    a("s_nop 3")
    def body(st):
        for j in range(4):
            sc = vS[j % 2]; sn = vS[(j + 1) % 2]
            pc = vP[j % 2]; pp = vP[(j + 1) % 2]
            kn = vK[st] if j < 3 else vK[1 - st]
            qn = vQ + 8 * ((j + 1) % 4)
            vv = vV[st] if j > 0 else vV[1 - st]
            op = vO + 16 * ((j + 3) % 4)
            mf = [
                f"v_mfma_f32_32x32x16_bf16 {vr(sn,16)}, {vr(kn,4)}, {vr(qn,4)}, 0",
                f"v_mfma_f32_32x32x16_bf16 {vr(sn,16)}, {vr(kn+4,4)}, {vr(qn+4,4)}, {vr(sn,16)}",
                f"v_mfma_f32_32x32x16_bf16 {vr(op,16)}, {vr(vv,4)}, {vr(pp,4)}, {vr(op,16)}",
                f"v_mfma_f32_32x32x16_bf16 {vr(op,16)}, {vr(vv+4,4)}, {vr(pp+4,4)}, {vr(op,16)}",
            ]
            if j == 3:
                a("s_waitcnt lgkmcnt(0)")
            plan = [[("e", 0), ("e", 1), ("e", 2)], [("e", 3), ("e", 4), ("e", 5)], [("e", 6), ("e", 7), ("e", 8)],
                    [("e", i) for i in range(9, 16)] + [("c", i) for i in range(8)]]
            for g in range(4):
                a(mf[g])
                if j == 0 and g == 3:
                    a(f"s_add_u32 m0, s{sLB}, s{sRD}")
                    a(f"s_add_u32 s{sRD}, s{sRD}, 4096")
                    if st == 0:
                        a(f"s_cmp_ge_u32 s{sIT}, 6")
                        a(f"s_cselect_b32 s{sWR}, {OOB:#x}, s{sWR}")
                    a("s_setprio 3")
                    dma_tile()
                    a(f"s_setprio {os.environ.get('ATT_BASE', '0')}")
                    a(f"s_add_u32 s{sWR}, s{sWR}, 2048")
                    a(f"s_and_b32 s{sRD}, s{sRD}, 0x3fff")
                    a(f"v_add_u32 v{vKA}, s{sRD}, v{vKAb}")
                    a(f"v_add_u32 v{vVA}, s{sRD}, v{vVAb}")
                if j == 1 and g == 3:
                    a("s_waitcnt vmcnt(12)")
                    read_k(1 - st, vKA)
                    for x in read_v_ins(1 - st, vVA): a(x)
                for kind, i in plan[g]:
                    if kind == "e":
                        a(f"v_exp_f32 v{sc+i}, v{sc+i}")
                    else:
                        a(f"v_cvt_pk_bf16_f32 v{pc+i}, v{sc+2*i}, v{sc+2*i+1}")
    stamp(a, 10)
    a.raw(".p2align 6")
    a.label("a_loop")
    body(0); body(1)
    a(f"""
    s_add_u32 s{sIT}, s{sIT}, 1
    s_cmp_lt_u32 s{sIT}, 8
    s_cbranch_scc1 a_loop
    """)
    stamp(a, 11)
    a("s_setprio 3")
    a("s_nop 1")
    a(f"v_mfma_f32_32x32x16_bf16 {vr(vO+48,16)}, {vr(vV[1],4)}, {vr(vP[1],4)}, {vr(vO+48,16)}")
    a(f"v_mfma_f32_32x32x16_bf16 {vr(vO+48,16)}, {vr(vV[1]+4,4)}, {vr(vP[1]+4,4)}, {vr(vO+48,16)}")
    a("s_waitcnt vmcnt(0)")
    a("s_nop 3")
    reduce_write(a, vO, vT0, sLB)
    a("s_waitcnt lgkmcnt(0)")
    prog_set(a, vT0, AP, 1)
    prog_wait(a, vT0, AP, 1, sleep=0)
    reduce_read(a, vO, vS[0], vT0, ATT0)
    a(f"s_mov_b32 s{sFB}, 0")
    stamp(a, 12)
    a.label("a_norm")
    a(f"""
    v_mov_b32 v{vT0}, v{vO+12}
    v_mov_b32 v{vT0+1}, v{vO+12}
    s_nop 1
    v_permlane32_swap_b32 v{vT0}, v{vT0+1}
    s_nop 1
    v_rcp_f32 v{vT0}, v{vT0+1}
    v_mov_b32 v{vT0+2}, 0
    """)
    for i in range(16):
        a(f"v_mul_f32 v{vS[0]+i}, v{vO+i}, v{vT0}")
    for i in range(16):
        a(f"v_fma_f32 v{vT0+2}, v{vS[0]+i}, 0, v{vT0+2}")
    a(f"""
    s_mov_b32 s{sTMP}, {f32bits(2.0**-90):#x}
    v_cmp_nle_f32 vcc, s{sTMP}, v{vT0+1}
    s_mov_b32 s{sTMP}, {f32bits(2.0**100):#x}
    v_cmp_nge_f32 s[72:73], s{sTMP}, v{vT0+1}
    v_cmp_u_f32 s[74:75], v{vT0+2}, v{vT0+2}
    s_or_b64 vcc, vcc, s[72:73]
    s_or_b64 vcc, vcc, s[74:75]
    s_cmp_lg_u32 s{sFB}, 0
    s_cbranch_scc1 a_store
    s_cbranch_vccnz a_fallback
    """)
    a.label("a_store")
    for i in range(8):
        a(f"v_cvt_pk_bf16_f32 v{vP[0]+i}, v{vS[0]+2*i}, v{vS[0]+2*i+1}")
    a(f"""
    v_and_b32 v{vP[0]+6}, v{vP[0]+6}, v{vHHI}
    v_and_b32 v{vP[0]+7}, v{vP[0]+7}, v{vHHI}
    s_lshl_b32 s{sTMP3}, s{sQB}, 2
    s_add_u32 s{sTMP3}, s{sTMP3}, s{sWAVE}
    s_mul_i32 s{sTMP}, s{sTMP3}, 144
    s_lshl_b32 s{sTMP2}, s{sHEAD}, 1
    s_add_u32 s{sTMP}, s{sTMP}, s{sTMP2}
    s_lshl_b32 s{sTMP}, s{sTMP}, 10
    s_add_u32 s{sTMP}, s{sTMP}, {HF_OFF + 112*1024}
    buffer_store_dwordx4 {vr(vP[0],4)}, v{vL16}, {sr(sWS,4)}, s{sTMP} offen sc1
    buffer_store_dwordx4 {vr(vP[0]+4,4)}, v{vL16}, {sr(sWS,4)}, s{sTMP} offen offset:1024 sc1
    s_lshl_b32 s{sTMP3}, s{sTMP3}, 4
    s_add_u32 s{sTMP3}, s{sTMP3}, s{sHEAD}
    s_lshl_b32 s{sTMP3}, s{sTMP3}, 3
    s_add_u32 s{sTMP3}, s{sTMP3}, {F3_OFF}
    s_waitcnt vmcnt(0)
    """)
    stamp(a, 13)
    publish_flag(a, vT0, vT0+2, sTMP3)
    stamp_flush(a, 0, sWS, sW8, 20, wpw=8)
    a("s_endpgm")
    a.label("a_fallback")
    a(f"""
    v_and_b32 v{vQ+6}, v{vQ+6}, v{vHHI}
    v_mov_b32 v{vT0}, 0xff800000
    s_mov_b32 s{sWR}, s{sKV}
    s_mov_b32 s{sIT}, 0
    """)
    a.label("a_fb1")
    a(f"""
    buffer_load_dwordx4 {vr(vK[0],4)}, v{vL16}, {sr(sWS,4)}, s{sWR} offen sc1
    buffer_load_dwordx4 {vr(vK[0]+4,4)}, v{vL16}, {sr(sWS,4)}, s{sWR} offen offset:1024 sc1
    s_waitcnt vmcnt(0)
    v_mfma_f32_32x32x16_bf16 {vr(vS[0],16)}, {vr(vK[0],4)}, {vr(vQ,4)}, 0
    v_mfma_f32_32x32x16_bf16 {vr(vS[0],16)}, {vr(vK[0]+4,4)}, {vr(vQ+4,4)}, {vr(vS[0],16)}
    s_nop 15
    s_nop 3
    """)
    for i in range(0, 16, 2):
        a(f"v_max3_f32 v{vT0}, v{vT0}, v{vS[0]+i}, v{vS[0]+i+1}")
    a(f"""
    s_add_u32 s{sWR}, s{sWR}, 2048
    s_add_u32 s{sIT}, s{sIT}, 1
    s_cmp_lt_u32 s{sIT}, 64
    s_cbranch_scc1 a_fb1
    v_mov_b32 v{vT0+1}, v{vT0}
    s_nop 1
    v_permlane32_swap_b32 v{vT0}, v{vT0+1}
    s_nop 1
    v_max_f32 v{vT0}, v{vT0}, v{vT0+1}
    """)
    for i in range(16):
        a(f"v_sub_f32 v{vNM+i}, 0, v{vT0}")
        a(f"v_mov_b32 v{vO+i}, 0")
    a(f"""
    s_add_u32 m0, s{sLB}, 12288
    v_add_u32 v{vKA}, 12288, v{vKAb}
    v_add_u32 v{vVA}, 12288, v{vVAb}
    s_mov_b32 s{sWR}, s{sKV}
    s_mov_b32 s{sIT}, 0
    """)
    a.label("a_fb2")
    dma_tile()
    a("s_waitcnt vmcnt(0)")
    read_k(0, vKA)
    for x in read_v_ins(0, vVA): a(x)
    a(f"""
    s_waitcnt lgkmcnt(0)
    v_mfma_f32_32x32x16_bf16 {vr(vS[0],16)}, {vr(vK[0],4)}, {vr(vQ,4)}, {vr(vNM,16)}
    v_mfma_f32_32x32x16_bf16 {vr(vS[0],16)}, {vr(vK[0]+4,4)}, {vr(vQ+4,4)}, {vr(vS[0],16)}
    s_nop 15
    s_nop 3
    """)
    for i in range(16):
        a(f"v_exp_f32 v{vS[0]+i}, v{vS[0]+i}")
    a("s_nop 0")
    for i in range(8):
        a(f"v_cvt_pk_bf16_f32 v{vP[0]+i}, v{vS[0]+2*i}, v{vS[0]+2*i+1}")
    a(f"""
    s_nop 1
    v_mfma_f32_32x32x16_bf16 {vr(vO,16)}, {vr(vV[0],4)}, {vr(vP[0],4)}, {vr(vO,16)}
    v_mfma_f32_32x32x16_bf16 {vr(vO,16)}, {vr(vV[0]+4,4)}, {vr(vP[0]+4,4)}, {vr(vO,16)}
    s_add_u32 s{sWR}, s{sWR}, 2048
    s_add_u32 s{sIT}, s{sIT}, 1
    s_cmp_lt_u32 s{sIT}, 64
    s_cbranch_scc1 a_fb2
    s_nop 15
    s_nop 3
    s_mov_b32 s{sFB}, 1
    s_branch a_norm
    """)

def gen_gemm2(a):
    sMT, sNT, sHO, sWOFF, sGB, sM = sR, sR+1, sR+2, sR+3, sR+4, sR+5
    vH0, vH1, vWD, vTR0, vTR1, vXA, vT0, vFA = 3, 4, 5, 6, 7, 8, 12, 16
    vXD = 18
    vWF = 28
    vACC = 80
    vHR = 144
    vWB = 16
    a(f"""
    s_cmp_ge_u32 s{sSL}, 28
    s_cbranch_scc1 k_end
    s_mul_i32 s{sTMP}, s{sSL}, 37
    s_lshr_b32 s{sTMP}, s{sTMP}, 8
    s_mul_i32 s{sTMP2}, s{sTMP}, 7
    s_sub_u32 s{sNT}, s{sSL}, s{sTMP2}
    s_lshl_b32 s{sMT}, s{sXCD}, 2
    s_add_u32 s{sMT}, s{sMT}, s{sTMP}
    s_lshl_b32 s{sMT}, s{sMT}, 1
    """)
    a(f"""
    v_and_b32 v{vFA}, 31, v{vLANE}
    s_lshl_b32 s{sTMP}, s{sMT}, 4
    v_add_u32 v{vFA}, s{sTMP}, v{vFA}
    v_lshlrev_b32 v{vFA}, 3, v{vFA}
    v_add_u32 v{vFA}, {F2_OFF}, v{vFA}
    s_and_b32 s{sTMP}, s{sWAVE}, 1
    s_add_u32 s{sMT}, s{sMT}, s{sTMP}
    s_mul_i32 s{sTMP}, s{sMT}, {144*1024}
    s_add_u32 s{sTMP}, s{sTMP}, {HF_OFF}
    v_add_u32 v{vH0}, s{sTMP}, v{vL16}
    s_xor_b32 s{sTMP}, s{sMT}, 1
    s_mul_i32 s{sTMP}, s{sTMP}, {144*1024}
    s_add_u32 s{sTMP}, s{sTMP}, {HF_OFF}
    v_add_u32 v{vH1}, s{sTMP}, v{vL16}
    s_mul_i32 s{sHO}, s{sWAVE}, {28*1024}
    s_lshl_b32 s{sGB}, s{sWAVE}, 14
    s_add_u32 s{sGB}, s{sGB}, {GR0}
    """)
    a(f"""
    v_lshrrev_b32 v{vT0}, 3, v{vLANE}
    v_bfe_u32 v{vT0+1}, v{vLANE}, 4, 1
    v_lshlrev_b32 v{vT0+1}, 2, v{vT0+1}
    v_and_b32 v{vT0+2}, 7, v{vLANE}
    v_xor_b32 v{vT0+2}, v{vT0+2}, v{vT0+1}
    v_lshlrev_b32 v{vT0+2}, 4, v{vT0+2}
    s_movk_i32 s{sTMP}, 896
    v_mad_u32_u24 v{vWD}, v{vT0}, s{sTMP}, v{vT0+2}
    s_mul_i32 s{sWOFF}, s{sWAVE}, {448*896}
    s_lshl_b32 s{sTMP}, s{sNT}, 7
    s_add_u32 s{sWOFF}, s{sWOFF}, s{sTMP}
    """)
    a(f"""
    v_lshrrev_b32 v{vT0}, 5, v{vLANE}
    v_bfe_u32 v{vT0+1}, v{vLANE}, 2, 2
    v_lshl_add_u32 v{vT0}, v{vT0}, 2, v{vT0+1}
    v_lshlrev_b32 v{vTR0}, 7, v{vT0}
    v_bfe_u32 v{vT0+1}, v{vLANE}, 3, 1
    s_lshr_b32 s{sTMP}, s{sWAVE}, 1
    v_xor_b32 v{vT0+1}, s{sTMP}, v{vT0+1}
    v_lshl_add_u32 v{vTR0}, v{vT0+1}, 6, v{vTR0}
    v_bfe_u32 v{vT0+1}, v{vLANE}, 4, 1
    v_lshl_add_u32 v{vTR0}, v{vT0+1}, 5, v{vTR0}
    v_and_b32 v{vT0+1}, 3, v{vLANE}
    v_lshl_add_u32 v{vTR0}, v{vT0+1}, 3, v{vTR0}
    v_xor_b32 v{vTR1}, 64, v{vTR0}
    v_add_u32 v{vTR0}, s{sGB}, v{vTR0}
    v_add_u32 v{vTR1}, s{sGB}, v{vTR1}
    s_lshl_b32 s{sNT}, s{sNT}, 1
    s_add_u32 s{sNT}, s{sNT}, s{sTMP}
    """)
    set_srd(a, sB, pW2, DFF*D*2)
    stamp(a, 13)
    poll_flags(a, vFA, vT0)
    stamp(a, 14)
    def loads(k):
        f = vHR + 8*k
        a(f"s_add_u32 m0, s{sGB}, {2048*k}")
        a(f"s_add_u32 s{sTMP}, s{sWOFF}, {8*896 - 1024}")
        a(f"buffer_load_dwordx4 v{vWD}, {sr(sB,4)}, s{sWOFF} offen lds")
        a(f"buffer_load_dwordx4 v{vWD}, {sr(sB,4)}, s{sTMP} offen offset:1024 lds")
        a(f"buffer_load_dwordx4 {vr(f,4)}, v{vH0}, {sr(sWS,4)}, s{sHO} offen sc1")
        a(f"buffer_load_dwordx4 {vr(f+4,4)}, v{vH1}, {sr(sWS,4)}, s{sHO} offen sc1")
        a(f"s_add_u32 s{sHO}, s{sHO}, 1024")
        a(f"s_add_u32 s{sWOFF}, s{sWOFF}, {16*896}")
    def rdw(k, dst):
        for t, ad in ((0, vTR0), (1, vTR1)):
            for p in range(2):
                a(f"ds_read_b64_tr_b16 {vr(dst+4*t+2*p,2)}, v{ad} offset:{2048*k + 1024*p}")
    def mfmas(w, h):
        for j in range(4):
            a(f"v_mfma_f32_32x32x16_bf16 {vr(vACC+16*j,16)}, {vr(w+4*(j>>1),4)}, {vr(h+4*(j&1),4)}, {vr(vACC+16*j,16)}")
    for k in range(7):
        loads(k)
    a(f"s_mov_b32 s{sIT}, 0")
    a.label("g_loop")
    a(f"""
    s_cmp_eq_u32 s{sIT}, 3
    s_cselect_b32 s{sHO}, {OOB:#x}, s{sHO}
    s_cselect_b32 s{sWOFF}, {OOB:#x}, s{sWOFF}
    """)
    for k in range(7):
        a("s_waitcnt vmcnt(24)")
        rdw(k, vWF)
        a("s_waitcnt lgkmcnt(0)")
        mfmas(vWF, vHR + 8*k)
        loads(k)
    a(f"""
    s_add_u32 s{sIT}, s{sIT}, 1
    s_cmp_lt_u32 s{sIT}, 4
    s_cbranch_scc1 g_loop
    s_waitcnt vmcnt(0)
    """)
    stamp(a, 15)
    vFA3, vXD3, vOA = 208, 212, 220
    set_srd(a, sB, pWO, D*D*2)
    set_srd(a, sA, pX, S*D*2)
    set_srd(a, sCc, pOUT, S*D*2)
    a(f"""
    s_mul_i32 s{sWOFF}, s{sWAVE}, {4*28*896}
    s_lshr_b32 s{sTMP}, s{sNT}, 1
    s_lshl_b32 s{sTMP}, s{sTMP}, 7
    s_add_u32 s{sWOFF}, s{sWOFF}, s{sTMP}
    """)
    for k in range(8):
        off = (28*(k >> 1) + 16*(k & 1)) * 896
        a(f"s_add_u32 m0, s{sGB}, {2048*k}")
        a(f"s_add_u32 s{sTMP}, s{sWOFF}, {off}")
        a(f"buffer_load_dwordx4 v{vWD}, {sr(sB,4)}, s{sTMP} offen lds")
        a(f"s_add_u32 s{sTMP}, s{sWOFF}, {off + 8*896 - 1024}")
        a(f"buffer_load_dwordx4 v{vWD}, {sr(sB,4)}, s{sTMP} offen offset:1024 lds")
    a(f"""
    v_add_u32 v{vFA3}, {F3_OFF - F2_OFF}, v{vFA}
    v_and_b32 v{vOA}, 31, v{vLANE}
    s_lshl_b32 s{sTMP}, s{sMT}, 5
    v_add_u32 v{vOA}, s{sTMP}, v{vOA}
    s_movk_i32 s{sTMP}, 896
    v_mul_lo_u32 v{vOA}, v{vOA}, s{sTMP}
    v_lshrrev_b32 v{vT0}, 5, v{vLANE}
    v_lshl_add_u32 v{vXA}, v{vT0}, 3, v{vOA}
    v_lshl_add_u32 v{vOA}, v{vT0}, 4, v{vOA}
    s_lshl_b32 s{sNT}, s{sNT}, 6
    """)
    for g in range(4):
        a(f"buffer_load_dwordx2 {vr(vXD3+2*g,2)}, v{vXA}, {sr(sA,4)}, s{sNT} offen offset:{16*g}")
    a("s_waitcnt vmcnt(0)")
    for k in range(8):
        rdw(k, vWB + 8*k)
        if k % 2 == 1: a("s_waitcnt lgkmcnt(0)")
    for g in range(4):
        for p in range(2):
            a(f"v_lshlrev_b32 v{vT0}, 16, v{vXD3+2*g+p}")
            a(f"v_and_b32 v{vT0+1}, 0xffff0000, v{vXD3+2*g+p}")
            a(f"v_add_f32 v{vACC+4*g+2*p}, v{vACC+4*g+2*p}, v{vT0}")
            a(f"v_add_f32 v{vACC+4*g+2*p+1}, v{vACC+4*g+2*p+1}, v{vT0+1}")
    a(f"""
    s_lshl_b32 s{sHO}, s{sWAVE}, 13
    s_add_u32 s{sHO}, s{sHO}, {112*1024}
    s_add_u32 s{sTMP2}, s{sHO}, 4096
    """)
    stamp(a, 16)
    poll_flags(a, vFA3, vT0)
    stamp(a, 17)
    for k in range(8):
        f = vHR + 8*k
        so = sHO if k < 4 else sTMP2
        a(f"buffer_load_dwordx4 {vr(f,4)}, v{vH0}, {sr(sWS,4)}, s{so} offen offset:{1024*(k%4)} sc1")
        a(f"buffer_load_dwordx4 {vr(f+4,4)}, v{vH1}, {sr(sWS,4)}, s{so} offen offset:{1024*(k%4)} sc1")
    for k in range(8):
        a(f"s_waitcnt vmcnt({14 - 2*k})")
        mfmas(vWB + 8*k, vHR + 8*k)
    stamp(a, 18)
    a("s_nop 7")
    a("s_nop 3")
    reduce_write(a, vACC, vT0, sGB)
    a("s_waitcnt lgkmcnt(0)")
    prog_set(a, vT0, CP, 12)
    prog_wait(a, vT0, CP, 12, sleep=0)
    reduce_read(a, vACC, vHR, vT0, GR0)
    stamp(a, 19)
    for i in range(8):
        a(f"v_cvt_pk_bf16_f32 v{vHR+i}, v{vACC+2*i}, v{vACC+2*i+1}")
    a("s_nop 1")
    for q in range(2):
        a(f"v_permlane32_swap_b32 v{vHR+4*q}, v{vHR+4*q+2}")
        a(f"v_permlane32_swap_b32 v{vHR+4*q+1}, v{vHR+4*q+3}")
    a("s_nop 1")
    for q in range(2):
        a(f"buffer_store_dwordx4 {vr(vHR+4*q,4)}, v{vOA}, {sr(sCc,4)}, s{sNT} offen offset:{32*q}")
    stamp_flush(a, 0, sWS, sW8, 20, wpw=8)
```

```python
import sys, math, struct, os
from asmlib import *

NAME = "parallel_sum__mha_block__dense_activation_relu__prompt"
S, D, H, DH, DFF = 2048, 448, 16, 28, 1792
QF_OFF = 0
KF_OFF = 2 << 20
VF_OFF = 4 << 20
HF_OFF = 7 << 20
FL_OFF = 17 << 20
F1_OFF, F2_OFF, F3_OFF = FL_OFF, FL_OFF + 8192, FL_OFF + 16384
WS_SIZE = 0x10000000
OOB = 0x40000000
BIAS = 80.0
STOP = int(os.environ.get("STOP", "0"))
SPIN_G = 1 << 14
SPIN_L = 1 << 20

def f32bits(x):
    return struct.unpack("<I", struct.pack("<f", x))[0]
QSCALE = math.log2(math.e) / math.sqrt(DH)

class LgkmTracker:
    def __init__(self, a):
        self.a = a; self.q = []
    def issue(self, tag): self.q.append(tag)
    def need(self, tag):
        if tag in self.q:
            idx = len(self.q) - 1 - self.q[::-1].index(tag)
            n = min(len(self.q) - 1 - idx, 13)
            self.a(f"s_waitcnt lgkmcnt({n})")
            self.q = self.q[len(self.q) - n:] if n > 0 else []
    def drain(self):
        self.a("s_waitcnt lgkmcnt(0)"); self.q = []

SLOT = 28672
SL0 = 12288
WB = SL0 + SLOT
ATT0 = 0
GR0 = 90112
CTL = SL0 + 5*SLOT
CSA, CSB_ = CTL + 4096, CTL + 4096 + 512
LP, CP, AP = CTL + 6144, CTL + 6144 + 16, CTL + 6144 + 32
LDS_TOTAL = 163840

pX, pWQ, pWO, pW1, pW2, pOUT, pDBG = 4, 6, 8, 12, 14, 16, 18
sWS, sA, sB, sCc = 20, 24, 28, 32
sXCD, sSL, sW8, sWAVE, sMT32, sCOL, sTMP, sTMP2, sTMP3, sIT = 36, 37, 38, 39, 40, 41, 42, 43, 44, 45
sR = 46
sTAG = 76
sSPIN = 78
vLANE, vL16, vPW, vPR = 1, 2, 9, 10

def prog_wait(a, vD, base, target, sleep=1):
    lp = a.newlabel("lw"); dn = a.newlabel("lwd"); st = a.newlabel("lws")
    a(f"s_mov_b32 s{sSPIN}, {SPIN_L}")
    a(f"s_branch {st}")
    a.label(lp)
    a(f"s_sleep {sleep}")
    a.label(st)
    a(f"""
    ds_read_b32 v{vD}, v{vPR} offset:{base - CTL}
    s_sub_u32 s{sSPIN}, s{sSPIN}, 1
    s_cbranch_scc1 {dn}
    s_waitcnt lgkmcnt(0)
    v_cmp_gt_u32 vcc, {target}, v{vD}
    s_cbranch_vccnz {lp}
    """)
    a.label(dn)
    a("s_waitcnt lgkmcnt(0)")

def prog_set(a, vD, base, val):
    a(f"v_mov_b32 v{vD}, {val}")
    a(f"ds_write_b32 v{vPW}, v{vD} offset:{base - CTL}")

def get_tag(a, vA, vD):
    lp = a.newlabel("tg"); dn = a.newlabel("tgd")
    a(f"v_mov_b32 v{vA}, 0")
    a(f"s_mov_b32 s{sSPIN}, {SPIN_G}")
    a.label(lp)
    a(f"""
    buffer_load_dwordx2 {vr(vD,2)}, v{vA}, {sr(sCc,4)}, 0 offen sc1
    s_waitcnt vmcnt(0)
    v_readfirstlane_b32 s{sTAG}, v{vD}
    v_readfirstlane_b32 s{sTAG+1}, v{vD+1}
    s_sub_u32 s{sSPIN}, s{sSPIN}, 1
    s_cbranch_scc1 {dn}
    s_cmp_eq_u32 s{sTAG}, 0
    s_cbranch_scc1 {lp}
    """)
    a.label(dn)

def poll_flags(a, vFA, vD):
    lp = a.newlabel("pf"); dn = a.newlabel("pfd")
    a(f"s_mov_b32 s{sSPIN}, {SPIN_G}")
    a.label(lp)
    a(f"""
    buffer_load_dwordx2 {vr(vD,2)}, v{vFA}, {sr(sWS,4)}, 0 offen sc1
    s_sub_u32 s{sSPIN}, s{sSPIN}, 1
    s_cbranch_scc1 {dn}
    s_waitcnt vmcnt(0)
    v_cmp_ne_u64 vcc, {sr(sTAG,2)}, {vr(vD,2)}
    s_cbranch_vccz {dn}
    s_sleep 2
    s_branch {lp}
    """)
    a.label(dn)
    a("s_waitcnt vmcnt(0)")

def publish_flag(a, vA, vD, sOFF):
    a(f"""
    v_mov_b32 v{vD}, s{sTAG}
    v_mov_b32 v{vD+1}, s{sTAG+1}
    v_mov_b32 v{vA}, 0
    s_mov_b64 exec, 1
    buffer_store_dwordx2 {vr(vD,2)}, v{vA}, {sr(sWS,4)}, s{sOFF} offen sc1
    s_mov_b64 exec, -1
    """)

def set_srd(a, srd, ptr, size):
    a(f"""
    s_mov_b32 s{srd}, s{ptr}
    s_mov_b32 s{srd+1}, s{ptr+1}
    s_mov_b32 s{srd+2}, {size}
    """)

def gen(a):
    KN = NAME + "_kernel"
    a.label(KN)
    a(f"""
    s_cmp_ge_u32 s2, 256
    s_cbranch_scc1 k_end
    """)
    stamp(a, 0)
    a(f"""
    s_load_dwordx4 s[4:7], s[0:1], 0
    s_load_dwordx2 s[8:9], s[0:1], 16
    s_load_dwordx8 s[12:19], s[0:1], 32
    s_load_dwordx2 s[{sWS}:{sWS+1}], s[0:1], 64
    v_lshlrev_b32 v7, 3, v0
    v_add_u32 v7, {CTL + 4096}, v7
    v_mov_b32 v4, 0
    v_mov_b32 v5, 0
    ds_write_b64 v7, v[4:5]
    v_and_b32 v{vLANE}, 63, v0
    v_lshrrev_b32 v7, 6, v0
    v_lshlrev_b32 v{vL16}, 4, v{vLANE}
    v_readfirstlane_b32 s{sW8}, v7
    s_and_b32 s{sXCD}, s2, 7
    s_lshr_b32 s{sSL}, s2, 3
    s_mov_b32 s{sWS+2}, {WS_SIZE:#x}
    s_mov_b32 s{sWS+3}, 0x00020000
    s_mov_b32 s{sA+3}, 0x00020000
    s_mov_b32 s{sB+3}, 0x00020000
    s_mov_b32 s{sCc+3}, 0x00020000
    s_and_b32 s{sWAVE}, s{sW8}, 3
    s_and_b32 s{sMT32}, s{sXCD}, 1
    s_lshl_b32 s{sMT32}, s{sMT32}, 3
    s_and_b32 s{sTMP}, s{sSL}, 7
    s_add_u32 s{sMT32}, s{sMT32}, s{sTMP}
    s_lshl_b32 s{sMT32}, s{sMT32}, 2
    s_add_u32 s{sMT32}, s{sMT32}, s{sWAVE}
    s_lshr_b32 s{sCOL}, s{sXCD}, 1
    s_lshl_b32 s{sCOL}, s{sCOL}, 2
    s_lshr_b32 s{sTMP}, s{sSL}, 3
    s_add_u32 s{sCOL}, s{sCOL}, s{sTMP}
    s_cmp_lt_u32 s{sW8}, 4
    s_cbranch_scc1 k_comp
    """)
    gen_loader(a)
    gen_attn(a)
    a.label("k_comp")
    gen_comp(a)
    gen_gemm2(a)
    a.label("k_end")
    a("s_endpgm")
    return dict(name=KN, grid=256, block=512, lds=LDS_TOTAL, nvgpr=256, accum=256)

def prog_setup(a, vT):
    a(f"""
    v_and_b32 v{vPR}, 3, v{vLANE}
    v_lshlrev_b32 v{vPR}, 2, v{vPR}
    v_add_u32 v{vPR}, {CTL}, v{vPR}
    s_lshl_b32 s{sTMP}, s{sWAVE}, 2
    s_add_u32 s{sTMP}, s{sTMP}, {CTL}
    v_lshlrev_b32 v{vPW}, 20, v{vLANE}
    v_add_u32 v{vPW}, s{sTMP}, v{vPW}
    """)

def gen_loader(a):
    vXD, vXD2, vWQ, vB1, vT = 7, 8, 3, 13, 14
    sXOFF, sQOFF, sSLW, sMX, sMQ, sBOFF, sONE = sR, sR+1, sR+2, sR+3, sR+4, sR+5, sR+6
    a(f"""
    v_lshrrev_b32 v{vT}, 3, v{vLANE}
    v_lshrrev_b32 v{vT+1}, 4, v{vLANE}
    v_and_b32 v{vT+2}, 7, v{vLANE}
    v_xor_b32 v{vT+2}, v{vT+2}, v{vT+1}
    v_lshlrev_b32 v{vT+2}, 4, v{vT+2}
    s_movk_i32 s{sTMP}, 896
    v_mad_u32_u24 v{vXD}, v{vT}, s{sTMP}, v{vT+2}
    v_xor_b32 v{vXD2}, 64, v{vXD}
    s_mul_i32 s{sXOFF}, s{sMT32}, {32*896}
    s_lshl_b32 s{sMX}, s{sWAVE}, 12
    s_mul_i32 s{sMQ}, s{sWAVE}, 3072
    s_add_u32 s{sMQ}, s{sMQ}, 16384
    s_mul_i32 s{sQOFF}, s{sWAVE}, {16*2688}
    s_mul_i32 s{sTMP}, s{sCOL}, 168
    s_add_u32 s{sQOFF}, s{sQOFF}, s{sTMP}
    s_movk_i32 s{sTMP}, 5462
    s_movk_i32 s{sTMP2}, 2688
    """)
    for i in range(3):
        a(f"""
        v_add_u32 v{vT}, {64*i}, v{vLANE}
        v_mul_u32_u24 v{vT+2}, s{sTMP}, v{vT}
        v_lshrrev_b32 v{vT+2}, 16, v{vT+2}
        v_mul_u32_u24 v{vT+3}, 12, v{vT+2}
        v_sub_u32 v{vT}, v{vT}, v{vT+3}
        v_lshlrev_b32 v{vT}, 4, v{vT}
        v_mad_u32_u24 v{vWQ+i}, v{vT+2}, s{sTMP2}, v{vT}
        """)
    prog_setup(a, vT)
    a(f"""
    s_mov_b32 s{sSLW}, {SL0 + 4*SLOT}
    s_mov_b32 s{sIT}, 0
    s_waitcnt lgkmcnt(0)
    s_barrier
    """)
    set_srd(a, sA, pX, S*D*2)
    set_srd(a, sB, pWQ, D*3*D*2)
    set_srd(a, sCc, pW1, D*DFF*2)
    stamp(a, 1)
    def pre_issue(lbl, depth):
        a(f"""
        s_cmp_lt_u32 s{sIT}, {depth}
        s_cbranch_scc1 {lbl}_go
        s_waitcnt vmcnt({7*(depth-1)})
        s_sub_u32 s{sTMP}, s{sIT}, {depth-1}
        """)
        prog_set(a, vT, LP, f"s{sTMP}")
        a(f"""
        s_cmp_lt_u32 s{sIT}, 5
        s_cbranch_scc1 {lbl}_go
        s_sub_u32 s{sTMP3}, s{sIT}, 4
        """)
        prog_wait(a, vT+1, CP, f"s{sTMP3}")
        a.label(f"{lbl}_go")
    def next_slot():
        a(f"""
        s_add_u32 s{sSLW}, s{sSLW}, {SLOT}
        s_cmp_ge_u32 s{sSLW}, {CTL}
        s_cselect_b32 s{sSLW}, {SL0}, s{sSLW}
        s_add_u32 s{sIT}, s{sIT}, 1
        """)
    DEPTH = int(os.environ.get("LD_DEPTH", "2"))
    a.label("ld_a")
    pre_issue("ld_a", DEPTH)
    a(f"s_add_u32 m0, s{sSLW}, s{sMX}")
    for i in range(4):
        a(f"s_add_u32 s{sTMP}, s{sXOFF}, {8*896*i}")
        a(f"buffer_load_dwordx4 v{vXD if i % 2 == 0 else vXD2}, {sr(sA,4)}, s{sTMP} offen lds")
        if i < 3: a("s_add_u32 m0, m0, 1024")
    a(f"s_add_u32 m0, s{sSLW}, s{sMQ}")
    a(f"s_add_u32 s{sXOFF}, s{sXOFF}, 128")
    for i in range(3):
        a(f"buffer_load_dwordx4 v{vWQ+i}, {sr(sB,4)}, s{sQOFF} offen lds")
        if i < 2:
            a("s_add_u32 m0, m0, 1024")
            a("s_nop 0")
    a(f"s_add_u32 s{sQOFF}, s{sQOFF}, {64*2688}")
    next_slot()
    a(f"""
    s_cmp_lt_u32 s{sIT}, 7
    s_cbranch_scc1 ld_a
    """)
    stamp(a, 2)
    for k in range(DEPTH - 1, -1, -1):
        a(f"s_waitcnt vmcnt({7*k})")
        prog_set(a, vT, LP, 7 - k)
        if k == DEPTH - 1:
            a(f"""
            v_lshrrev_b32 v{vT+1}, 4, v{vLANE}
            v_lshlrev_b32 v{vT+3}, 2, v{vT+1}
            v_and_b32 v{vT+2}, 15, v{vLANE}
            v_xor_b32 v{vT+2}, v{vT+2}, v{vT+3}
            v_lshlrev_b32 v{vT+3}, 4, v{vT+2}
            s_movk_i32 s{sTMP}, 3584
            v_mad_u32_u24 v{vB1}, v{vT+1}, s{sTMP}, v{vT+3}
            s_lshr_b32 s{sTMP}, s{sCOL}, 1
            s_mul_i32 s{sBOFF}, s{sTMP}, 448
            s_and_b32 s{sTMP}, s{sCOL}, 1
            s_mul_i32 s{sTMP}, s{sTMP}, 192
            s_add_u32 s{sBOFF}, s{sBOFF}, s{sTMP}
            s_mul_i32 s{sTMP}, s{sWAVE}, {28*3584}
            s_add_u32 s{sBOFF}, s{sBOFF}, s{sTMP}
            s_mul_i32 s{sMX}, s{sWAVE}, 7168
            """)
    stamp(a, 3)
    a.label("ld_b")
    BEARLY = int(os.environ.get("BEARLY", "2"))
    a(f"s_sub_u32 s{sTMP3}, s{sIT}, 4")
    a(f"s_cmp_eq_u32 s{sIT}, {7 + BEARLY}")
    a(f"s_cselect_b32 s{sTMP3}, 9, s{sTMP3}")
    a(f"s_cbranch_scc0 ld_b_w")
    a(f"s_waitcnt vmcnt({7*(BEARLY-1)})")
    prog_set(a, vT, LP, 8)
    a.label("ld_b_w")
    prog_wait(a, vT+1, CP, f"s{sTMP3}")
    a(f"""
    s_add_u32 m0, s{sSLW}, s{sMX}
    s_mov_b32 s{sTMP}, s{sBOFF}
    """)
    for i in range(7):
        a(f"buffer_load_dwordx4 v{vB1}, {sr(sCc,4)}, s{sTMP} offen lds")
        if i < 6:
            a("s_add_u32 m0, m0, 1024")
            a(f"s_add_u32 s{sTMP}, s{sTMP}, {4*3584}")
    a(f"s_add_u32 s{sBOFF}, s{sBOFF}, {112*3584}")
    next_slot()
    a(f"""
    s_cmp_lt_u32 s{sIT}, 11
    s_cbranch_scc1 ld_b
    """)
    stamp(a, 4)
    for k in range(2, -1, -1):
        a(f"s_waitcnt vmcnt({7*k})")
        prog_set(a, vT, LP, 11 - k)
    stamp(a, 5)
    if STOP == 1:
        stamp_flush(a, 0, sWS, sW8, 20, wpw=8)
        a("s_endpgm")

def gen_comp(a):
    vHH, vHHI, vMASK, vCONST, vXR, vXRC = 3, 4, 5, 6, 7, 8
    vNM, vA, vRSTD = 12, 14, 16
    vTB = 17
    vTC = 21
    vS0 = 25
    vCP = 33
    vCSR, vT1 = 35, 13
    vPG = 15
    vZ = 36
    vFR = [40, 60]
    vACC = 80
    vXB = 144
    sDST, sSCL, sCSO = sR, sR+4, sR+8
    sRELU, sPASS, sSLOT, sONE, sIDX, sFLG = sR+12, sR+13, sR+14, sR+15, sR+16, sR+17
    a("""
    s_waitcnt lgkmcnt(0)
    s_barrier
    """)
    stamp(a, 1)
    a(f"""
    v_lshrrev_b32 v{vHH}, 5, v{vLANE}
    v_bfe_u32 v{vS0+1}, v{vLANE}, 2, 2
    v_bfe_u32 v{vS0+2}, v{vLANE}, 4, 1
    v_and_b32 v{vS0+3}, 3, v{vLANE}
    v_lshlrev_b32 v{vS0+2}, 5, v{vS0+2}
    v_lshl_add_u32 v{vS0+2}, v{vS0+3}, 3, v{vS0+2}
    v_lshl_add_u32 v{vS0+4}, v{vHH}, 3, v{vS0+1}
    s_movk_i32 s{sTMP}, 192
    v_mad_u32_u24 v{vS0+5}, v{vS0+4}, s{sTMP}, v{vS0+2}
    v_add_u32 v{vS0+5}, 16384, v{vS0+5}
    v_mov_b32 v{vZ}, 0
    v_mov_b32 v{vZ+1}, 0
    v_mov_b32 v{vZ+2}, 0
    v_mov_b32 v{vZ+3}, 0
    s_cmp_eq_u32 s{sWAVE}, 3
    s_cselect_b32 s{sTMP2}, 0, s{sWAVE}
    """)
    set_srd(a, sCc, pDBG, 256)
    a(f"""
    s_or_b32 s{sTMP}, s2, s{sWAVE}
    s_cmp_lg_u32 s{sTMP}, 0
    s_cbranch_scc1 c_notag
    s_memrealtime s[{sTAG}:{sTAG+1}]
    s_waitcnt lgkmcnt(0)
    s_or_b32 s{sTAG}, s{sTAG}, 1
    v_mov_b32 v{vTB+1}, s{sTAG}
    v_mov_b32 v{vTB+2}, s{sTAG+1}
    s_mov_b64 exec, 1
    buffer_store_dwordx2 {vr(vTB+1,2)}, v{vZ}, {sr(sCc,4)}, 0 offen sc1
    s_mov_b64 exec, -1
    s_nop 1
    """)
    a.label("c_notag")
    for j in range(3):
        a(f"""
        s_mov_b32 s{sCSO+j}, s{sTMP2}
        s_mul_i32 s{sTMP}, s{sTMP2}, 56
        v_add_u32 v{vTB+j}, s{sTMP}, v{vS0+5}
        s_add_u32 s{sTMP2}, s{sTMP2}, 1
        s_cmp_eq_u32 s{sTMP2}, 3
        s_cselect_b32 s{sTMP2}, 0, s{sTMP2}
        """)
    prog_setup(a, vS0)
    a(f"""
    s_mov_b32 s{sCSO+3}, 3
    v_and_b32 v{vS0+5}, 31, v{vLANE}
    v_bfe_u32 v{vS0+6}, v{vLANE}, 1, 3
    v_xor_b32 v{vS0+6}, v{vS0+6}, v{vHH}
    v_lshlrev_b32 v{vS0+6}, 4, v{vS0+6}
    v_lshl_add_u32 v{vXR}, v{vS0+5}, 7, v{vS0+6}
    s_lshl_b32 s{sTMP}, s{sWAVE}, 12
    v_add_u32 v{vXR}, s{sTMP}, v{vXR}
    v_lshlrev_b32 v{vCSR}, 4, v{vHH}
    v_add_u32 v{vCSR}, {CSA}, v{vCSR}
    v_lshlrev_b32 v{vT1}, 8, v{vS0+4}
    v_add_u32 v{vT1}, v{vT1}, v{vS0+2}
    v_lshlrev_b32 v{vS0+7}, 6, v{vS0+1}
    v_or_b32 v{vT1}, v{vT1}, v{vS0+7}
    v_sub_u32 v{vHHI}, v{vHH}, 1
    v_sub_u32 v{vHH}, 0, v{vHH}
    v_mov_b32 v{vMASK}, v{vHHI}
    v_and_b32 v{vCONST}, 0x3f80, v{vHH}
    s_mov_b32 s{sRELU}, 0x80008000
    s_mov_b32 s{sONE}, 0x3f803f80
    s_mov_b32 s{sPASS}, 0
    s_mov_b32 s{sDST}, {OOB:#x}
    s_mov_b32 s{sDST+1}, {OOB:#x}
    s_mov_b32 s{sDST+2}, {OOB:#x}
    s_mov_b32 s{sDST+3}, {OOB:#x}
    """)
    a.label("c_epi")
    vCS2 = [vFR[0], vFR[0] + 16]
    def cs_read(j):
        a(f"s_lshl_b32 s{sTMP}, s{sCSO+j}, 7")
        a(f"v_add_u32 v{vXRC}, s{sTMP}, v{vCSR}")
        for g in range(4):
            a(f"ds_read_b128 {vr(vCS2[j%2]+4*g,4)}, v{vXRC} offset:{32*g}")
    cs_read(0)
    for j in range(4):
        acc = vACC + 16*j
        cs = vCS2[j % 2]
        a(f"v_mul_f32 v{vA}, s{sSCL+j}, v{vRSTD}")
        if j < 3:
            cs_read(j + 1)
            a("s_waitcnt lgkmcnt(4)")
        else:
            a("s_waitcnt lgkmcnt(0)")
        for i in range(0, 16, 2):
            a(f"v_pk_fma_f32 {vr(acc+i,2)}, {vr(cs+i,2)}, {vr(vNM,2)}, {vr(acc+i,2)} op_sel_hi:[1,0,1]")
        for i in range(0, 16, 2):
            a(f"v_pk_mul_f32 {vr(acc+i,2)}, {vr(acc+i,2)}, {vr(vA,2)} op_sel_hi:[1,0]")
        for i in range(8):
            a(f"v_cvt_pk_bf16_f32 v{acc+i}, v{acc+2*i}, v{acc+2*i+1}")
        for i in range(8):
            a(f"v_pk_max_i16 v{acc+i}, v{acc+i}, s{sRELU}")
            if i == 5:
                a(f"buffer_store_dwordx4 {vr(acc,4)}, v{vL16}, {sr(sWS,4)}, s{sDST+j} offen sc1")
        a(f"v_and_or_b32 v{acc+6}, v{acc+6}, v{vMASK}, v{vCONST}")
        a(f"v_and_b32 v{acc+7}, v{acc+7}, v{vMASK}")
        a(f"buffer_store_dwordx4 {vr(acc+4,4)}, v{vL16}, {sr(sWS,4)}, s{sDST+j} offen offset:1024 sc1")
        if j == 2:
            a(f"s_cmp_eq_u32 s{sPASS}, 1")
            a("s_cbranch_scc1 c_epi_end")
    a.label("c_epi_end")
    a("s_nop 1")
    for j in range(4):
        a(f"v_mfma_f32_32x32x16_bf16 {vr(vACC+16*j,16)}, {vr(vZ,4)}, {vr(vZ,4)}, 0")
    a(f"""
    s_cmp_eq_u32 s{sPASS}, 1
    s_cbranch_scc1 c_passb
    s_cmp_eq_u32 s{sPASS}, 2
    s_cbranch_scc1 c_done
    """)
    stamp(a, 2)
    lg = LgkmTracker(a)
    for i in range(8):
        a(f"v_mov_b32 v{vS0+i}, 0")
    a(f"""
    v_mov_b32 v{vCP}, 0
    v_mov_b32 v{vCP+1}, 0
    s_mov_b32 s{sIT}, 1
    s_mov_b32 s{sSLOT}, {SL0 + 4*SLOT}
    s_mov_b32 s{sIDX}, 0
    """)
    prog_wait(a, vPG, LP, 1)
    stamp(a, 3)
    vTN = vTB + 3
    def set_addrs():
        for j in range(3):
            a(f"v_add_u32 v{vTC+j}, s{sSLOT}, v{vTB+j}")
        a(f"v_add_u32 v{vXRC}, s{sSLOT}, v{vXR}")
    def rdW(q, j):
        f = vFR[q % 2]
        for p in range(2):
            a(f"ds_read_b64_tr_b16 {vr(f+4*j+2*p,2)}, v{vTC+j} offset:{(16*q+4*p)*192}")
            lg.issue(("w", q % 2, j))
    def rdX(q):
        f = vFR[q % 2]
        if q == 0:
            a(f"ds_read_b128 {vr(f+16,4)}, v{vXRC}")
        else:
            a(f"v_xor_b32 v{vTN}, {32*q}, v{vXRC}")
            a(f"ds_read_b128 {vr(f+16,4)}, v{vTN}")
        lg.issue(("x", q % 2))
    set_addrs()
    for q in range(2):
        rdW(q, 0); rdW(q, 1); rdW(q, 2); rdX(q)
    entry_q = list(lg.q)
    a.raw(".p2align 6")
    a.label("c_loopa")
    for q in range(4):
        st = q % 2; f = vFR[st]; qn = (q + 2) % 4
        lg.need(("x", st))
        for i in range(4):
            a(f"v_dot2c_f32_bf16 v{vCP+(i&1)}, s{sONE}, v{f+i}")
            a(f"v_dot2c_f32_bf16 v{vS0+i}, s{sONE}, v{f+16+i}")
            a(f"v_dot2c_f32_bf16 v{vS0+4+i}, v{f+16+i}, v{f+16+i}")
        a(f"v_mfma_f32_32x32x16_bf16 {vr(vACC,16)}, {vr(f,4)}, {vr(f+16,4)}, {vr(vACC,16)}")
        if q == 2:
            a(f"""
            v_cmp_ge_u32 vcc, s{sIT}, v{vPG}
            s_add_u32 s{sSLOT}, s{sSLOT}, {SLOT}
            s_cmp_ge_u32 s{sSLOT}, {CTL}
            s_cselect_b32 s{sSLOT}, {SL0}, s{sSLOT}
            s_cbranch_vccnz c_la_slow
            """)
            a.label("c_la_back")
            a(f"v_add_u32 v{vTC}, s{sSLOT}, v{vTB}")
        if q == 3:
            prog_set(a, vTC+3, CP, f"s{sIT}")
            lg.issue(("pw",))
        rdW(qn, 0)
        if q == 2: a(f"v_add_u32 v{vTC+1}, s{sSLOT}, v{vTB+1}")
        a(f"v_mfma_f32_32x32x16_bf16 {vr(vACC+16,16)}, {vr(f+4,4)}, {vr(f+16,4)}, {vr(vACC+16,16)}")
        rdW(qn, 1)
        if q == 2:
            a(f"v_add_u32 v{vTC+2}, s{sSLOT}, v{vTB+2}")
            a(f"v_add_u32 v{vXRC}, s{sSLOT}, v{vXR}")
        if q == 0:
            a(f"ds_read_b32 v{vPG}, v{vPR} offset:{LP - CTL}")
            lg.issue(("pg",))
        a(f"v_mfma_f32_32x32x16_bf16 {vr(vACC+32,16)}, {vr(f+8,4)}, {vr(f+16,4)}, {vr(vACC+32,16)}")
        rdW(qn, 2)
        a(f"s_set_gpr_idx_on s{sIDX}, gpr_idx(DST)")
        for i in range(4):
            a(f"v_mov_b32 v{vXB+4*q+i}, v{f+16+i}")
        a("s_set_gpr_idx_off")
        rdX(qn)
    q2 = [t for t in lg.q if t != ("pw",)]
    assert q2 == entry_q, (lg.q, entry_q)
    a(f"""
    s_add_u32 s{sIDX}, s{sIDX}, 16
    s_add_u32 s{sIT}, s{sIT}, 1
    s_cmp_lt_u32 s{sIT}, 8
    s_cbranch_scc1 c_loopa
    """)
    stamp(a, 4)
    a(f"buffer_load_dwordx2 {vr(vTB+1,2)}, v{vZ}, {sr(sCc,4)}, 0 offen sc1")
    a(f"""
    v_add_f32 v{vCP}, v{vCP}, v{vCP+1}
    v_add_f32 v{vS0}, v{vS0}, v{vS0+1}
    v_add_f32 v{vS0+2}, v{vS0+2}, v{vS0+3}
    v_mov_b32 v{vCP+1}, v{vCP}
    v_add_f32 v{vS0+4}, v{vS0+4}, v{vS0+5}
    v_add_f32 v{vS0+6}, v{vS0+6}, v{vS0+7}
    v_permlane32_swap_b32 v{vCP}, v{vCP+1}
    v_add_f32 v{vS0}, v{vS0}, v{vS0+2}
    v_add_f32 v{vS0+4}, v{vS0+4}, v{vS0+6}
    s_lshl_b32 s{sTMP}, s{sCSO}, 7
    v_and_b32 v{vS0+2}, 31, v{vLANE}
    v_lshlrev_b32 v{vS0+2}, 2, v{vS0+2}
    v_add_u32 v{vS0+2}, s{sTMP}, v{vS0+2}
    v_add_f32 v{vCP}, v{vCP}, v{vCP+1}
    v_add_u32 v{vS0+2}, {CSA}, v{vS0+2}
    v_mov_b32 v{vS0+1}, v{vS0}
    v_mov_b32 v{vS0+5}, v{vS0+4}
    ds_write_b32 v{vS0+2}, v{vCP}
    v_mov_b32 v{vS0+3}, 8
    ds_write_b32 v{vPW}, v{vS0+3} offset:{CP - CTL}
    v_permlane32_swap_b32 v{vS0}, v{vS0+1}
    v_permlane32_swap_b32 v{vS0+4}, v{vS0+5}
    s_mul_i32 s{sTMP2}, s{sCOL}, 3
    v_add_f32 v{vS0}, v{vS0}, v{vS0+1}
    v_add_f32 v{vS0+4}, v{vS0+4}, v{vS0+5}
    v_mul_f32 v{vNM}, {f32bits(-1.0/D):#x}, v{vS0}
    v_mul_f32 v{vS0+4}, {f32bits(1.0/D):#x}, v{vS0+4}
    v_fma_f32 v{vS0+4}, -v{vNM}, v{vNM}, v{vS0+4}
    v_max_f32 v{vS0+4}, 0, v{vS0+4}
    v_add_f32 v{vS0+4}, {f32bits(1e-5):#x}, v{vS0+4}
    v_rsq_f32 v{vRSTD}, v{vS0+4}
    """)
    for j in range(3):
        a(f"""
        s_add_u32 s{sTMP}, s{sTMP2}, s{sCSO+j}
        s_cmp_lt_u32 s{sTMP}, 16
        s_cselect_b32 s{sSCL+j}, {f32bits(QSCALE):#x}, 1.0
        s_lshl_b32 s{sTMP}, s{sTMP}, 6
        s_add_u32 s{sTMP}, s{sTMP}, s{sMT32}
        s_lshl_b32 s{sDST+j}, s{sTMP}, 11
        """)
    a(f"s_mov_b32 s{sPASS}, 1")
    prog_wait(a, vPG, CP, 8)
    a("s_branch c_epi")
    a.label("c_la_slow")
    a(f"""
    s_cmp_eq_u32 s{sIT}, 7
    s_cbranch_scc1 c_la_back
    s_add_u32 s{sTMP3}, s{sIT}, 1
    """)
    prog_wait(a, vPG, LP, f"s{sTMP3}")
    a("s_branch c_la_back")
    a.label("c_passb")
    prog_set(a, vS0, CP, 9)
    stamp(a, 5)
    a(f"s_lshl_b32 s{sTMP}, s{sWAVE}, 6")
    a(f"v_xor_b32 v{vT1}, s{sTMP}, v{vT1}")
    for b in range(4):
        a(f"v_xor_b32 v{vTC+b}, {b << 6}, v{vT1}")
        a(f"v_add_u32 v{vTC+b}, {WB}, v{vTC+b}")
        a(f"v_mov_b32 v{vS0+4+b}, 0")
    prog_wait(a, vPG, LP, 8)
    stamp(a, 7)
    lgb = LgkmTracker(a)
    def rdB(step, b):
        f = vFR[step % 2]
        for p in range(2):
            a(f"ds_read_b64_tr_b16 {vr(f+4*b+2*p,2)}, v{vTC+b} offset:{4096*step + 1024*p}")
            lgb.issue((step % 2, b))
    def fetchx(step, i0):
        f = vFR[step % 2]
        a(f"s_set_gpr_idx_on s{sIDX}, gpr_idx(SRC0)")
        for i in range(i0, i0 + 2):
            a(f"v_mov_b32 v{f+16+i}, v{vXB+4*(step%4)+i}")
        a("s_set_gpr_idx_off")
    a(f"""
    s_mov_b32 s{sIT}, 0
    s_mov_b32 s{sIDX}, 0
    """)
    for b in range(4): rdB(0, b)
    a("s_waitcnt lgkmcnt(4)")
    for b in range(4): rdB(1, b)
    fetchx(0, 0); fetchx(0, 2)
    entry_b = list(lgb.q)
    a.raw(".p2align 6")
    a.label("c_loopb")
    a(f"""
    s_bitcmp1_b32 {(1<<1)|(1<<2)|(1<<3)|(1<<4):#x}, s{sIT}
    s_cbranch_scc1 c_lb_rare
    """)
    a.label("c_lb_go")
    for k in range(4):
        f = vFR[k % 2]
        for b in range(4):
            if b % 2 == 0:
                a("s_waitcnt lgkmcnt(11)")
            if b == 0:
                for i in range(4):
                    a(f"v_dot2c_f32_bf16 v{vS0+4+i}, s{sONE}, v{f+i}")
            a(f"v_mfma_f32_32x32x16_bf16 {vr(vACC+16*b,16)}, {vr(f+4*b,4)}, {vr(f+16,4)}, {vr(vACC+16*b,16)}")
            rdB(k + 2, b)
            if k == 2 and b == 3:
                a(f"s_add_u32 s{sIDX}, s{sIDX}, 16")
                a(f"s_min_u32 s{sIDX}, s{sIDX}, 96")
            if b == 0: fetchx(k + 1, 0)
            if b == 2: fetchx(k + 1, 2)
            if k == 3:
                a(f"v_add_u32 v{vTC+b}, 16384, v{vTC+b}")
    a(f"""
    s_add_u32 s{sIT}, s{sIT}, 1
    s_cmp_lt_u32 s{sIT}, 7
    s_cbranch_scc1 c_loopb
    s_waitcnt lgkmcnt(0)
    """)
    stamp(a, 6)
    a(f"""
    v_add_f32 v{vS0+4}, v{vS0+4}, v{vS0+5}
    v_add_f32 v{vS0+6}, v{vS0+6}, v{vS0+7}
    v_and_b32 v{vS0+2}, 31, v{vLANE}
    v_add_f32 v{vS0+4}, v{vS0+4}, v{vS0+6}
    v_lshlrev_b32 v{vS0+2}, 2, v{vS0+2}
    v_mov_b32 v{vS0+5}, v{vS0+4}
    s_lshl_b32 s{sTMP}, s{sWAVE}, 7
    s_add_u32 s{sTMP}, s{sTMP}, {CSB_}
    v_permlane32_swap_b32 v{vS0+4}, v{vS0+5}
    v_add_u32 v{vS0+2}, s{sTMP}, v{vS0+2}
    s_nop 0
    v_add_f32 v{vS0+4}, v{vS0+4}, v{vS0+5}
    ds_write_b32 v{vS0+2}, v{vS0+4}
    """)
    prog_set(a, vS0, CP, 11)
    a(f"""
    s_lshr_b32 s{sTMP}, s{sCOL}, 1
    s_mul_i32 s{sTMP}, s{sTMP}, 7
    s_and_b32 s{sTMP2}, s{sCOL}, 1
    s_mul_i32 s{sTMP2}, s{sTMP2}, 3
    s_add_u32 s{sTMP}, s{sTMP}, s{sTMP2}
    s_mul_i32 s{sTMP2}, s{sMT32}, 72
    s_add_u32 s{sTMP}, s{sTMP}, s{sTMP2}
    s_lshl_b32 s{sTMP}, s{sTMP}, 11
    s_add_u32 s{sTMP}, s{sTMP}, {HF_OFF}
    s_mov_b32 s{sRELU}, 0
    v_mov_b32 v{vMASK}, -1
    v_mov_b32 v{vCONST}, 0
    s_mov_b32 s{sPASS}, 2
    """)
    for j in range(4):
        a(f"""
        s_mov_b32 s{sSCL+j}, 1.0
        s_xor_b32 s{sTMP2}, s{sWAVE}, {j}
        s_add_u32 s{sCSO+j}, s{sTMP2}, 4
        s_lshl_b32 s{sTMP2}, s{sTMP2}, 11
        s_add_u32 s{sDST+j}, s{sTMP}, s{sTMP2}
        """)
    prog_wait(a, vPG, CP, 11)
    stamp(a, 11)
    a("s_branch c_epi")
    a.label("c_lb_rare")
    a(f"""
    s_cmp_lg_u32 s{sIT}, 2
    s_cbranch_scc1 c_lb_r0
    """)
    prog_set(a, vS0, CP, 10)
    a("s_waitcnt lgkmcnt(0)")
    a("s_branch c_lb_go")
    a.label("c_lb_r0")
    a(f"""
    s_add_u32 s{sTMP3}, s{sIT}, 7
    s_cmp_lg_u32 s{sIT}, 1
    s_cbranch_scc1 c_lb_r1
    """)
    stamp(a, 8)
    a(f"""
    s_waitcnt vmcnt(0)
    v_readfirstlane_b32 s{sTAG}, v{vTB+1}
    v_readfirstlane_b32 s{sTAG+1}, v{vTB+2}
    s_cmp_lg_u32 s{sTAG}, 0
    s_cbranch_scc1 c_lb_tag
    """)
    get_tag(a, vS0, vS0+1)
    a.label("c_lb_tag")
    stamp(a, 9)
    a(f"""
    s_lshl_b32 s{sTMP}, s{sCOL}, 6
    s_add_u32 s{sTMP}, s{sTMP}, s{sMT32}
    s_lshl_b32 s{sTMP}, s{sTMP}, 3
    s_add_u32 s{sTMP}, s{sTMP}, {F1_OFF}
    s_mov_b32 s{sTMP3}, 9
    """)
    publish_flag(a, vS0, vS0+1, sTMP)
    a.label("c_lb_r1")
    prog_wait(a, vPG, LP, f"s{sTMP3}")
    stamp(a, 10)
    a("s_branch c_lb_go")
    a.label("c_done")
    stamp(a, 12)
    a(f"""
    s_lshl_b32 s{sTMP}, s{sMT32}, 4
    s_add_u32 s{sTMP}, s{sTMP}, s{sCOL}
    s_lshl_b32 s{sTMP}, s{sTMP}, 3
    s_add_u32 s{sTMP}, s{sTMP}, {F2_OFF}
    s_waitcnt vmcnt(0)
    """)
    publish_flag(a, vS0, vS0+1, sTMP)
    if STOP == 1:
        stamp_flush(a, 0, sWS, sW8, 20, wpw=8)
        a("s_endpgm")

def gen_attn(a):
    a("s_endpgm")
def gen_gemm2(a):
    a("s_endpgm")

def build():
    hdr = open("cdna_kernels/" + NAME + ".s.ref").read().split("\n")
    out = [l for l in hdr if l.startswith(";") and "@launch" not in l]
    body = Asm()
    body.raw(".p2align 8")
    d = gen(body)
    out.append(f"; @launch grid=({d['grid']},1,1) block=({d['block']},1,1) lds={d['lds']}")
    out.append('.amdgcn_target "amdgcn-amd-amdhsa--gfx950"')
    out.append(".text")
    out.append(f".globl {d['name']}")
    out.append(f".type {d['name']},@function")
    txt = "\n".join(out) + "\n" + body.text()
    txt += '.section .rodata,"a"\n.p2align 6\n' + kernel_desc(d['name'], d['nvgpr'], d['accum'])
    return txt

if __name__ == "__main__":
    import mega2
    gen_attn = mega2.gen_attn; gen_gemm2 = mega2.gen_gemm2
    txt = build()
    path = sys.argv[1] if len(sys.argv) > 1 else "cdna_kernels/" + NAME + ".s"
    open(path, "w").write(txt)
    print("wrote", path, len(txt))
```

```python
class Asm:
    def __init__(self):
        self.lines = []
        self.nlabel = 0
    def __call__(self, s):
        for l in s.strip("\n").split("\n"):
            self.lines.append("  " + l.strip())
    def label(self, name):
        self.lines.append(name + ":")
    def newlabel(self, base="L"):
        self.nlabel += 1
        return f"{base}_{self.nlabel}"
    def raw(self, s):
        self.lines.append(s)
    def comment(self, s):
        self.lines.append("  ; " + s)
    def text(self):
        return "\n".join(self.lines) + "\n"

def vr(base, n):
    return f"v[{base}:{base+n-1}]"
def ar(base, n):
    return f"a[{base}:{base+n-1}]"
def sr(base, n):
    return f"s[{base}:{base+n-1}]"

def kernel_desc(name, nvgpr, accum, nsgpr=100):
    return f""".amdhsa_kernel {name}
  .amdhsa_next_free_vgpr {nvgpr}
  .amdhsa_next_free_sgpr {nsgpr}
  .amdhsa_accum_offset {accum}
  .amdhsa_group_segment_fixed_size 0
  .amdhsa_kernarg_size 72
  .amdhsa_user_sgpr_count 2
  .amdhsa_user_sgpr_kernarg_segment_ptr 1
  .amdhsa_system_sgpr_workgroup_id_x 1
.end_amdhsa_kernel
"""

import os
STAMP = bool(int(os.environ.get("STAMP", "0")))
ST_OFF = 64 << 20
VST = 11
def stamp(a, idx, sref=80):
    if not STAMP: return
    if idx == 0: a(f"v_mov_b32 v{VST}, 0")
    a(f"""
    s_memtime s[96:97]
    s_memrealtime s[98:99]
    s_waitcnt lgkmcnt(0)
    v_writelane_b32 v{VST}, s96, {2*idx}
    v_writelane_b32 v{VST}, s98, {2*idx+1}
    """)
def stamp_flush(a, kidx, sWS, sWAVE, vtmp, sref=80, n=32, wpw=4):
    if not STAMP: return
    a(f"s_waitcnt vmcnt(0)")
    stamp(a, n-1, sref)
    a(f"""
    v_mbcnt_lo_u32_b32 v{vtmp+1}, -1, 0
    v_mbcnt_hi_u32_b32 v{vtmp+1}, -1, v{vtmp+1}
    v_lshlrev_b32 v{vtmp+1}, 2, v{vtmp+1}
    s_mul_i32 s96, s2, {wpw}
    s_add_u32 s96, s96, s{sWAVE}
    s_lshl_b32 s96, s96, 8
    s_add_u32 s96, s96, {ST_OFF + kidx*(1<<20)}
    buffer_store_dword v{VST}, v{vtmp+1}, s[{sWS}:{sWS+3}], s96 offen
    """)

def stamp_dyn(a, base, sIdx):
    if not STAMP: return
    a(f"""
    s_memtime s[96:97]
    s_memrealtime s[98:99]
    s_lshl_b32 s95, s{sIdx}, 1
    s_add_u32 m0, s95, {2*base}
    s_waitcnt lgkmcnt(0)
    v_writelane_b32 v{VST}, s96, m0
    s_add_u32 m0, m0, 1
    s_nop 0
    v_writelane_b32 v{VST}, s98, m0
    """)
```

```python
import sys, math, struct, os
from asmlib import *

NAME = "parallel_sum__mha_block__dense_activation_relu__prompt"
S, D, H, DH, DFF = 2048, 448, 16, 28, 1792
QF_OFF = 0
KF_OFF = 2 << 20
VF_OFF = 4 << 20
HF_OFF = 7 << 20
FL_OFF = 17 << 20
F1_OFF, F2_OFF, F3_OFF = FL_OFF, FL_OFF + 8192, FL_OFF + 16384
WS_SIZE = 0x10000000
OOB = 0x40000000
BIAS = 80.0
SPIN_G = 1 << 14
SPIN_L = 1 << 20
def env(k, d): return int(os.environ.get(k, str(d)))
DRY = env("DRY", 1)

def f32bits(x): return struct.unpack("<I", struct.pack("<f", x))[0]
QSCALE = math.log2(math.e) / math.sqrt(DH)

class LgkmTracker:
    def __init__(self, a): self.a = a; self.q = []
    def issue(self, tag): self.q.append(tag)
    def need(self, tag):
        if tag in self.q:
            idx = len(self.q) - 1 - self.q[::-1].index(tag)
            n = min(len(self.q) - 1 - idx, 13)
            self.a(f"s_waitcnt lgkmcnt({n})")
            self.q = self.q[len(self.q) - n:] if n > 0 else []

SLOT = 28672
SL0 = 12288
WB = SL0 + SLOT
ATT0 = 0
GR0 = 90112
CTL = SL0 + 5*SLOT
CSA, CSB_, STA = CTL + 4096, CTL + 4608, CTL + 5120
LP, CP, AP, SP = CTL + 6144, CTL + 6160, CTL + 6176, CTL + 6192
LDS_TOTAL = 163840

pX, pWQ, pWO, pW1, pW2, pOUT, pDBG = 4, 6, 8, 12, 14, 16, 18
sWS, sA, sB, sCc = 20, 24, 28, 32
sXCD, sSL, sW8, sWAVE, sMT32, sCOL, sTMP, sTMP2, sTMP3, sIT = 36, 37, 38, 39, 40, 41, 42, 43, 44, 45
sR = 46
sTAG, sSPIN, sRET = 76, 78, 90
vLANE, vL16, vPW, vPR, vF0 = 1, 2, 9, 10, 0

def dry_end(a):
    if DRY: a("s_cbranch_execz dry_ret")
def dry_call(a, label):
    a(f"s_call_b64 s[{sRET}:{sRET+1}], {label}")
def dry_by_wave(a, plans, name):
    if not DRY: return
    a("s_mov_b64 exec, 0")
    for w in range(4):
        if w < 3:
            a(f"s_cmp_lg_u32 s{sWAVE}, {w}")
            a(f"s_cbranch_scc1 {name}_{w+1}")
        for lbl in plans[w]:
            dry_call(a, lbl)
        if w < 3:
            a(f"s_branch {name}_end")
            a.label(f"{name}_{w+1}")
    a.label(f"{name}_end")
    a("s_mov_b64 exec, -1")

def prog_wait(a, vD, base, target, sleep=1):
    lp = a.newlabel("lw"); dn = a.newlabel("lwd")
    a(f"s_mov_b32 s{sSPIN}, {SPIN_L}")
    a.label(lp)
    a(f"""
    ds_read_b32 v{vD}, v{vPR} offset:{base - CTL}
    s_waitcnt lgkmcnt(0)
    v_cmp_gt_u32 vcc, {target}, v{vD}
    s_cbranch_vccz {dn}
    s_sleep {sleep}
    s_sub_u32 s{sSPIN}, s{sSPIN}, 1
    s_cbranch_scc0 {lp}
    """)
    a.label(dn)
def prog_set(a, vD, base, val):
    a(f"v_mov_b32 v{vD}, {val}")
    a(f"ds_write_b32 v{vPW}, v{vD} offset:{base - CTL}")
def get_tag(a, vD):
    lp = a.newlabel("tg"); dn = a.newlabel("tgd")
    a(f"s_mov_b32 s{sSPIN}, {SPIN_G}")
    a.label(lp)
    a(f"""
    buffer_load_dwordx2 {vr(vD,2)}, v{vF0}, {sr(sCc,4)}, 0 offen sc1
    s_waitcnt vmcnt(0)
    v_readfirstlane_b32 s{sTAG}, v{vD}
    v_readfirstlane_b32 s{sTAG+1}, v{vD+1}
    s_cbranch_execz {dn}
    s_cmp_lg_u32 s{sTAG}, 0
    s_cbranch_scc1 {dn}
    s_sub_u32 s{sSPIN}, s{sSPIN}, 1
    s_cbranch_scc0 {lp}
    """)
    a.label(dn)
def poll_flags(a, vFA, vD):
    lp = a.newlabel("pf"); dn = a.newlabel("pfd")
    a(f"s_mov_b32 s{sSPIN}, {SPIN_G}")
    a.label(lp)
    a(f"""
    buffer_load_dwordx2 {vr(vD,2)}, v{vFA}, {sr(sWS,4)}, 0 offen sc1
    s_waitcnt vmcnt(0)
    v_cmp_ne_u64 vcc, {sr(sTAG,2)}, {vr(vD,2)}
    s_cbranch_vccz {dn}
    s_sleep 1
    s_sub_u32 s{sSPIN}, s{sSPIN}, 1
    s_cbranch_scc0 {lp}
    """)
    a.label(dn)
def publish_flag(a, vD, sOFF):
    a(f"""
    v_mov_b32 v{vD}, s{sTAG}
    v_mov_b32 v{vD+1}, s{sTAG+1}
    buffer_store_dwordx2 {vr(vD,2)}, v{vF0}, {sr(sWS,4)}, s{sOFF} offen sc1
    """)
def set_srd(a, srd, ptr, size):
    a(f"""
    s_mov_b32 s{srd}, s{ptr}
    s_mov_b32 s{srd+1}, s{ptr+1}
    s_mov_b32 s{srd+2}, {size}
    """)

def gen(a):
    KN = NAME + "_kernel"
    a.label(KN)
    a(f"""
    s_cmp_ge_u32 s2, 256
    s_cbranch_scc1 k_end
    """)
    stamp(a, 0)
    a(f"""
    s_load_dwordx4 s[4:7], s[0:1], 0
    s_load_dwordx2 s[8:9], s[0:1], 16
    s_load_dwordx8 s[12:19], s[0:1], 32
    s_load_dwordx2 s[{sWS}:{sWS+1}], s[0:1], 64
    v_lshlrev_b32 v7, 3, v0
    v_add_u32 v7, {CTL + 4096}, v7
    v_mov_b32 v4, 0
    v_mov_b32 v5, 0
    ds_write_b64 v7, v[4:5]
    v_and_b32 v{vLANE}, 63, v0
    v_lshrrev_b32 v7, 6, v0
    v_lshlrev_b32 v{vL16}, 4, v{vLANE}
    v_readfirstlane_b32 s{sW8}, v7
    s_and_b32 s{sXCD}, s2, 7
    s_lshr_b32 s{sSL}, s2, 3
    s_mov_b32 s{sWS+2}, {WS_SIZE:#x}
    s_mov_b32 s{sWS+3}, 0x00020000
    s_mov_b32 s{sA+3}, 0x00020000
    s_mov_b32 s{sB+3}, 0x00020000
    s_mov_b32 s{sCc+3}, 0x00020000
    s_and_b32 s{sWAVE}, s{sW8}, 3
    s_and_b32 s{sMT32}, s{sXCD}, 1
    s_lshl_b32 s{sMT32}, s{sMT32}, 3
    s_and_b32 s{sTMP}, s{sSL}, 7
    s_add_u32 s{sMT32}, s{sMT32}, s{sTMP}
    s_lshl_b32 s{sMT32}, s{sMT32}, 2
    s_add_u32 s{sMT32}, s{sMT32}, s{sWAVE}
    s_lshr_b32 s{sCOL}, s{sXCD}, 1
    s_lshl_b32 s{sCOL}, s{sCOL}, 2
    s_lshr_b32 s{sTMP}, s{sSL}, 3
    s_add_u32 s{sCOL}, s{sCOL}, s{sTMP}
    v_and_b32 v{vPR}, 3, v{vLANE}
    v_lshlrev_b32 v{vPR}, 2, v{vPR}
    v_add_u32 v{vPR}, {CTL}, v{vPR}
    s_lshl_b32 s{sTMP}, s{sWAVE}, 2
    s_add_u32 s{sTMP}, s{sTMP}, {CTL}
    v_lshlrev_b32 v{vPW}, 20, v{vLANE}
    v_add_u32 v{vPW}, s{sTMP}, v{vPW}
    v_min_u32 v{vF0}, 1, v{vLANE}
    v_lshlrev_b32 v{vF0}, 30, v{vF0}
    s_cmp_lt_u32 s{sW8}, 4
    s_cbranch_scc1 k_comp
    """)
    gen_loader(a)
    gen_attn(a)
    a.label("k_comp")
    gen_comp(a)
    gen_gemm2(a)
    a.label("k_end")
    a("s_endpgm")
    if DRY:
        a.label("dry_ret")
        a(f"s_setpc_b64 s[{sRET}:{sRET+1}]")
    return dict(name=KN, grid=256, block=512, lds=LDS_TOTAL, nvgpr=256, accum=256)

def gen_loader(a):
    vXD, vXD2, vWQ, vB1, vT = 7, 8, 3, 13, 14
    vSX, vSW, vAX, vAW = 20, 21, 22, 26
    vAC = 28
    vRD = 40
    sXOFF, sQOFF, sSLW, sMX, sMQ, sBOFF, sONE, sSLS, sMB = [sR + i for i in range(9)]
    a(f"""
    v_lshrrev_b32 v{vT}, 3, v{vLANE}
    v_lshrrev_b32 v{vT+1}, 4, v{vLANE}
    v_and_b32 v{vT+2}, 7, v{vLANE}
    v_xor_b32 v{vT+2}, v{vT+2}, v{vT+1}
    v_lshlrev_b32 v{vT+2}, 4, v{vT+2}
    s_movk_i32 s{sTMP}, 896
    v_mad_u32_u24 v{vXD}, v{vT}, s{sTMP}, v{vT+2}
    v_xor_b32 v{vXD2}, 64, v{vXD}
    s_mul_i32 s{sXOFF}, s{sMT32}, {32*896}
    s_lshl_b32 s{sMX}, s{sWAVE}, 12
    s_mul_i32 s{sMQ}, s{sWAVE}, 3072
    s_add_u32 s{sMQ}, s{sMQ}, 16384
    s_mul_i32 s{sQOFF}, s{sWAVE}, {16*2688}
    s_mul_i32 s{sTMP}, s{sCOL}, 168
    s_add_u32 s{sQOFF}, s{sQOFF}, s{sTMP}
    s_movk_i32 s{sTMP}, 5462
    s_movk_i32 s{sTMP2}, 2688
    """)
    for i in range(3):
        a(f"""
        v_add_u32 v{vT}, {64*i}, v{vLANE}
        v_mul_u32_u24 v{vT+2}, s{sTMP}, v{vT}
        v_lshrrev_b32 v{vT+2}, 16, v{vT+2}
        v_mul_u32_u24 v{vT+3}, 12, v{vT+2}
        v_sub_u32 v{vT}, v{vT}, v{vT+3}
        v_lshlrev_b32 v{vT}, 4, v{vT}
        v_mad_u32_u24 v{vWQ+i}, v{vT+2}, s{sTMP2}, v{vT}
        """)
    a(f"""
    v_mov_b32 v{vB1}, 0
    s_mov_b32 s{sSLW}, {SL0 + 4*SLOT}
    s_mov_b32 s{sSLS}, {SL0 + 4*SLOT}
    s_mov_b32 s{sIT}, 0
    s_waitcnt lgkmcnt(0)
    s_barrier
    """)
    set_srd(a, sA, pX, S*D*2)
    set_srd(a, sB, pWQ, D*3*D*2)
    set_srd(a, sCc, pW1, D*DFF*2)
    stamp(a, 1)
    LDD = env("LDD", 1)
    a.label("ld_loop")
    a(f"""
    s_cmp_lt_u32 s{sIT}, 5
    s_cbranch_scc1 ld_isa
    s_sub_u32 s{sTMP3}, s{sIT}, 4
    """)
    BT = env("BTHROT", 99)
    if BT < 11:
        a(f"s_cmp_eq_u32 s{sIT}, {BT}")
        a(f"s_cselect_b32 s{sTMP3}, 9, s{sTMP3}")
    prog_wait(a, vT+1, CP, f"s{sTMP3}")
    a(f"""
    s_cmp_ge_u32 s{sIT}, 7
    s_cbranch_scc1 ld_isb
    """)
    a.label("ld_isa")
    a(f"s_add_u32 m0, s{sSLW}, s{sMX}")
    for i in range(4):
        a(f"s_add_u32 s{sTMP}, s{sXOFF}, {8*896*i}")
        a(f"buffer_load_dwordx4 v{vXD if i % 2 == 0 else vXD2}, {sr(sA,4)}, s{sTMP} offen lds")
        if i < 3: a("s_add_u32 m0, m0, 1024")
    a(f"s_add_u32 m0, s{sSLW}, s{sMQ}")
    a(f"s_add_u32 s{sXOFF}, s{sXOFF}, 128")
    for i in range(3):
        a(f"buffer_load_dwordx4 v{vWQ+i}, {sr(sB,4)}, s{sQOFF} offen lds")
        if i < 2:
            a("s_add_u32 m0, m0, 1024")
            a("s_nop 0")
    a(f"""
    s_add_u32 s{sQOFF}, s{sQOFF}, {64*2688}
    s_cmp_lg_u32 s{sIT}, 1
    s_cbranch_scc1 ld_post
    """)
    a(f"""
    v_lshrrev_b32 v{vT+1}, 4, v{vLANE}
    v_lshlrev_b32 v{vT+3}, 2, v{vT+1}
    v_and_b32 v{vT+2}, 15, v{vLANE}
    v_xor_b32 v{vT+2}, v{vT+2}, v{vT+3}
    v_lshlrev_b32 v{vT+3}, 4, v{vT+2}
    s_movk_i32 s{sTMP}, 3584
    v_mad_u32_u24 v{vB1}, v{vT+1}, s{sTMP}, v{vT+3}
    s_lshr_b32 s{sTMP}, s{sCOL}, 1
    s_mul_i32 s{sBOFF}, s{sTMP}, 448
    s_and_b32 s{sTMP}, s{sCOL}, 1
    s_mul_i32 s{sTMP}, s{sTMP}, 192
    s_add_u32 s{sBOFF}, s{sBOFF}, s{sTMP}
    s_mul_i32 s{sTMP}, s{sWAVE}, {28*3584}
    s_add_u32 s{sBOFF}, s{sBOFF}, s{sTMP}
    s_mul_i32 s{sMB}, s{sWAVE}, 7168
    """)
    a("s_branch ld_post")
    a.label("ld_isb")
    a(f"""
    s_add_u32 m0, s{sSLW}, s{sMB}
    s_mov_b32 s{sTMP}, s{sBOFF}
    """)
    for i in range(7):
        a(f"buffer_load_dwordx4 v{vB1}, {sr(sCc,4)}, s{sTMP} offen lds")
        if i < 6:
            a("s_add_u32 m0, m0, 1024")
            a(f"s_add_u32 s{sTMP}, s{sTMP}, {4*3584}")
    a(f"s_add_u32 s{sBOFF}, s{sBOFF}, {112*3584}")
    a.label("ld_post")
    a(f"""
    s_add_u32 s{sSLW}, s{sSLW}, {SLOT}
    s_cmp_ge_u32 s{sSLW}, {CTL}
    s_cselect_b32 s{sSLW}, {SL0}, s{sSLW}
    s_cmp_lt_u32 s{sIT}, {LDD}
    s_cbranch_scc1 ld_next
    s_sub_u32 s{sTMP}, s{sIT}, {LDD-1}
    v_mov_b32 v{vT}, s{sTMP}
    s_waitcnt vmcnt({7*LDD})
    ds_write_b32 v{vPW}, v{vT} offset:{LP - CTL}
    """)
    a.label("ld_next")
    if env("STL", 0): stamp_dyn(a, 14, sIT)
    a(f"""
    s_add_u32 s{sIT}, s{sIT}, 1
    s_cmp_lt_u32 s{sIT}, 11
    s_cbranch_scc1 ld_loop
    """)
    stamp(a, 4)
    if LDD == 2:
        a("s_waitcnt vmcnt(7)")
        prog_set(a, vT, LP, 10)

def gen_comp(a):
    vHH, vHHI, vMASK, vCONST, vXR, vXRC = 3, 4, 5, 6, 7, 8
    vNM, vRSTD, vA = 12, 13, 14
    vPG = 15
    vTB = 17
    vTG = 18
    vTN = 20
    vCP = 33
    vTC = 21
    vS0 = 25
    vCSR, vT1 = 35, 16
    vZ = 36
    vFR = [40, 60]
    vACC = 80
    vXB = 144
    sDST, sSCL, sCSO = sR, sR+4, sR+8
    sRELU, sPASS, sSLOT, sONE, sIDX = sR+12, sR+13, sR+14, sR+15, sR+16
    a("""
    s_waitcnt lgkmcnt(0)
    s_barrier
    """)
    set_srd(a, sCc, pDBG, 256)
    set_srd(a, sA, pX, S*D*2)
    set_srd(a, sB, pW2, DFF*D*2)
    stamp(a, 1)
    a(f"""
    s_or_b32 s{sTMP}, s2, s{sWAVE}
    s_cmp_lg_u32 s{sTMP}, 0
    s_cbranch_scc1 c_notag
    s_memrealtime s[{sTAG}:{sTAG+1}]
    s_waitcnt lgkmcnt(0)
    s_or_b32 s{sTAG}, s{sTAG}, 1
    v_mov_b32 v{vTG}, s{sTAG}
    v_mov_b32 v{vTG+1}, s{sTAG+1}
    buffer_store_dwordx2 {vr(vTG,2)}, v{vF0}, {sr(sCc,4)}, 0 offen sc1
    """)
    a.label("c_notag")
    dry_by_wave(a, [["c_epi"], ["c_epi2", "c_posta"], ["c_loopa", "c_lb_rare2"], ["c_passb"]], "dw1")
    stamp(a, 2)
    a(f"""
    v_lshrrev_b32 v{vHH}, 5, v{vLANE}
    v_bfe_u32 v{vS0+1}, v{vLANE}, 2, 2
    v_bfe_u32 v{vS0+2}, v{vLANE}, 4, 1
    v_and_b32 v{vS0+3}, 3, v{vLANE}
    v_lshlrev_b32 v{vS0+2}, 5, v{vS0+2}
    v_lshl_add_u32 v{vS0+2}, v{vS0+3}, 3, v{vS0+2}
    v_lshl_add_u32 v{vS0+4}, v{vHH}, 3, v{vS0+1}
    s_movk_i32 s{sTMP}, 192
    v_mad_u32_u24 v{vTB}, v{vS0+4}, s{sTMP}, v{vS0+2}
    v_add_u32 v{vTB}, 16384, v{vTB}
    v_mov_b32 v{vZ}, 0
    v_mov_b32 v{vZ+1}, 0
    v_mov_b32 v{vZ+2}, 0
    v_mov_b32 v{vZ+3}, 0
    v_and_b32 v{vS0+5}, 31, v{vLANE}
    v_bfe_u32 v{vS0+6}, v{vLANE}, 1, 3
    v_xor_b32 v{vS0+6}, v{vS0+6}, v{vHH}
    v_lshlrev_b32 v{vS0+6}, 4, v{vS0+6}
    v_mfma_f32_32x32x16_bf16 {vr(vACC,16)}, {vr(vZ,4)}, {vr(vZ,4)}, 0
    v_lshl_add_u32 v{vXR}, v{vS0+5}, 7, v{vS0+6}
    s_lshl_b32 s{sTMP}, s{sWAVE}, 12
    v_add_u32 v{vXR}, s{sTMP}, v{vXR}
    v_lshlrev_b32 v{vCSR}, 4, v{vHH}
    v_add_u32 v{vCSR}, {CSA}, v{vCSR}
    v_lshlrev_b32 v{vT1}, 8, v{vS0+4}
    v_mfma_f32_32x32x16_bf16 {vr(vACC+16,16)}, {vr(vZ,4)}, {vr(vZ,4)}, 0
    v_add_u32 v{vT1}, v{vT1}, v{vS0+2}
    v_lshlrev_b32 v{vS0+7}, 6, v{vS0+1}
    v_or_b32 v{vT1}, v{vT1}, v{vS0+7}
    v_mfma_f32_32x32x16_bf16 {vr(vACC+32,16)}, {vr(vZ,4)}, {vr(vZ,4)}, 0
    v_sub_u32 v{vHHI}, v{vHH}, 1
    v_sub_u32 v{vHH}, 0, v{vHH}
    v_mov_b32 v{vMASK}, v{vHHI}
    v_and_b32 v{vCONST}, 0x3f80, v{vHH}
    s_mov_b32 s{sRELU}, 0x80008000
    s_mov_b32 s{sONE}, 0x3f803f80
    s_mov_b32 s{sIT}, 1
    s_mov_b32 s{sSLOT}, {SL0 + 4*SLOT}
    s_mov_b32 s{sIDX}, 0
    s_mul_i32 s{sTMP2}, s{sCOL}, 3
    s_cmp_eq_u32 s{sWAVE}, 3
    s_cselect_b32 s{sTMP3}, 0, s{sWAVE}
    v_mov_b32 v{vS0}, v{vTB}
    """)
    for j in range(3):
        a(f"""
        s_add_u32 s{sTMP}, s{sTMP2}, s{sTMP3}
        s_cmp_lt_u32 s{sTMP}, 16
        s_cselect_b32 s{sSCL+j}, {f32bits(QSCALE):#x}, 1.0
        s_lshl_b32 s{sTMP}, s{sTMP}, 6
        s_add_u32 s{sTMP}, s{sTMP}, s{sMT32}
        s_lshl_b32 s{sDST+j}, s{sTMP}, 11
        s_lshl_b32 s{sCSO+j}, s{sTMP3}, 7
        s_mul_i32 s{sTMP}, s{sTMP3}, 56
        v_add_u32 v{vTB+j}, s{sTMP}, v{vS0}
        s_add_u32 s{sTMP3}, s{sTMP3}, 1
        s_cmp_eq_u32 s{sTMP3}, 3
        s_cselect_b32 s{sTMP3}, 0, s{sTMP3}
        v_add_u32 v{vTC+j}, s{sSLOT}, v{vTB+j}
        """)
    a(f"""
    s_mov_b32 s{sCSO+3}, 0
    s_mov_b32 s{sPASS}, 1
    v_add_u32 v{vXRC}, s{sSLOT}, v{vXR}
    v_mov_b32 v{vCP}, 0
    v_mov_b32 v{vCP+1}, 0
    """)
    for i in range(8):
        a(f"v_mov_b32 v{vS0+i}, 0")
    prog_wait(a, vPG, LP, 1)
    stamp(a, 3)
    lg = LgkmTracker(a)
    def rdW(q, j):
        f = vFR[q % 2]
        for p in range(2):
            a(f"ds_read_b64_tr_b16 {vr(f+4*j+2*p,2)}, v{vTC+j} offset:{(16*q+4*p)*192}")
            lg.issue(("w", q % 2, j))
    def rdX(q):
        f = vFR[q % 2]
        if q == 0:
            a(f"ds_read_b128 {vr(f+16,4)}, v{vXRC}")
        else:
            a(f"v_xor_b32 v{vTN}, {32*q}, v{vXRC}")
            a(f"ds_read_b128 {vr(f+16,4)}, v{vTN}")
        lg.issue(("x", q % 2))
    for q in range(2):
        rdW(q, 0); rdW(q, 1); rdW(q, 2); rdX(q)
    entry_q = list(lg.q)
    a.raw(".p2align 6")
    a.label("c_loopa")
    def savex(q, i0):
        f = vFR[q % 2]
        a(f"s_set_gpr_idx_on s{sIDX}, gpr_idx(DST)")
        for i in range(i0, i0 + 2):
            a(f"v_mov_b32 v{vXB+4*q+i}, v{f+16+i}")
        a("s_set_gpr_idx_off")
    for q in range(4):
        st = q % 2; f = vFR[st]; qn = (q + 2) % 4
        lg.need(("x", st))
        if q == 2: lg.need(("pg",))
        for i in range(4):
            a(f"v_dot2c_f32_bf16 v{vCP+(i&1)}, s{sONE}, v{f+i}")
            a(f"v_dot2c_f32_bf16 v{vS0+i}, s{sONE}, v{f+16+i}")
            a(f"v_dot2c_f32_bf16 v{vS0+4+i}, v{f+16+i}, v{f+16+i}")
        a(f"v_mfma_f32_32x32x16_bf16 {vr(vACC,16)}, {vr(f,4)}, {vr(f+16,4)}, {vr(vACC,16)}")
        if q == 1:
            a(f"ds_read_b32 v{vPG}, v{vPR} offset:{LP - CTL}")
            lg.issue(("pg",))
        if q == 2:
            a(f"""
            v_cmp_ge_u32 vcc, s{sIT}, v{vPG}
            s_add_u32 s{sSLOT}, s{sSLOT}, {SLOT}
            s_cmp_ge_u32 s{sSLOT}, {CTL}
            s_cselect_b32 s{sSLOT}, {SL0}, s{sSLOT}
            s_cbranch_vccnz c_la_slow
            """)
            a.label("c_la_back")
            a(f"v_add_u32 v{vTC}, s{sSLOT}, v{vTB}")
        rdW(qn, 0)
        if q == 2:
            a(f"v_add_u32 v{vTC+1}, s{sSLOT}, v{vTB+1}")
        else:
            savex(q, 0)
        a(f"v_mfma_f32_32x32x16_bf16 {vr(vACC+16,16)}, {vr(f+4,4)}, {vr(f+16,4)}, {vr(vACC+16,16)}")
        rdW(qn, 1)
        savex(q, 2)
        if q == 2: a(f"v_add_u32 v{vTC+2}, s{sSLOT}, v{vTB+2}")
        a(f"v_mfma_f32_32x32x16_bf16 {vr(vACC+32,16)}, {vr(f+8,4)}, {vr(f+16,4)}, {vr(vACC+32,16)}")
        rdW(qn, 2)
        if q == 2:
            a(f"v_add_u32 v{vXRC}, s{sSLOT}, v{vXR}")
            savex(q, 0)
        rdX(qn)
        if q == 3:
            prog_set(a, vTC+3, CP, f"s{sIT}")
            lg.issue(("pw",))
    q2 = [t for t in lg.q if t != ("pw",)]
    assert q2 == entry_q, (lg.q, entry_q)
    dry_end(a)
    if env("STL", 0): stamp_dyn(a, 20, sIT)
    a(f"""
    s_add_u32 s{sIDX}, s{sIDX}, 16
    s_add_u32 s{sIT}, s{sIT}, 1
    s_cmp_lt_u32 s{sIT}, 8
    s_cbranch_scc1 c_loopa
    """)
    a.label("c_posta")
    stamp(a, 4)
    a(f"buffer_load_dwordx2 {vr(vTG,2)}, v{vF0}, {sr(sCc,4)}, 0 offen sc1")
    a(f"""
    v_add_f32 v{vCP}, v{vCP}, v{vCP+1}
    v_add_f32 v{vS0}, v{vS0}, v{vS0+1}
    v_add_f32 v{vS0+2}, v{vS0+2}, v{vS0+3}
    v_mov_b32 v{vCP+1}, v{vCP}
    v_add_f32 v{vS0+4}, v{vS0+4}, v{vS0+5}
    v_add_f32 v{vS0+6}, v{vS0+6}, v{vS0+7}
    v_permlane32_swap_b32 v{vCP}, v{vCP+1}
    v_add_f32 v{vS0}, v{vS0}, v{vS0+2}
    v_add_f32 v{vS0+4}, v{vS0+4}, v{vS0+6}
    v_and_b32 v{vS0+2}, 31, v{vLANE}
    v_lshlrev_b32 v{vS0+2}, 2, v{vS0+2}
    v_add_u32 v{vS0+2}, s{sCSO}, v{vS0+2}
    v_add_f32 v{vCP}, v{vCP}, v{vCP+1}
    v_add_u32 v{vS0+2}, {CSA}, v{vS0+2}
    v_mov_b32 v{vS0+1}, v{vS0}
    v_mov_b32 v{vS0+5}, v{vS0+4}
    ds_write_b32 v{vS0+2}, v{vCP}
    v_mov_b32 v{vS0+3}, 8
    ds_write_b32 v{vPW}, v{vS0+3} offset:{CP - CTL}
    v_permlane32_swap_b32 v{vS0}, v{vS0+1}
    v_permlane32_swap_b32 v{vS0+4}, v{vS0+5}
    s_nop 0
    v_add_f32 v{vS0}, v{vS0}, v{vS0+1}
    v_add_f32 v{vS0+4}, v{vS0+4}, v{vS0+5}
    v_mul_f32 v{vNM}, {f32bits(-1.0/D):#x}, v{vS0}
    v_mul_f32 v{vS0+4}, {f32bits(1.0/D):#x}, v{vS0+4}
    v_fma_f32 v{vS0+4}, -v{vNM}, v{vNM}, v{vS0+4}
    v_max_f32 v{vS0+4}, 0, v{vS0+4}
    v_add_f32 v{vS0+4}, {f32bits(1e-5):#x}, v{vS0+4}
    v_rsq_f32 v{vRSTD}, v{vS0+4}
    """)
    prog_wait(a, vPG, CP, 8, sleep=0)
    dry_end(a)
    a.label("c_epi")
    vCS2 = [vFR[0], vFR[0] + 16]
    def cs_read(j):
        a(f"v_add_u32 v{vXRC}, s{sCSO+j}, v{vCSR}")
        for g in range(4):
            a(f"ds_read_b128 {vr(vCS2[j%2]+4*g,4)}, v{vXRC} offset:{32*g}")
    cs_read(0)
    for j in range(4):
        acc = vACC + 16*j
        cs = vCS2[j % 2]
        if j == 2:
            dry_end(a)
            a.label("c_epi2")
        if j < 3:
            cs_read(j + 1)
            a("s_waitcnt lgkmcnt(4)")
        else:
            a("s_waitcnt lgkmcnt(0)")
        a(f"v_mul_f32 v{vA}, s{sSCL+j}, v{vRSTD}")
        for i in range(0, 16, 2):
            a(f"v_pk_fma_f32 {vr(acc+i,2)}, {vr(cs+i,2)}, {vr(vNM,2)}, {vr(acc+i,2)} op_sel_hi:[1,0,1]")
        for i in range(0, 16, 2):
            a(f"v_pk_mul_f32 {vr(acc+i,2)}, {vr(acc+i,2)}, {vr(vA,2)} op_sel_hi:[1,0]")
        for i in range(8):
            a(f"v_cvt_pk_bf16_f32 v{acc+i}, v{acc+2*i}, v{acc+2*i+1}")
        for i in range(8):
            a(f"v_pk_max_i16 v{acc+i}, v{acc+i}, s{sRELU}")
            if i == 5:
                a(f"buffer_store_dwordx4 {vr(acc,4)}, v{vL16}, {sr(sWS,4)}, s{sDST+j} offen sc1")
        a(f"v_and_or_b32 v{acc+6}, v{acc+6}, v{vMASK}, v{vCONST}")
        a(f"v_and_b32 v{acc+7}, v{acc+7}, v{vMASK}")
        a(f"buffer_store_dwordx4 {vr(acc+4,4)}, v{vL16}, {sr(sWS,4)}, s{sDST+j} offen offset:1024 sc1")
        if j == 2:
            if DRY: a("s_cbranch_execz c_epi3")
            a(f"s_cmp_eq_u32 s{sPASS}, 1")
            a("s_cbranch_scc1 c_epi_end")
            a.label("c_epi3")
    a.label("c_epi_end")
    a("s_nop 1")
    for j in range(4):
        a(f"v_mfma_f32_32x32x16_bf16 {vr(vACC+16*j,16)}, {vr(vZ,4)}, {vr(vZ,4)}, 0")
    dry_end(a)
    a(f"""
    s_cmp_eq_u32 s{sPASS}, 2
    s_cbranch_scc1 c_done
    """)
    a.label("c_passb")
    prog_set(a, vS0, CP, 9)
    stamp(a, 5)
    a(f"s_lshl_b32 s{sTMP}, s{sWAVE}, 6")
    a(f"v_xor_b32 v{vT1}, s{sTMP}, v{vT1}")
    for b in range(4):
        a(f"v_xor_b32 v{vTC+b}, {b << 6}, v{vT1}")
        a(f"v_add_u32 v{vTC+b}, {WB}, v{vTC+b}")
        a(f"v_mov_b32 v{vS0+4+b}, 0")
    prog_wait(a, vPG, LP, 8)
    stamp(a, 7)
    def rdB(step, b):
        f = vFR[step % 2]
        for p in range(2):
            a(f"ds_read_b64_tr_b16 {vr(f+4*b+2*p,2)}, v{vTC+b} offset:{4096*step + 1024*p}")
    def fetchx(step, i0):
        f = vFR[step % 2]
        a(f"s_set_gpr_idx_on s{sIDX}, gpr_idx(SRC0)")
        for i in range(i0, i0 + 2):
            a(f"v_mov_b32 v{f+16+i}, v{vXB+4*(step%4)+i}")
        a("s_set_gpr_idx_off")
    a(f"""
    s_mov_b32 s{sIT}, 0
    s_mov_b32 s{sIDX}, 0
    """)
    for b in range(4): rdB(0, b)
    a("s_waitcnt lgkmcnt(4)")
    for b in range(4): rdB(1, b)
    fetchx(0, 0); fetchx(0, 2)
    a.raw(".p2align 6")
    a.label("c_loopb")
    a(f"""
    s_bitcmp1_b32 {(1<<1)|(1<<2)|(1<<3)|(1<<4):#x}, s{sIT}
    s_cbranch_scc1 c_lb_rare
    """)
    a.label("c_lb_go")
    for k in range(4):
        f = vFR[k % 2]
        for b in range(4):
            if b % 2 == 0:
                a("s_waitcnt lgkmcnt(11)")
            if b == 0:
                for i in range(4):
                    a(f"v_dot2c_f32_bf16 v{vS0+4+i}, s{sONE}, v{f+i}")
            a(f"v_mfma_f32_32x32x16_bf16 {vr(vACC+16*b,16)}, {vr(f+4*b,4)}, {vr(f+16,4)}, {vr(vACC+16*b,16)}")
            rdB(k + 2, b)
            if k == 2 and b == 3:
                a(f"s_add_u32 s{sIDX}, s{sIDX}, 16")
                a(f"s_min_u32 s{sIDX}, s{sIDX}, 96")
            if b == 0: fetchx(k + 1, 0)
            if b == 2: fetchx(k + 1, 2)
            if k == 3:
                a(f"v_add_u32 v{vTC+b}, 16384, v{vTC+b}")
    dry_end(a)
    a(f"""
    s_add_u32 s{sIT}, s{sIT}, 1
    s_cmp_lt_u32 s{sIT}, 7
    s_cbranch_scc1 c_loopb
    s_waitcnt lgkmcnt(0)
    """)
    stamp(a, 6)
    a(f"""
    v_add_f32 v{vS0+4}, v{vS0+4}, v{vS0+5}
    v_add_f32 v{vS0+6}, v{vS0+6}, v{vS0+7}
    v_and_b32 v{vS0+2}, 31, v{vLANE}
    v_add_f32 v{vS0+4}, v{vS0+4}, v{vS0+6}
    v_lshlrev_b32 v{vS0+2}, 2, v{vS0+2}
    v_mov_b32 v{vS0+5}, v{vS0+4}
    s_lshl_b32 s{sTMP}, s{sWAVE}, 7
    s_add_u32 s{sTMP}, s{sTMP}, {CSB_}
    v_permlane32_swap_b32 v{vS0+4}, v{vS0+5}
    v_add_u32 v{vS0+2}, s{sTMP}, v{vS0+2}
    s_nop 0
    v_add_f32 v{vS0+4}, v{vS0+4}, v{vS0+5}
    ds_write_b32 v{vS0+2}, v{vS0+4}
    """)
    prog_set(a, vS0, CP, 11)
    a(f"""
    s_lshr_b32 s{sTMP}, s{sCOL}, 1
    s_mul_i32 s{sTMP}, s{sTMP}, 7
    s_and_b32 s{sTMP2}, s{sCOL}, 1
    s_mul_i32 s{sTMP2}, s{sTMP2}, 3
    s_add_u32 s{sTMP}, s{sTMP}, s{sTMP2}
    s_mul_i32 s{sTMP2}, s{sMT32}, 72
    s_add_u32 s{sTMP}, s{sTMP}, s{sTMP2}
    s_lshl_b32 s{sTMP}, s{sTMP}, 11
    s_add_u32 s{sTMP}, s{sTMP}, {HF_OFF}
    s_mov_b32 s{sRELU}, 0
    v_mov_b32 v{vMASK}, -1
    v_mov_b32 v{vCONST}, 0
    s_mov_b32 s{sPASS}, 2
    """)
    for j in range(4):
        a(f"""
        s_mov_b32 s{sSCL+j}, 1.0
        s_xor_b32 s{sTMP2}, s{sWAVE}, {j}
        s_lshl_b32 s{sTMP3}, s{sTMP2}, 7
        s_add_u32 s{sCSO+j}, s{sTMP3}, 512
        s_lshl_b32 s{sTMP2}, s{sTMP2}, 11
        s_add_u32 s{sDST+j}, s{sTMP}, s{sTMP2}
        """)
    prog_wait(a, vPG, CP, 11, sleep=0)
    stamp(a, 11)
    a("s_branch c_epi")
    a.label("c_la_slow")
    a(f"""
    s_cmp_eq_u32 s{sIT}, 7
    s_cbranch_scc1 c_la_back
    s_add_u32 s{sTMP3}, s{sIT}, 1
    """)
    prog_wait(a, vPG, LP, f"s{sTMP3}", sleep=1)
    a("s_branch c_la_back")
    a.label("c_lb_rare")
    a(f"""
    s_cmp_lg_u32 s{sIT}, 2
    s_cbranch_scc1 c_lb_r0
    """)
    prog_set(a, vS0, CP, 10)
    a("s_waitcnt lgkmcnt(0)")
    a("s_branch c_lb_go")
    a.label("c_lb_r0")
    a(f"""
    s_add_u32 s{sTMP3}, s{sIT}, 7
    s_cmp_lg_u32 s{sIT}, 1
    s_cbranch_scc1 c_lb_r1
    """)
    a.label("c_lb_rare2")
    stamp(a, 8)
    a(f"""
    s_waitcnt vmcnt(0)
    v_readfirstlane_b32 s{sTAG}, v{vTG}
    v_readfirstlane_b32 s{sTAG+1}, v{vTG+1}
    s_cmp_lg_u32 s{sTAG}, 0
    s_cbranch_scc1 c_lb_tag
    """)
    get_tag(a, vS0+1)
    a.label("c_lb_tag")
    stamp(a, 9)
    a(f"""
    s_lshl_b32 s{sTMP}, s{sCOL}, 6
    s_add_u32 s{sTMP}, s{sTMP}, s{sMT32}
    s_lshl_b32 s{sTMP}, s{sTMP}, 3
    s_add_u32 s{sTMP}, s{sTMP}, {F1_OFF}
    s_mov_b32 s{sTMP3}, 9
    """)
    publish_flag(a, vS0+1, sTMP)
    a.label("c_lb_r1")
    prog_wait(a, vPG, LP, f"s{sTMP3}")
    stamp(a, 10)
    dry_end(a)
    a("s_branch c_lb_go")
    a.label("c_done")
    stamp(a, 12)

from mk2 import gen_attn, gen_gemm2

def build():
    hdr = open("cdna_kernels/" + NAME + ".s.ref").read().split("\n")
    out = [l for l in hdr if l.startswith(";") and "@launch" not in l]
    body = Asm()
    body.raw(".p2align 8")
    d = gen(body)
    out.append(f"; @launch grid=({d['grid']},1,1) block=({d['block']},1,1) lds={d['lds']}")
    out.append('.amdgcn_target "amdgcn-amd-amdhsa--gfx950"')
    out.append(".text")
    out.append(f".globl {d['name']}")
    out.append(f".type {d['name']},@function")
    txt = "\n".join(out) + "\n" + body.text()
    txt += '.section .rodata,"a"\n.p2align 6\n' + kernel_desc(d['name'], d['nvgpr'], d['accum'])
    return txt
```

```python
import os
from asmlib import *
from mk import *

def reduce_write(a, vACC, vWA, sBASE):
    a(f"v_add_u32 v{vWA}, s{sBASE}, v{vL16}")
    for j in range(1, 4):
        for g in range(4):
            a(f"ds_write_b128 v{vWA}, {vr(vACC+16*j+4*g,4)} offset:{(j-1)*4096+g*1024}")
def reduce_read(a, vACC, vT, vRA, region0):
    for j in range(1, 4):
        a(f"""
        s_xor_b32 s{sTMP}, s{sWAVE}, {j}
        s_lshl_b32 s{sTMP}, s{sTMP}, 14
        s_add_u32 s{sTMP}, s{sTMP}, {region0 + (j-1)*4096}
        v_add_u32 v{vRA}, s{sTMP}, v{vL16}
        """)
        for g in range(4):
            a(f"ds_read_b128 {vr(vT+16*(j-1)+4*g,4)}, v{vRA} offset:{g*1024}")
    for j in range(3):
        for g in range(4):
            a(f"s_waitcnt lgkmcnt({11 - (4*j+g)})")
            for r in range(4):
                i = 4*g + r
                a(f"v_add_f32 v{vACC+i}, v{vACC+i}, v{vT+16*j+i}")

def gen_attn(a):
    sHEAD, sQB, sKV, sRD, sWR, sLB, sFB, sWV = sR, sR+1, sR+2, sR+3, sR+4, sR+5, sR+6, sR+7
    vKA, vVA, vKAb, vVAb, vHH, vHHI, vT0 = 3, 4, 5, 6, 7, 8, 12
    vQ = 16; vO = 48; vS = [112, 128]; vP = [144, 152]; vK = [160, 168]; vV = [176, 184]; vNM = 192
    vFA = 208
    a(f"""
    s_and_b32 s{sHEAD}, s{sSL}, 1
    s_lshl_b32 s{sTMP}, s{sXCD}, 1
    s_add_u32 s{sHEAD}, s{sHEAD}, s{sTMP}
    s_lshr_b32 s{sQB}, s{sSL}, 1
    s_lshl_b32 s{sKV}, s{sHEAD}, 17
    s_add_u32 s{sKV}, s{sKV}, {KF_OFF}
    s_lshl_b32 s{sLB}, s{sWAVE}, 14
    v_lshrrev_b32 v{vHH}, 5, v{vLANE}
    v_add_u32 v{vKAb}, s{sLB}, v{vL16}
    v_bfe_u32 v{vT0}, v{vLANE}, 4, 1
    v_lshlrev_b32 v{vVAb}, 10, v{vT0}
    v_and_b32 v{vT0}, 1, v{vLANE}
    v_lshl_add_u32 v{vVAb}, v{vT0}, 9, v{vVAb}
    v_bfe_u32 v{vT0}, v{vLANE}, 1, 1
    v_lshl_add_u32 v{vVAb}, v{vT0}, 3, v{vVAb}
    v_bfe_u32 v{vT0}, v{vLANE}, 2, 2
    v_lshl_add_u32 v{vT0}, v{vHH}, 2, v{vT0}
    v_lshl_add_u32 v{vVAb}, v{vT0}, 4, v{vVAb}
    v_add_u32 v{vVAb}, s{sLB}, v{vVAb}
    v_add_u32 v{vVAb}, 2048, v{vVAb}
    v_sub_u32 v{vHHI}, v{vHH}, 1
    v_sub_u32 v{vHH}, 0, v{vHH}
    """)
    a(f"""
    s_add_u32 s{sTMP}, s{sHEAD}, 16
    s_mul_i32 s{sTMP}, s{sTMP}, 43
    s_lshr_b32 s{sTMP}, s{sTMP}, 7
    s_lshl_b32 s{sTMP}, s{sTMP}, 6
    v_mov_b32 v{vFA}, s{sTMP}
    s_lshl_b32 s{sTMP3}, s{sWAVE}, 4
    s_add_u32 s{sTMP}, s{sTMP}, s{sTMP3}
    v_and_b32 v{vT0}, 15, v{vLANE}
    v_add_u32 v{vT0+1}, s{sTMP}, v{vT0}
    s_mov_b32 exec_lo, 0xffff
    s_mov_b32 exec_hi, 0
    v_mov_b32 v{vFA}, v{vT0+1}
    s_mov_b64 exec, -1
    s_add_u32 s{sTMP}, s{sHEAD}, 32
    s_mul_i32 s{sTMP}, s{sTMP}, 43
    s_lshr_b32 s{sTMP}, s{sTMP}, 7
    s_lshl_b32 s{sTMP}, s{sTMP}, 6
    s_add_u32 s{sTMP}, s{sTMP}, s{sTMP3}
    v_add_u32 v{vT0+1}, s{sTMP}, v{vT0}
    s_mov_b32 exec_lo, 0xffff0000
    s_mov_b32 exec_hi, 0
    v_mov_b32 v{vFA}, v{vT0+1}
    s_mov_b64 exec, -1
    s_mul_i32 s{sTMP}, s{sHEAD}, 43
    s_lshr_b32 s{sTMP}, s{sTMP}, 7
    s_lshl_b32 s{sTMP}, s{sTMP}, 6
    s_lshl_b32 s{sTMP3}, s{sQB}, 2
    s_add_u32 s{sTMP}, s{sTMP}, s{sTMP3}
    v_and_b32 v{vT0}, 3, v{vLANE}
    v_add_u32 v{vT0+1}, s{sTMP}, v{vT0}
    s_mov_b32 exec_lo, 0
    s_mov_b32 exec_hi, 0xffff
    v_mov_b32 v{vFA}, v{vT0+1}
    s_mov_b64 exec, -1
    v_lshlrev_b32 v{vFA}, 3, v{vFA}
    v_add_u32 v{vFA}, {F1_OFF}, v{vFA}
    """)
    a(f"v_mov_b32 v{vKA}, v{vKAb}")
    a(f"v_mov_b32 v{vVA}, v{vVAb}")
    a("s_waitcnt vmcnt(0)")
    prog_set(a, vT0, LP, 11)
    set_srd(a, sCc, pDBG, 256)
    a(f"buffer_load_dwordx2 {vr(vT0+2,2)}, v{vF0}, {sr(sCc,4)}, 0 offen sc1")
    stamp(a, 5)
    dry_by_wave(a, [["a_pro"], ["a_loop"], ["a_loop2"], ["a_tail"]], "dw2")
    a("s_waitcnt vmcnt(0) lgkmcnt(0)")
    for i in range(8):
        a(f"v_mov_b32 v{vP[1]+i}, 0")
        a(f"v_mov_b32 v{vV[1]+i}, 0")
    a(f"""
    s_setprio 3
    v_readfirstlane_b32 s{sTAG}, v{vT0+2}
    v_readfirstlane_b32 s{sTAG+1}, v{vT0+3}
    s_cmp_lg_u32 s{sTAG}, 0
    s_cbranch_scc1 a_tagok
    """)
    get_tag(a, vT0+2)
    a.label("a_tagok")
    if env("PFW", 0):
        set_srd(a, sA, pW2, DFF*D*2)
        set_srd(a, sB, pWO, D*D*2)
        a(f"""
        s_lshl_b32 s{sTMP}, s{sSL}, 2
        s_add_u32 s{sTMP}, s{sTMP}, s{sWAVE}
        v_lshlrev_b32 v{vT0}, 7, v{vLANE}
        s_lshl_b32 s{sTMP2}, s{sTMP}, 14
        buffer_load_dword v{vNM}, v{vT0}, {sr(sA,4)}, s{sTMP2} offen sc1
        s_add_u32 s{sTMP2}, s{sTMP2}, 8192
        buffer_load_dword v{vNM+1}, v{vT0}, {sr(sA,4)}, s{sTMP2} offen sc1
        s_lshl_b32 s{sTMP2}, s{sTMP}, 13
        buffer_load_dword v{vNM+2}, v{vT0}, {sr(sB,4)}, s{sTMP2} offen sc1
        """)
    stamp(a, 6)
    poll_flags(a, vFA, vT0+2)
    a.label("a_pro")
    stamp(a, 7)
    a(f"buffer_load_dwordx4 {vr(vK[1],4)}, v{vL16}, {sr(sWS,4)}, s{sKV} offen sc1")
    a(f"buffer_load_dwordx4 {vr(vK[1]+4,4)}, v{vL16}, {sr(sWS,4)}, s{sKV} offen offset:1024 sc1")
    a(f"""
    s_lshl_b32 s{sTMP2}, s{sQB}, 2
    s_lshl_b32 s{sTMP3}, s{sHEAD}, 6
    s_add_u32 s{sTMP2}, s{sTMP2}, s{sTMP3}
    """)
    for j in range(4):
        a(f"""
        s_xor_b32 s{sTMP}, s{sWAVE}, {j}
        s_add_u32 s{sTMP}, s{sTMP}, s{sTMP2}
        s_lshl_b32 s{sTMP}, s{sTMP}, 11
        buffer_load_dwordx4 {vr(vQ+8*j,4)}, v{vL16}, {sr(sWS,4)}, s{sTMP} offen sc1
        buffer_load_dwordx4 {vr(vQ+8*j+4,4)}, v{vL16}, {sr(sWS,4)}, s{sTMP} offen offset:1024 sc1
        """)
    prog_wait(a, vT0, CP, 10)
    a(f"""
    s_lshl_b32 s{sTMP}, s{sWAVE}, 15
    s_add_u32 s{sWR}, s{sKV}, s{sTMP}
    s_mov_b32 m0, s{sLB}
    """)
    def dma_tile():
        a(f"s_add_u32 s{sWV}, s{sWR}, {VF_OFF - KF_OFF - 2048}")
        for i in range(4):
            a(f"buffer_load_dwordx4 v{vL16}, {sr(sWS,4)}, s{sWR if i < 2 else sWV} offen offset:{1024*i} sc1 lds")
    for t in range(4):
        dma_tile()
        a(f"s_add_u32 s{sWR}, s{sWR}, 2048")
        if t < 3:
            a(f"s_add_u32 m0, m0, 4096")
    stamp(a, 8)
    a("s_waitcnt vmcnt(16)")
    stamp(a, 9)
    for j in range(4):
        a(f"v_mfma_f32_32x32x16_bf16 {vr(vO+16*j,16)}, {vr(vK[1],4)}, {vr(vQ+8*j,4)}, 0")
        a(f"v_mfma_f32_32x32x16_bf16 {vr(vO+16*j,16)}, {vr(vK[1]+4,4)}, {vr(vQ+8*j+4,4)}, {vr(vO+16*j,16)}")
    a("s_waitcnt vmcnt(12)")
    def read_k(st, addr):
        a(f"ds_read_b128 {vr(vK[st],4)}, v{addr}")
        a(f"ds_read_b128 {vr(vK[st]+4,4)}, v{addr} offset:1024")
    def read_v_ins(st, addr):
        return [f"ds_read_b64_tr_b16 {vr(vV[st]+4*s_+2*p,2)}, v{addr} offset:{(16*s_+8*p)*16}" for s_ in range(2) for p in range(2)]
    read_k(0, vKAb)
    for x in read_v_ins(0, vVAb): a(x)
    a("s_nop 7")
    for j in range(4):
        o = vO + 16*j
        t = vT0 + (j & 1) * 2
        a(f"v_max3_f32 v{t}, v{o}, v{o+1}, v{o+2}")
        for i in range(3, 15, 2):
            a(f"v_max3_f32 v{t}, v{t}, v{o+i}, v{o+i+1}")
        a(f"v_max_f32 v{t}, v{t}, v{o+15}")
        a(f"v_mov_b32 v{t+1}, v{t}")
        a(f"v_mfma_f32_32x32x16_bf16 {vr(o,16)}, {vr(vP[1],4)}, {vr(vP[1],4)}, 0")
        a("s_nop 0")
        a(f"v_permlane32_swap_b32 v{t}, v{t+1}")
        a("s_nop 1")
        a(f"v_max_f32 v{t}, v{t}, v{t+1}")
        a(f"v_add_f32 v{t}, {f32bits(BIAS - 1.0):#x}, v{t}")
        a(f"v_cvt_pk_bf16_f32 v{t}, -v{t}, 0")
        a(f"v_and_b32 v{t}, v{t}, v{vHH}")
        a(f"v_and_or_b32 v{vQ+8*j+6}, v{vQ+8*j+6}, v{vHHI}, v{t}")
    a(f"""
    s_mov_b32 s{sRD}, 0
    s_mov_b32 s{sIT}, 0
    s_waitcnt lgkmcnt(0)
    """)
    a(f"v_mfma_f32_32x32x16_bf16 {vr(vS[0],16)}, {vr(vK[0],4)}, {vr(vQ,4)}, 0")
    a(f"v_mfma_f32_32x32x16_bf16 {vr(vS[0],16)}, {vr(vK[0]+4,4)}, {vr(vQ+4,4)}, {vr(vS[0],16)}")
    a("s_nop 7")
    a("s_nop 3")
    def body(st):
        for j in range(4):
            sc = vS[j % 2]; sn = vS[(j + 1) % 2]
            pc = vP[j % 2]; pp = vP[(j + 1) % 2]
            kn = vK[st] if j < 3 else vK[1 - st]
            qn = vQ + 8 * ((j + 1) % 4)
            vv = vV[st] if j > 0 else vV[1 - st]
            op = vO + 16 * ((j + 3) % 4)
            mf = [
                f"v_mfma_f32_32x32x16_bf16 {vr(sn,16)}, {vr(kn,4)}, {vr(qn,4)}, 0",
                f"v_mfma_f32_32x32x16_bf16 {vr(sn,16)}, {vr(kn+4,4)}, {vr(qn+4,4)}, {vr(sn,16)}",
                f"v_mfma_f32_32x32x16_bf16 {vr(op,16)}, {vr(vv,4)}, {vr(pp,4)}, {vr(op,16)}",
                f"v_mfma_f32_32x32x16_bf16 {vr(op,16)}, {vr(vv+4,4)}, {vr(pp+4,4)}, {vr(op,16)}",
            ]
            if j == 3:
                a("s_waitcnt lgkmcnt(0)")
            plan = [[("e", 0), ("e", 1), ("e", 2)], [("e", 3), ("e", 4), ("e", 5)], [("e", 6), ("e", 7), ("e", 8)],
                    [("e", i) for i in range(9, 16)] + [("c", i) for i in range(8)]]
            for g in range(4):
                a(mf[g])
                if j == 0 and g == 3:
                    a(f"s_add_u32 m0, s{sLB}, s{sRD}")
                    a(f"s_add_u32 s{sRD}, s{sRD}, 4096")
                    if st == 0:
                        a(f"s_cmp_ge_u32 s{sIT}, 6")
                        a(f"s_cselect_b32 s{sWR}, {OOB:#x}, s{sWR}")
                    a("s_setprio 3")
                    dma_tile()
                    a(f"s_setprio {os.environ.get('ATT_BASE', '0')}")
                    a(f"s_add_u32 s{sWR}, s{sWR}, 2048")
                    a(f"s_and_b32 s{sRD}, s{sRD}, 0x3fff")
                    a(f"v_add_u32 v{vKA}, s{sRD}, v{vKAb}")
                    a(f"v_add_u32 v{vVA}, s{sRD}, v{vVAb}")
                if j == 1 and g == 3:
                    a("s_waitcnt vmcnt(12)")
                    read_k(1 - st, vKA)
                    for x in read_v_ins(1 - st, vVA): a(x)
                for kind, i in plan[g]:
                    if kind == "e":
                        a(f"v_exp_f32 v{sc+i}, v{sc+i}")
                    else:
                        a(f"v_cvt_pk_bf16_f32 v{pc+i}, v{sc+2*i}, v{sc+2*i+1}")
    stamp(a, 10)
    dry_end(a)
    a.raw(".p2align 6")
    a.label("a_loop")
    body(0)
    dry_end(a)
    a.label("a_loop2")
    body(1)
    dry_end(a)
    a(f"""
    s_add_u32 s{sIT}, s{sIT}, 1
    s_cmp_lt_u32 s{sIT}, 8
    s_cbranch_scc1 a_loop
    """)
    a.label("a_tail")
    stamp(a, 11)
    a("s_setprio 3")
    a("s_nop 1")
    a(f"v_mfma_f32_32x32x16_bf16 {vr(vO+48,16)}, {vr(vV[1],4)}, {vr(vP[1],4)}, {vr(vO+48,16)}")
    a(f"v_mfma_f32_32x32x16_bf16 {vr(vO+48,16)}, {vr(vV[1]+4,4)}, {vr(vP[1]+4,4)}, {vr(vO+48,16)}")
    a("s_waitcnt vmcnt(0)")
    a("s_nop 3")
    reduce_write(a, vO, vT0, sLB)
    a("s_waitcnt lgkmcnt(0)")
    prog_set(a, vT0, AP, 1)
    prog_wait(a, vT0, AP, 1, sleep=0)
    reduce_read(a, vO, vS[0], vT0, ATT0)
    a(f"s_mov_b32 s{sFB}, 0")
    stamp(a, 12)
    a.label("a_norm")
    a(f"""
    v_mov_b32 v{vT0}, v{vO+12}
    v_mov_b32 v{vT0+1}, v{vO+12}
    s_nop 1
    v_permlane32_swap_b32 v{vT0}, v{vT0+1}
    s_nop 1
    v_rcp_f32 v{vT0}, v{vT0+1}
    v_mov_b32 v{vT0+2}, 0
    """)
    for i in range(16):
        a(f"v_mul_f32 v{vS[0]+i}, v{vO+i}, v{vT0}")
    for i in range(16):
        a(f"v_fma_f32 v{vT0+2}, v{vS[0]+i}, 0, v{vT0+2}")
    a(f"""
    s_mov_b32 s{sTMP}, {f32bits(2.0**-90):#x}
    v_cmp_nle_f32 vcc, s{sTMP}, v{vT0+1}
    s_mov_b32 s{sTMP}, {f32bits(2.0**100):#x}
    v_cmp_nge_f32 s[72:73], s{sTMP}, v{vT0+1}
    v_cmp_u_f32 s[74:75], v{vT0+2}, v{vT0+2}
    s_or_b64 vcc, vcc, s[72:73]
    s_or_b64 vcc, vcc, s[74:75]
    s_cmp_lg_u32 s{sFB}, 0
    s_cbranch_scc1 a_store
    s_cbranch_vccnz a_fallback
    """)
    a.label("a_store")
    for i in range(8):
        a(f"v_cvt_pk_bf16_f32 v{vP[0]+i}, v{vS[0]+2*i}, v{vS[0]+2*i+1}")
    a(f"""
    v_and_b32 v{vP[0]+6}, v{vP[0]+6}, v{vHHI}
    v_and_b32 v{vP[0]+7}, v{vP[0]+7}, v{vHHI}
    s_lshl_b32 s{sTMP3}, s{sQB}, 2
    s_add_u32 s{sTMP3}, s{sTMP3}, s{sWAVE}
    s_mul_i32 s{sTMP}, s{sTMP3}, 144
    s_lshl_b32 s{sTMP2}, s{sHEAD}, 1
    s_add_u32 s{sTMP}, s{sTMP}, s{sTMP2}
    s_lshl_b32 s{sTMP}, s{sTMP}, 10
    s_add_u32 s{sTMP}, s{sTMP}, {HF_OFF + 112*1024}
    buffer_store_dwordx4 {vr(vP[0],4)}, v{vL16}, {sr(sWS,4)}, s{sTMP} offen sc1
    buffer_store_dwordx4 {vr(vP[0]+4,4)}, v{vL16}, {sr(sWS,4)}, s{sTMP} offen offset:1024 sc1
    s_lshl_b32 s{sTMP3}, s{sTMP3}, 4
    s_add_u32 s{sTMP3}, s{sTMP3}, s{sHEAD}
    s_lshl_b32 s{sTMP3}, s{sTMP3}, 3
    s_add_u32 s{sTMP3}, s{sTMP3}, {F3_OFF}
    s_waitcnt vmcnt(0)
    """)
    stamp(a, 13)
    publish_flag(a, vT0+2, sTMP3)
    dry_end(a)
    stamp_flush(a, 0, sWS, sW8, 20, wpw=8)
    a("s_endpgm")
    a.label("a_fallback")
    a(f"""
    v_and_b32 v{vQ+6}, v{vQ+6}, v{vHHI}
    v_mov_b32 v{vT0}, 0xff800000
    s_mov_b32 s{sWR}, s{sKV}
    s_mov_b32 s{sIT}, 0
    """)
    a.label("a_fb1")
    a(f"""
    buffer_load_dwordx4 {vr(vK[0],4)}, v{vL16}, {sr(sWS,4)}, s{sWR} offen sc1
    buffer_load_dwordx4 {vr(vK[0]+4,4)}, v{vL16}, {sr(sWS,4)}, s{sWR} offen offset:1024 sc1
    s_waitcnt vmcnt(0)
    v_mfma_f32_32x32x16_bf16 {vr(vS[0],16)}, {vr(vK[0],4)}, {vr(vQ,4)}, 0
    v_mfma_f32_32x32x16_bf16 {vr(vS[0],16)}, {vr(vK[0]+4,4)}, {vr(vQ+4,4)}, {vr(vS[0],16)}
    s_nop 15
    s_nop 3
    """)
    for i in range(0, 16, 2):
        a(f"v_max3_f32 v{vT0}, v{vT0}, v{vS[0]+i}, v{vS[0]+i+1}")
    a(f"""
    s_add_u32 s{sWR}, s{sWR}, 2048
    s_add_u32 s{sIT}, s{sIT}, 1
    s_cmp_lt_u32 s{sIT}, 64
    s_cbranch_scc1 a_fb1
    v_mov_b32 v{vT0+1}, v{vT0}
    s_nop 1
    v_permlane32_swap_b32 v{vT0}, v{vT0+1}
    s_nop 1
    v_max_f32 v{vT0}, v{vT0}, v{vT0+1}
    """)
    for i in range(16):
        a(f"v_sub_f32 v{vNM+i}, 0, v{vT0}")
        a(f"v_mov_b32 v{vO+i}, 0")
    a(f"""
    s_add_u32 m0, s{sLB}, 12288
    v_add_u32 v{vKA}, 12288, v{vKAb}
    v_add_u32 v{vVA}, 12288, v{vVAb}
    s_mov_b32 s{sWR}, s{sKV}
    s_mov_b32 s{sIT}, 0
    """)
    a.label("a_fb2")
    dma_tile()
    a("s_waitcnt vmcnt(0)")
    read_k(0, vKA)
    for x in read_v_ins(0, vVA): a(x)
    a(f"""
    s_waitcnt lgkmcnt(0)
    v_mfma_f32_32x32x16_bf16 {vr(vS[0],16)}, {vr(vK[0],4)}, {vr(vQ,4)}, {vr(vNM,16)}
    v_mfma_f32_32x32x16_bf16 {vr(vS[0],16)}, {vr(vK[0]+4,4)}, {vr(vQ+4,4)}, {vr(vS[0],16)}
    s_nop 15
    s_nop 3
    """)
    for i in range(16):
        a(f"v_exp_f32 v{vS[0]+i}, v{vS[0]+i}")
    a("s_nop 0")
    for i in range(8):
        a(f"v_cvt_pk_bf16_f32 v{vP[0]+i}, v{vS[0]+2*i}, v{vS[0]+2*i+1}")
    a(f"""
    s_nop 1
    v_mfma_f32_32x32x16_bf16 {vr(vO,16)}, {vr(vV[0],4)}, {vr(vP[0],4)}, {vr(vO,16)}
    v_mfma_f32_32x32x16_bf16 {vr(vO,16)}, {vr(vV[0]+4,4)}, {vr(vP[0]+4,4)}, {vr(vO,16)}
    s_add_u32 s{sWR}, s{sWR}, 2048
    s_add_u32 s{sIT}, s{sIT}, 1
    s_cmp_lt_u32 s{sIT}, 64
    s_cbranch_scc1 a_fb2
    s_nop 15
    s_nop 3
    s_mov_b32 s{sFB}, 1
    s_branch a_norm
    """)

def gen_gemm2(a):
    sMT, sNT, sHO, sWOFF, sGB, sM = sR, sR+1, sR+2, sR+3, sR+4, sR+5
    vH0, vH1, vWD, vTR0, vTR1, vXA, vT0, vFA = 3, 4, 5, 6, 7, 8, 12, 15
    vXD = 18
    vWF = 28
    vACC = 80
    vHR = 144
    vWB = 16
    a(f"""
    s_mul_i32 s{sTMP}, s{sSL}, 37
    s_lshr_b32 s{sTMP}, s{sTMP}, 8
    s_mul_i32 s{sTMP2}, s{sTMP}, 7
    s_sub_u32 s{sNT}, s{sSL}, s{sTMP2}
    s_lshl_b32 s{sMT}, s{sXCD}, 2
    s_add_u32 s{sMT}, s{sMT}, s{sTMP}
    s_lshl_b32 s{sMT}, s{sMT}, 1
    """)
    a(f"""
    v_and_b32 v{vFA}, 31, v{vLANE}
    s_lshl_b32 s{sTMP}, s{sMT}, 4
    v_add_u32 v{vFA}, s{sTMP}, v{vFA}
    v_lshlrev_b32 v{vFA}, 3, v{vFA}
    v_add_u32 v{vFA}, {F2_OFF}, v{vFA}
    s_and_b32 s{sTMP}, s{sWAVE}, 1
    s_add_u32 s{sMT}, s{sMT}, s{sTMP}
    s_mul_i32 s{sTMP}, s{sMT}, {144*1024}
    s_add_u32 s{sTMP}, s{sTMP}, {HF_OFF}
    v_add_u32 v{vH0}, s{sTMP}, v{vL16}
    s_xor_b32 s{sTMP}, s{sMT}, 1
    s_mul_i32 s{sTMP}, s{sTMP}, {144*1024}
    s_add_u32 s{sTMP}, s{sTMP}, {HF_OFF}
    v_add_u32 v{vH1}, s{sTMP}, v{vL16}
    s_mul_i32 s{sHO}, s{sWAVE}, {28*1024}
    s_lshl_b32 s{sGB}, s{sWAVE}, 14
    s_add_u32 s{sGB}, s{sGB}, {GR0}
    """)
    a(f"""
    v_lshrrev_b32 v{vT0}, 3, v{vLANE}
    v_bfe_u32 v{vT0+1}, v{vLANE}, 4, 1
    v_lshlrev_b32 v{vT0+1}, 2, v{vT0+1}
    v_and_b32 v{vT0+2}, 7, v{vLANE}
    v_xor_b32 v{vT0+2}, v{vT0+2}, v{vT0+1}
    v_lshlrev_b32 v{vT0+2}, 4, v{vT0+2}
    s_movk_i32 s{sTMP}, 896
    v_mad_u32_u24 v{vWD}, v{vT0}, s{sTMP}, v{vT0+2}
    s_mul_i32 s{sWOFF}, s{sWAVE}, {448*896}
    s_lshl_b32 s{sTMP}, s{sNT}, 7
    s_add_u32 s{sWOFF}, s{sWOFF}, s{sTMP}
    """)
    a(f"""
    v_lshrrev_b32 v{vT0}, 5, v{vLANE}
    v_bfe_u32 v{vT0+1}, v{vLANE}, 2, 2
    v_lshl_add_u32 v{vT0}, v{vT0}, 2, v{vT0+1}
    v_lshlrev_b32 v{vTR0}, 7, v{vT0}
    v_bfe_u32 v{vT0+1}, v{vLANE}, 3, 1
    s_lshr_b32 s{sTMP}, s{sWAVE}, 1
    v_xor_b32 v{vT0+1}, s{sTMP}, v{vT0+1}
    v_lshl_add_u32 v{vTR0}, v{vT0+1}, 6, v{vTR0}
    v_bfe_u32 v{vT0+1}, v{vLANE}, 4, 1
    v_lshl_add_u32 v{vTR0}, v{vT0+1}, 5, v{vTR0}
    v_and_b32 v{vT0+1}, 3, v{vLANE}
    v_lshl_add_u32 v{vTR0}, v{vT0+1}, 3, v{vTR0}
    v_xor_b32 v{vTR1}, 64, v{vTR0}
    v_add_u32 v{vTR0}, s{sGB}, v{vTR0}
    v_add_u32 v{vTR1}, s{sGB}, v{vTR1}
    s_lshl_b32 s{sNT}, s{sNT}, 1
    s_add_u32 s{sNT}, s{sNT}, s{sTMP}
    """)
    a(f"""
    s_lshl_b32 s{sTMP}, s{sMT32}, 4
    s_add_u32 s{sTMP}, s{sTMP}, s{sCOL}
    s_lshl_b32 s{sTMP}, s{sTMP}, 3
    s_add_u32 s{sTMP}, s{sTMP}, {F2_OFF}
    v_mov_b32 v{vXA}, 0
    v_mov_b32 v220, 0
    v_mov_b32 v208, 0
    s_waitcnt vmcnt(0)
    """)
    publish_flag(a, vT0, sTMP)
    a(f"""
    s_cmp_ge_u32 s{sSL}, 28
    s_cbranch_scc1 k_end
    """)
    stamp(a, 13)
    if DRY:
        for i, r in enumerate((sNT, sHO, sWOFF)):
            a(f"s_mov_b32 s{sR+10+i}, s{r}")
        dry_by_wave(a, [["g_pre", "g_tail2"], ["g_loop"], ["g_p3"], ["g_tail"]], "dw3")
        for i, r in enumerate((sNT, sHO, sWOFF)):
            a(f"s_mov_b32 s{r}, s{sR+10+i}")
        a("s_waitcnt lgkmcnt(0)")
        for i in range(4): a(f"v_mov_b32 v{vWF+i}, 0")
        a("s_nop 1")
        for j in range(4):
            a(f"v_mfma_f32_32x32x16_bf16 {vr(vACC+16*j,16)}, {vr(vWF,4)}, {vr(vWF,4)}, 0")
    set_srd(a, sB, pW2, DFF*D*2)
    stamp(a, 20)
    poll_flags(a, vFA, vT0)
    stamp(a, 14)
    a.label("g_pre")
    def loads(k):
        f = vHR + 8*k
        a(f"s_add_u32 m0, s{sGB}, {2048*k}")
        a(f"s_add_u32 s{sTMP}, s{sWOFF}, {8*896 - 1024}")
        a(f"buffer_load_dwordx4 v{vWD}, {sr(sB,4)}, s{sWOFF} offen lds")
        a(f"buffer_load_dwordx4 v{vWD}, {sr(sB,4)}, s{sTMP} offen offset:1024 lds")
        a(f"buffer_load_dwordx4 {vr(f,4)}, v{vH0}, {sr(sWS,4)}, s{sHO} offen sc1")
        a(f"buffer_load_dwordx4 {vr(f+4,4)}, v{vH1}, {sr(sWS,4)}, s{sHO} offen sc1")
        a(f"s_add_u32 s{sHO}, s{sHO}, 1024")
        a(f"s_add_u32 s{sWOFF}, s{sWOFF}, {16*896}")
    def rdw(k, dst):
        for t, ad in ((0, vTR0), (1, vTR1)):
            for p in range(2):
                a(f"ds_read_b64_tr_b16 {vr(dst+4*t+2*p,2)}, v{ad} offset:{2048*k + 1024*p}")
    def mfmas(w, h):
        for j in range(4):
            a(f"v_mfma_f32_32x32x16_bf16 {vr(vACC+16*j,16)}, {vr(w+4*(j>>1),4)}, {vr(h+4*(j&1),4)}, {vr(vACC+16*j,16)}")
    for k in range(7):
        loads(k)
    a(f"s_mov_b32 s{sIT}, 0")
    dry_end(a)
    a.label("g_loop")
    a(f"""
    s_cmp_eq_u32 s{sIT}, 3
    s_cselect_b32 s{sHO}, {OOB:#x}, s{sHO}
    s_cselect_b32 s{sWOFF}, {OOB:#x}, s{sWOFF}
    """)
    for k in range(7):
        a("s_waitcnt vmcnt(24)")
        rdw(k, vWF)
        a("s_waitcnt lgkmcnt(0)")
        mfmas(vWF, vHR + 8*k)
        loads(k)
    dry_end(a)
    a(f"""
    s_add_u32 s{sIT}, s{sIT}, 1
    s_cmp_lt_u32 s{sIT}, 4
    s_cbranch_scc1 g_loop
    """)
    a.label("g_p3")
    a("s_waitcnt vmcnt(0)")
    stamp(a, 15)
    vFA3, vXD3, vOA = 208, 212, 220
    set_srd(a, sB, pWO, D*D*2)
    set_srd(a, sA, pX, S*D*2)
    set_srd(a, sCc, pOUT, S*D*2)
    a(f"""
    s_mul_i32 s{sWOFF}, s{sWAVE}, {4*28*896}
    s_lshr_b32 s{sTMP}, s{sNT}, 1
    s_lshl_b32 s{sTMP}, s{sTMP}, 7
    s_add_u32 s{sWOFF}, s{sWOFF}, s{sTMP}
    """)
    for k in range(8):
        off = (28*(k >> 1) + 16*(k & 1)) * 896
        a(f"s_add_u32 m0, s{sGB}, {2048*k}")
        a(f"s_add_u32 s{sTMP}, s{sWOFF}, {off}")
        a(f"buffer_load_dwordx4 v{vWD}, {sr(sB,4)}, s{sTMP} offen lds")
        a(f"s_add_u32 s{sTMP}, s{sWOFF}, {off + 8*896 - 1024}")
        a(f"buffer_load_dwordx4 v{vWD}, {sr(sB,4)}, s{sTMP} offen offset:1024 lds")
    a(f"""
    v_add_u32 v{vFA3}, {F3_OFF - F2_OFF}, v{vFA}
    v_and_b32 v{vOA}, 31, v{vLANE}
    s_lshl_b32 s{sTMP}, s{sMT}, 5
    v_add_u32 v{vOA}, s{sTMP}, v{vOA}
    s_movk_i32 s{sTMP}, 896
    v_mul_lo_u32 v{vOA}, v{vOA}, s{sTMP}
    v_lshrrev_b32 v{vT0}, 5, v{vLANE}
    v_lshl_add_u32 v{vXA}, v{vT0}, 3, v{vOA}
    v_lshl_add_u32 v{vOA}, v{vT0}, 4, v{vOA}
    s_lshl_b32 s{sNT}, s{sNT}, 6
    """)
    for g in range(4):
        a(f"buffer_load_dwordx2 {vr(vXD3+2*g,2)}, v{vXA}, {sr(sA,4)}, s{sNT} offen offset:{16*g}")
    a("s_waitcnt vmcnt(0)")
    for k in range(8):
        rdw(k, vWB + 8*k)
        if k % 2 == 1: a("s_waitcnt lgkmcnt(0)")
    for g in range(4):
        for p in range(2):
            a(f"v_lshlrev_b32 v{vT0}, 16, v{vXD3+2*g+p}")
            a(f"v_and_b32 v{vT0+1}, 0xffff0000, v{vXD3+2*g+p}")
            a(f"v_add_f32 v{vACC+4*g+2*p}, v{vACC+4*g+2*p}, v{vT0}")
            a(f"v_add_f32 v{vACC+4*g+2*p+1}, v{vACC+4*g+2*p+1}, v{vT0+1}")
    a(f"""
    s_lshl_b32 s{sHO}, s{sWAVE}, 13
    s_add_u32 s{sHO}, s{sHO}, {112*1024}
    s_add_u32 s{sTMP2}, s{sHO}, 4096
    """)
    stamp(a, 16)
    dry_end(a)
    a.label("g_tail")
    poll_flags(a, vFA3, vT0)
    stamp(a, 17)
    for k in range(8):
        f = vHR + 8*k
        so = sHO if k < 4 else sTMP2
        a(f"buffer_load_dwordx4 {vr(f,4)}, v{vH0}, {sr(sWS,4)}, s{so} offen offset:{1024*(k%4)} sc1")
        a(f"buffer_load_dwordx4 {vr(f+4,4)}, v{vH1}, {sr(sWS,4)}, s{so} offen offset:{1024*(k%4)} sc1")
    for k in range(8):
        a(f"s_waitcnt vmcnt({14 - 2*k})")
        mfmas(vWB + 8*k, vHR + 8*k)
    stamp(a, 18)
    a("s_nop 7")
    a("s_nop 3")
    reduce_write(a, vACC, vT0, sGB)
    a("s_waitcnt lgkmcnt(0)")
    prog_set(a, vT0, CP, 12)
    prog_wait(a, vT0, CP, 12, sleep=0)
    dry_end(a)
    a.label("g_tail2")
    reduce_read(a, vACC, vHR, vT0, GR0)
    stamp(a, 19)
    for i in range(8):
        a(f"v_cvt_pk_bf16_f32 v{vHR+i}, v{vACC+2*i}, v{vACC+2*i+1}")
    a("s_nop 1")
    for q in range(2):
        a(f"v_permlane32_swap_b32 v{vHR+4*q}, v{vHR+4*q+2}")
        a(f"v_permlane32_swap_b32 v{vHR+4*q+1}, v{vHR+4*q+3}")
    a("s_nop 1")
    for q in range(2):
        a(f"buffer_store_dwordx4 {vr(vHR+4*q,4)}, v{vOA}, {sr(sCc,4)}, s{sNT} offen offset:{32*q}")
    dry_end(a)
    stamp_flush(a, 0, sWS, sW8, 20, wpw=8)
```

```python
import sys, math, struct, os
from asmlib import *

NAME = "parallel_sum__mha_block__dense_activation_relu__prompt"
S, D, H, DH, DFF = 2048, 448, 16, 28, 1792
QF_OFF = 0
KF_OFF = 2 << 20
VF_OFF = 4 << 20
HF_OFF = 7 << 20
FL_OFF = 17 << 20
F1_OFF, F2_OFF, F3_OFF = FL_OFF, FL_OFF + 131072, FL_OFF + 131072 + 32768
WS_SIZE = 0x10000000
OOB = 0x40000000
BIAS = 80.0
SPIN_G = 1 << 14
SPIN_L = 1 << 20
def env(k, d): return int(os.environ.get(k, str(d)))
DRY = env("DRY", 7)

def f32bits(x): return struct.unpack("<I", struct.pack("<f", x))[0]
QSCALE = math.log2(math.e) / math.sqrt(DH)

class LgkmTracker:
    def __init__(self, a): self.a = a; self.q = []
    def issue(self, tag): self.q.append(tag)
    def need(self, tag):
        if tag in self.q:
            idx = len(self.q) - 1 - self.q[::-1].index(tag)
            n = min(len(self.q) - 1 - idx, 13)
            self.a(f"s_waitcnt lgkmcnt({n})")
            self.q = self.q[len(self.q) - n:] if n > 0 else []

SLOT = 28672
SL0 = 12288
WB = SL0 + SLOT
ATT0 = 0
GR0 = 90112
CTL = SL0 + 5*SLOT
CSA, CSB_, STA = CTL + 4096, CTL + 4608, CTL + 5120
LP, CP, AP, SP = CTL + 6144, CTL + 6160, CTL + 6176, CTL + 6192
LDS_TOTAL = 163840

pX, pWQ, pWO, pW1, pW2, pOUT, pDBG = 4, 6, 8, 12, 14, 16, 18
sWS, sA, sB, sCc = 20, 24, 28, 32
sXCD, sSL, sW8, sWAVE, sMT32, sCOL, sTMP, sTMP2, sTMP3, sIT = 36, 37, 38, 39, 40, 41, 42, 43, 44, 45
sR = 46
sTAG, sSPIN, sRET = 76, 78, 90
vLANE, vL16, vPW, vPR, vF0 = 1, 2, 9, 10, 0

def dry_end(a):
    if DRY: a("s_cbranch_execz dry_ret")
def dry_call(a, label):
    a(f"s_call_b64 s[{sRET}:{sRET+1}], {label}")
def dry_by_wave(a, plans, name):
    if not (DRY >> (int(name[-1]) - 1)) & 1: return
    a("s_mov_b64 exec, 0")
    for w in range(4):
        if w < 3:
            a(f"s_cmp_lg_u32 s{sWAVE}, {w}")
            a(f"s_cbranch_scc1 {name}_{w+1}")
        for lbl in plans[w]:
            dry_call(a, lbl)
        if w < 3:
            a(f"s_branch {name}_end")
            a.label(f"{name}_{w+1}")
    a.label(f"{name}_end")
    a("s_mov_b64 exec, -1")

def prog_wait(a, vD, base, target, sleep=1):
    lp = a.newlabel("lw"); dn = a.newlabel("lwd")
    a(f"s_mov_b32 s{sSPIN}, {SPIN_L}")
    a.label(lp)
    a(f"""
    ds_read_b32 v{vD}, v{vPR} offset:{base - CTL}
    s_waitcnt lgkmcnt(0)
    v_cmp_gt_u32 vcc, {target}, v{vD}
    s_cbranch_vccz {dn}
    s_sleep {sleep}
    s_sub_u32 s{sSPIN}, s{sSPIN}, 1
    s_cbranch_scc0 {lp}
    """)
    a.label(dn)
def prog_set(a, vD, base, val):
    a(f"v_mov_b32 v{vD}, {val}")
    a(f"ds_write_b32 v{vPW}, v{vD} offset:{base - CTL}")
def get_tag(a, vD):
    lp = a.newlabel("tg"); dn = a.newlabel("tgd")
    a(f"s_mov_b32 s{sSPIN}, {SPIN_G}")
    a.label(lp)
    a(f"""
    buffer_load_dwordx2 {vr(vD,2)}, v{vF0}, {sr(sCc,4)}, 0 offen sc1
    s_waitcnt vmcnt(0)
    v_readfirstlane_b32 s{sTAG}, v{vD}
    v_readfirstlane_b32 s{sTAG+1}, v{vD+1}
    s_cbranch_execz {dn}
    s_cmp_lg_u32 s{sTAG}, 0
    s_cbranch_scc1 {dn}
    s_sub_u32 s{sSPIN}, s{sSPIN}, 1
    s_cbranch_scc0 {lp}
    """)
    a.label(dn)
def poll_flags(a, vFA, vD):
    lp = a.newlabel("pf"); dn = a.newlabel("pfd")
    a(f"s_mov_b32 s{sSPIN}, {SPIN_G}")
    a.label(lp)
    a(f"""
    buffer_load_dwordx2 {vr(vD,2)}, v{vFA}, {sr(sWS,4)}, 0 offen sc1
    s_waitcnt vmcnt(0)
    v_cmp_ne_u64 vcc, {sr(sTAG,2)}, {vr(vD,2)}
    s_cbranch_vccz {dn}
    s_sleep {env('PSLEEP', 3)}
    s_sub_u32 s{sSPIN}, s{sSPIN}, 1
    s_cbranch_scc0 {lp}
    """)
    a.label(dn)
GC = CTL + 6208
def publish_flag(a, vD, vMB, gidx):
    sk = a.newlabel("pub")
    a(f"""
    s_lshl_b32 s{sSPIN}, s{sWAVE}, 2
    v_mov_b32 v{vD+1}, 1
    v_subrev_u32 v{vD}, s{sSPIN}, v{vPW}
    ds_add_rtn_u32 v{vD+1}, v{vD}, v{vD+1} offset:{GC + 4*gidx - CTL}
    v_mov_b32 v{vD}, s{sTAG}
    s_waitcnt lgkmcnt(0)
    v_readfirstlane_b32 s{sSPIN}, v{vD+1}
    v_mov_b32 v{vD+1}, s{sTAG+1}
    s_cmp_lg_u32 s{sSPIN}, 3
    s_cbranch_scc1 {sk}
    buffer_store_dwordx2 {vr(vD,2)}, v{vMB}, {sr(sWS,4)}, 0 offen sc1
    """)
    a.label(sk)
def mb23_addr(a, vMB, sBLK, sSLOT_, base):
    a(f"""
    s_mul_i32 s{sTMP}, s{sBLK}, {14*128}
    s_lshl_b32 s{sTMP2}, s{sSLOT_}, 3
    s_add_u32 s{sTMP}, s{sTMP}, s{sTMP2}
    s_add_u32 s{sTMP}, s{sTMP}, {base}
    v_lshlrev_b32 v{vMB}, 7, v{vLANE}
    v_add_u32 v{vMB}, s{sTMP}, v{vMB}
    v_cmp_lt_u32 vcc, 13, v{vLANE}
    v_mov_b32 v{vMB+1}, {OOB:#x}
    s_nop 0
    v_cndmask_b32 v{vMB}, v{vMB}, v{vMB+1}, vcc
    """)
def set_srd(a, srd, ptr, size):
    a(f"""
    s_mov_b32 s{srd}, s{ptr}
    s_mov_b32 s{srd+1}, s{ptr+1}
    s_mov_b32 s{srd+2}, {size}
    """)

def gen(a):
    KN = NAME + "_kernel"
    a.label(KN)
    a(f"""
    s_cmp_ge_u32 s2, 256
    s_cbranch_scc1 k_end
    """)
    stamp(a, 0)
    a(f"""
    s_load_dwordx4 s[4:7], s[0:1], 0
    s_load_dwordx2 s[8:9], s[0:1], 16
    s_load_dwordx8 s[12:19], s[0:1], 32
    s_load_dwordx2 s[{sWS}:{sWS+1}], s[0:1], 64
    v_lshlrev_b32 v7, 3, v0
    v_add_u32 v7, {CTL + 4096}, v7
    v_mov_b32 v4, 0
    v_mov_b32 v5, 0
    ds_write_b64 v7, v[4:5]
    v_and_b32 v{vLANE}, 63, v0
    v_lshrrev_b32 v7, 6, v0
    v_lshlrev_b32 v{vL16}, 4, v{vLANE}
    v_readfirstlane_b32 s{sW8}, v7
    s_and_b32 s{sXCD}, s2, 7
    s_lshr_b32 s{sSL}, s2, 3
    s_mov_b32 s{sWS+2}, {WS_SIZE:#x}
    s_mov_b32 s{sWS+3}, 0x00020000
    s_mov_b32 s{sA+3}, 0x00020000
    s_mov_b32 s{sB+3}, 0x00020000
    s_mov_b32 s{sCc+3}, 0x00020000
    s_and_b32 s{sWAVE}, s{sW8}, 3
    s_and_b32 s{sMT32}, s{sXCD}, 1
    s_lshl_b32 s{sMT32}, s{sMT32}, 3
    s_and_b32 s{sTMP}, s{sSL}, 7
    s_add_u32 s{sMT32}, s{sMT32}, s{sTMP}
    s_lshl_b32 s{sMT32}, s{sMT32}, 2
    s_add_u32 s{sMT32}, s{sMT32}, s{sWAVE}
    s_lshr_b32 s{sCOL}, s{sXCD}, 1
    s_lshl_b32 s{sCOL}, s{sCOL}, 2
    s_lshr_b32 s{sTMP}, s{sSL}, 3
    s_add_u32 s{sCOL}, s{sCOL}, s{sTMP}
    v_and_b32 v{vPR}, 3, v{vLANE}
    v_lshlrev_b32 v{vPR}, 2, v{vPR}
    v_add_u32 v{vPR}, {CTL}, v{vPR}
    s_lshl_b32 s{sTMP}, s{sWAVE}, 2
    s_add_u32 s{sTMP}, s{sTMP}, {CTL}
    v_min_u32 v{vF0}, 1, v{vLANE}
    v_lshlrev_b32 v{vPW}, 9, v{vF0}
    v_lshl_add_u32 v{vPW}, v{vLANE}, 2, v{vPW}
    v_add_u32 v{vPW}, s{sTMP}, v{vPW}
    v_lshlrev_b32 v{vF0}, 30, v{vF0}
    s_cmp_lt_u32 s{sW8}, 4
    s_cbranch_scc1 k_comp
    """)
    gen_loader(a)
    a("s_branch c_passb")
    a.label("k_comp")
    gen_comp(a)
    gen_gemm2(a)
    a("s_endpgm")
    a.label("x_attn")
    gen_attn(a)
    a.label("k_end")
    a("s_endpgm")
    if DRY:
        a.label("dry_ret")
        a(f"s_setpc_b64 s[{sRET}:{sRET+1}]")
    return dict(name=KN, grid=256, block=512, lds=LDS_TOTAL, nvgpr=256, accum=256)

def gen_loader(a):
    vXD, vXD2, vWQ, vB1, vT = 7, 8, 3, 13, 14
    vSX, vAX = 20, 22
    vRD = 40
    vXB = 144
    sXOFF, sQOFF, sSLW, sMX, sMQ, sBOFF, sIDX, sSLS, sMB = [sR + i for i in range(9)]
    a(f"""
    v_lshrrev_b32 v{vT}, 3, v{vLANE}
    v_lshrrev_b32 v{vT+1}, 4, v{vLANE}
    v_and_b32 v{vT+2}, 7, v{vLANE}
    v_xor_b32 v{vT+2}, v{vT+2}, v{vT+1}
    v_lshlrev_b32 v{vT+2}, 4, v{vT+2}
    s_movk_i32 s{sTMP}, 896
    v_mad_u32_u24 v{vXD}, v{vT}, s{sTMP}, v{vT+2}
    v_xor_b32 v{vXD2}, 64, v{vXD}
    s_mul_i32 s{sXOFF}, s{sMT32}, {32*896}
    s_lshl_b32 s{sMX}, s{sWAVE}, 12
    s_mul_i32 s{sMQ}, s{sWAVE}, 3072
    s_add_u32 s{sMQ}, s{sMQ}, 16384
    s_mul_i32 s{sQOFF}, s{sWAVE}, {16*2688}
    s_mul_i32 s{sTMP}, s{sCOL}, 168
    s_and_b32 s{sTMP}, s{sTMP}, -16
    s_add_u32 s{sQOFF}, s{sQOFF}, s{sTMP}
    s_movk_i32 s{sTMP}, 5462
    s_movk_i32 s{sTMP2}, 2688
    """)
    for i in range(3):
        a(f"""
        v_add_u32 v{vT}, {64*i}, v{vLANE}
        v_mul_u32_u24 v{vT+2}, s{sTMP}, v{vT}
        v_lshrrev_b32 v{vT+2}, 16, v{vT+2}
        v_mul_u32_u24 v{vT+3}, 12, v{vT+2}
        v_sub_u32 v{vT}, v{vT}, v{vT+3}
        v_lshlrev_b32 v{vT}, 4, v{vT}
        v_mad_u32_u24 v{vWQ+i}, v{vT+2}, s{sTMP2}, v{vT}
        """)
    a(f"""
    v_mov_b32 v{vB1}, 0
    s_mov_b32 s{sSLW}, {SL0 + 4*SLOT}
    s_mov_b32 s{sSLS}, {SL0 + 4*SLOT}
    s_mov_b32 s{sIT}, 0
    s_waitcnt lgkmcnt(0)
    s_barrier
    """)
    set_srd(a, sA, pX, S*D*2)
    set_srd(a, sB, pWQ, D*3*D*2)
    set_srd(a, sCc, pW1, D*DFF*2)
    stamp(a, 1)
    LDD = env("LDD", 1)
    a.label("ld_loop")
    a(f"""
    s_cmp_lt_u32 s{sIT}, 5
    s_cbranch_scc1 ld_isa
    s_sub_u32 s{sTMP3}, s{sIT}, 4
    """)
    BT = env("BTHROT", 99)
    if BT < 11:
        a(f"s_cmp_eq_u32 s{sIT}, {BT}")
        a(f"s_cselect_b32 s{sTMP3}, 9, s{sTMP3}")
    prog_wait(a, vT+1, CP, f"s{sTMP3}")
    a(f"""
    s_cmp_ge_u32 s{sIT}, 7
    s_cbranch_scc1 ld_isb
    """)
    a.label("ld_isa")
    a(f"s_add_u32 m0, s{sSLW}, s{sMX}")
    for i in range(4):
        a(f"s_add_u32 s{sTMP}, s{sXOFF}, {8*896*i}")
        a(f"buffer_load_dwordx4 v{vXD if i % 2 == 0 else vXD2}, {sr(sA,4)}, s{sTMP} offen lds")
        if i < 3: a("s_add_u32 m0, m0, 1024")
    a(f"s_add_u32 m0, s{sSLW}, s{sMQ}")
    a(f"s_add_u32 s{sXOFF}, s{sXOFF}, 128")
    for i in range(3):
        a(f"buffer_load_dwordx4 v{vWQ+i}, {sr(sB,4)}, s{sQOFF} offen lds")
        if i < 2:
            a("s_add_u32 m0, m0, 1024")
            a("s_nop 0")
    a(f"""
    s_add_u32 s{sQOFF}, s{sQOFF}, {64*2688}
    s_cmp_lg_u32 s{sIT}, 1
    s_cbranch_scc1 ld_post
    """)
    a(f"""
    v_lshrrev_b32 v{vT+1}, 4, v{vLANE}
    v_lshlrev_b32 v{vT+3}, 2, v{vT+1}
    v_and_b32 v{vT+2}, 15, v{vLANE}
    v_xor_b32 v{vT+2}, v{vT+2}, v{vT+3}
    v_lshlrev_b32 v{vT+3}, 4, v{vT+2}
    s_movk_i32 s{sTMP}, 3584
    v_mad_u32_u24 v{vB1}, v{vT+1}, s{sTMP}, v{vT+3}
    s_lshr_b32 s{sTMP}, s{sCOL}, 1
    s_mul_i32 s{sBOFF}, s{sTMP}, 448
    s_and_b32 s{sTMP}, s{sCOL}, 1
    s_mul_i32 s{sTMP}, s{sTMP}, 192
    s_add_u32 s{sBOFF}, s{sBOFF}, s{sTMP}
    s_mul_i32 s{sTMP}, s{sWAVE}, {28*3584}
    s_add_u32 s{sBOFF}, s{sBOFF}, s{sTMP}
    s_mul_i32 s{sMB}, s{sWAVE}, 7168
    v_and_b32 v{vT}, 31, v{vLANE}
    v_lshrrev_b32 v{vT+1}, 5, v{vLANE}
    v_bfe_u32 v{vT+2}, v{vLANE}, 1, 3
    v_xor_b32 v{vT+1}, v{vT+1}, v{vT+2}
    v_lshlrev_b32 v{vT+1}, 4, v{vT+1}
    v_lshl_add_u32 v{vSX}, v{vT}, 7, v{vT+1}
    v_add_u32 v{vSX}, s{sMX}, v{vSX}
    s_mov_b32 s{sIDX}, 0
    """)
    a("s_branch ld_post")
    a.label("ld_isb")
    a(f"""
    s_add_u32 m0, s{sSLW}, s{sMB}
    s_mov_b32 s{sTMP}, s{sBOFF}
    """)
    for i in range(7):
        a(f"buffer_load_dwordx4 v{vB1}, {sr(sCc,4)}, s{sTMP} offen lds")
        if i < 6:
            a("s_add_u32 m0, m0, 1024")
            a(f"s_add_u32 s{sTMP}, s{sTMP}, {4*3584}")
    a(f"s_add_u32 s{sBOFF}, s{sBOFF}, {112*3584}")
    a.label("ld_post")
    a(f"""
    s_add_u32 s{sSLW}, s{sSLW}, {SLOT}
    s_cmp_ge_u32 s{sSLW}, {CTL}
    s_cselect_b32 s{sSLW}, {SL0}, s{sSLW}
    s_cmp_lt_u32 s{sIT}, 1
    s_cbranch_scc1 ld_next
    s_sub_u32 s{sTMP}, s{sIT}, 2
    s_cmp_ge_u32 s{sTMP}, 7
    s_cbranch_scc1 ld_sig
    v_add_u32 v{vAX}, s{sSLS}, v{vSX}
    v_xor_b32 v{vAX+1}, 32, v{vAX}
    v_xor_b32 v{vAX+2}, 64, v{vAX}
    v_xor_b32 v{vAX+3}, 96, v{vAX}
    """)
    for i in range(4):
        a(f"ds_read_b128 {vr(vRD+4*i,4)}, v{vAX+i}")
    a(f"""
    s_add_u32 s{sSLS}, s{sSLS}, {SLOT}
    s_cmp_ge_u32 s{sSLS}, {CTL}
    s_cselect_b32 s{sSLS}, {SL0}, s{sSLS}
    s_waitcnt lgkmcnt(0)
    s_set_gpr_idx_on s{sIDX}, gpr_idx(DST)
    """)
    for i in range(16):
        a(f"v_mov_b32 v{vXB+i}, v{vRD+i}")
    a(f"""
    s_set_gpr_idx_off
    s_add_u32 s{sIDX}, s{sIDX}, 16
    """)
    a.label("ld_sig")
    a(f"""
    v_mov_b32 v{vT}, s{sIT}
    s_waitcnt vmcnt(7)
    ds_write_b32 v{vPW}, v{vT} offset:{LP - CTL}
    """)
    a.label("ld_next")
    if env("STL", 0) & 1: stamp_dyn(a, 20, sIT)
    a(f"""
    s_add_u32 s{sIT}, s{sIT}, 1
    s_cmp_lt_u32 s{sIT}, 11
    s_cbranch_scc1 ld_loop
    """)
    stamp(a, 4)

def gen_comp(a):
    vHH, vHHI, vMASK, vCONST, vXR, vXRC = 3, 4, 5, 6, 7, 8
    vNM, vRSTD, vA = 12, 13, 14
    vPG = 15
    vTB = 17
    vTG = 18
    vTN = 20
    vCP = 33
    vTC = 21
    vS0 = 25
    vCSR, vT1, vSEL = 35, 16, 28
    vZ = 36
    vFR = [40, 60]
    vACC = 80
    vXB = 144
    sDST, sSCL, sCSO = sR, sR+4, sR+8
    sRELU, sPASS, sSLOT, sONE, sIDX = sR+12, sR+13, sR+14, sR+15, sR+16
    a("""
    s_waitcnt lgkmcnt(0)
    s_barrier
    """)
    set_srd(a, sCc, pDBG, 256)
    set_srd(a, sA, pX, S*D*2)
    set_srd(a, sB, pW2, DFF*D*2)
    stamp(a, 1)
    a(f"""
    s_or_b32 s{sTMP}, s2, s{sWAVE}
    s_cmp_lg_u32 s{sTMP}, 0
    s_cbranch_scc1 c_notag
    s_memrealtime s[{sTAG}:{sTAG+1}]
    s_waitcnt lgkmcnt(0)
    s_or_b32 s{sTAG}, s{sTAG}, 1
    v_mov_b32 v{vTG}, s{sTAG}
    v_mov_b32 v{vTG+1}, s{sTAG+1}
    buffer_store_dwordx2 {vr(vTG,2)}, v{vF0}, {sr(sCc,4)}, 0 offen sc1
    """)
    a.label("c_notag")
    a(f"v_mov_b32 v{vTB}, {OOB:#x}")
    dry_by_wave(a, [["c_epi"], ["c_epi2", "c_posta"], ["c_loopa", "c_epi_end"], ["c_passb"]], "dw1")
    stamp(a, 2)
    a(f"""
    v_lshrrev_b32 v{vHH}, 5, v{vLANE}
    v_bfe_u32 v{vS0+1}, v{vLANE}, 2, 2
    v_bfe_u32 v{vS0+2}, v{vLANE}, 4, 1
    v_and_b32 v{vS0+3}, 3, v{vLANE}
    v_lshlrev_b32 v{vS0+2}, 5, v{vS0+2}
    v_lshl_add_u32 v{vS0+2}, v{vS0+3}, 3, v{vS0+2}
    v_lshl_add_u32 v{vS0+4}, v{vHH}, 3, v{vS0+1}
    s_movk_i32 s{sTMP}, 192
    v_mad_u32_u24 v{vTB}, v{vS0+4}, s{sTMP}, v{vS0+2}
    s_and_b32 s{sTMP}, s{sCOL}, 1
    s_lshl_b32 s{sTMP}, s{sTMP}, 3
    s_add_u32 s{sTMP}, s{sTMP}, 16384
    v_add_u32 v{vTB}, s{sTMP}, v{vTB}
    v_mov_b32 v{vZ}, 0
    v_mov_b32 v{vZ+1}, 0
    v_mov_b32 v{vZ+2}, 0
    v_mov_b32 v{vZ+3}, 0
    v_and_b32 v{vS0+5}, 31, v{vLANE}
    v_bfe_u32 v{vS0+6}, v{vLANE}, 1, 3
    v_xor_b32 v{vS0+6}, v{vS0+6}, v{vHH}
    v_lshlrev_b32 v{vS0+6}, 4, v{vS0+6}
    v_mfma_f32_32x32x16_bf16 {vr(vACC,16)}, {vr(vZ,4)}, {vr(vZ,4)}, 0
    v_lshl_add_u32 v{vXR}, v{vS0+5}, 7, v{vS0+6}
    s_lshl_b32 s{sTMP}, s{sWAVE}, 12
    v_add_u32 v{vXR}, s{sTMP}, v{vXR}
    v_lshlrev_b32 v{vCSR}, 4, v{vHH}
    v_add_u32 v{vCSR}, {CSA}, v{vCSR}
    v_lshlrev_b32 v{vT1}, 8, v{vS0+4}
    v_mfma_f32_32x32x16_bf16 {vr(vACC+16,16)}, {vr(vZ,4)}, {vr(vZ,4)}, 0
    v_add_u32 v{vT1}, v{vT1}, v{vS0+2}
    v_lshlrev_b32 v{vS0+7}, 6, v{vS0+1}
    v_or_b32 v{vT1}, v{vT1}, v{vS0+7}
    v_mfma_f32_32x32x16_bf16 {vr(vACC+32,16)}, {vr(vZ,4)}, {vr(vZ,4)}, 0
    v_sub_u32 v{vHHI}, v{vHH}, 1
    v_sub_u32 v{vHH}, 0, v{vHH}
    v_mov_b32 v{vMASK}, v{vHHI}
    v_and_b32 v{vCONST}, 0x3f80, v{vHH}
    s_mov_b32 s{sRELU}, 0x80008000
    s_mov_b32 s{sONE}, 0x3f803f80
    s_mov_b32 s{sIT}, 1
    s_mov_b32 s{sSLOT}, {SL0 + 4*SLOT}
    s_mov_b32 s{sIDX}, 0
    s_mul_i32 s{sTMP2}, s{sCOL}, 3
    s_cmp_eq_u32 s{sWAVE}, 3
    s_cselect_b32 s{sTMP3}, 0, s{sWAVE}
    v_mov_b32 v{vS0}, v{vTB}
    """)
    for j in range(3):
        a(f"""
        s_add_u32 s{sTMP}, s{sTMP2}, s{sTMP3}
        s_cmp_lt_u32 s{sTMP}, 16
        s_cselect_b32 s{sSCL+j}, {f32bits(QSCALE):#x}, 1.0
        s_lshl_b32 s{sTMP}, s{sTMP}, 6
        s_add_u32 s{sTMP}, s{sTMP}, s{sMT32}
        s_lshl_b32 s{sDST+j}, s{sTMP}, 11
        s_lshl_b32 s{sCSO+j}, s{sTMP3}, 7
        s_mul_i32 s{sTMP}, s{sTMP3}, 56
        v_add_u32 v{vTB+j}, s{sTMP}, v{vS0}
        s_add_u32 s{sTMP3}, s{sTMP3}, 1
        s_cmp_eq_u32 s{sTMP3}, 3
        s_cselect_b32 s{sTMP3}, 0, s{sTMP3}
        v_add_u32 v{vTC+j}, s{sSLOT}, v{vTB+j}
        """)
    a(f"""
    s_mov_b32 s{sCSO+3}, 0
    s_mov_b32 s{sPASS}, 1
    v_add_u32 v{vXRC}, s{sSLOT}, v{vXR}
    v_mov_b32 v{vCP}, 0
    v_mov_b32 v{vCP+1}, 0
    v_and_b32 v{vS0}, 0x13, v{vLANE}
    v_cmp_ne_u32 vcc, 0x13, v{vS0}
    v_and_b32 v{vS0+1}, 7, v{vLANE}
    v_mul_u32_u24 v{vS0+1}, {4*192}, v{vS0+1}
    v_cndmask_b32 v{vSEL}, 0, 1, vcc
    v_lshrrev_b32 v{vS0+2}, 1, v{vLANE}
    v_and_b32 v{vS0+2}, 3, v{vS0+2}
    v_mul_u32_u24 v{vS0+2}, {8*192}, v{vS0+2}
    v_add_u32 v{vS0+1}, v{vS0+1}, v{vS0+2}
    v_mov_b32 v{vS0+5}, s{sONE}
    v_mov_b32 v{vS0+6}, s{sONE}
    ds_write_b64 v{vS0+1}, {vr(vS0+5,2)}
    v_mul_u32_u24 v{vTB+1}, v{vSEL}, v{vTB+1}
    v_mad_u32_u24 v{vTC+1}, v{vSEL}, s{sSLOT}, v{vTB+1}
    """)
    for i in range(4, 8):
        a(f"v_mov_b32 v{vS0+i}, 0")
    prog_wait(a, vPG, LP, env("AWAIT", 1))
    stamp(a, 3)
    lg = LgkmTracker(a)
    def rdW(q, j):
        f = vFR[q % 2]
        for p in range(2):
            a(f"ds_read_b64_tr_b16 {vr(f+4*j+2*p,2)}, v{vTC+j} offset:{(16*q+4*p)*192}")
            lg.issue(("w", q % 2, j))
    def rdX(q):
        f = vFR[q % 2]
        if q == 0:
            a(f"ds_read_b128 {vr(f+16,4)}, v{vXRC}")
        else:
            a(f"v_xor_b32 v{vTN}, {32*q}, v{vXRC}")
            a(f"ds_read_b128 {vr(f+16,4)}, v{vTN}")
        lg.issue(("x", q % 2))
    for q in range(2):
        rdW(q, 0); rdW(q, 1); rdW(q, 2); rdX(q)
    entry_q = list(lg.q)
    a.raw(".p2align 6")
    a.label("c_loopa")
    def savex(q, i0):
        f = vFR[q % 2]
        a(f"s_set_gpr_idx_on s{sIDX}, gpr_idx(DST)")
        for i in range(i0, i0 + 2):
            a(f"v_mov_b32 v{vXB+4*q+i}, v{f+16+i}")
        a("s_set_gpr_idx_off")
    for q in range(4):
        st = q % 2; f = vFR[st]; qn = (q + 2) % 4
        lg.need(("x", st))
        if q == 2: lg.need(("pg",))
        ND = env("NODOT", 0)
        for i in range(4):
            if not ND & 1: a(f"v_dot2c_f32_bf16 v{vCP+(i&1)}, s{sONE}, v{f+i}")
            if not ND & 4: a(f"v_dot2c_f32_bf16 v{vS0+4+i}, v{f+16+i}, v{f+16+i}")
        a(f"v_mfma_f32_32x32x16_bf16 {vr(vACC,16)}, {vr(f,4)}, {vr(f+16,4)}, {vr(vACC,16)}")
        if q == 1:
            a(f"ds_read_b32 v{vPG}, v{vPR} offset:{LP - CTL}")
            lg.issue(("pg",))
        if q == 2:
            a(f"""
            v_cmp_ge_u32 vcc, s{sIT}, v{vPG}
            s_add_u32 s{sSLOT}, s{sSLOT}, {SLOT}
            s_cmp_ge_u32 s{sSLOT}, {CTL}
            s_cselect_b32 s{sSLOT}, {SL0}, s{sSLOT}
            s_cbranch_vccnz c_la_slow
            """)
            a.label("c_la_back")
            a(f"v_add_u32 v{vTC}, s{sSLOT}, v{vTB}")
        rdW(qn, 0)
        if q == 2:
            a(f"v_mad_u32_u24 v{vTC+1}, v{vSEL}, s{sSLOT}, v{vTB+1}")

        a(f"v_mfma_f32_32x32x16_bf16 {vr(vACC+16,16)}, {vr(f+4,4)}, {vr(f+16,4)}, {vr(vACC+16,16)}")
        rdW(qn, 1)
        if q == 2: a(f"v_add_u32 v{vTC+2}, s{sSLOT}, v{vTB+2}")
        a(f"v_mfma_f32_32x32x16_bf16 {vr(vACC+32,16)}, {vr(f+8,4)}, {vr(f+16,4)}, {vr(vACC+32,16)}")
        rdW(qn, 2)
        if q == 2:
            a(f"v_add_u32 v{vXRC}, s{sSLOT}, v{vXR}")
        rdX(qn)
        if q == 3:
            prog_set(a, vTC+3, CP, f"s{sIT}")
            lg.issue(("pw",))
    q2 = [t for t in lg.q if t != ("pw",)]
    assert q2 == entry_q, (lg.q, entry_q)
    dry_end(a)
    if env("STL", 0) & 2: stamp_dyn(a, 22, sIT)
    a(f"""
    s_add_u32 s{sIT}, s{sIT}, 1
    s_cmp_lt_u32 s{sIT}, 8
    s_cbranch_scc1 c_loopa
    """)
    a.label("c_posta")
    a(f"s_setprio {env('CPRIO', 2)}")
    stamp(a, 4)
    a(f"buffer_load_dwordx2 {vr(vTG,2)}, v{vF0}, {sr(sCc,4)}, 0 offen sc1")
    a(f"""
    v_add_f32 v{vCP}, v{vCP}, v{vCP+1}
    v_add_f32 v{vS0+4}, v{vS0+4}, v{vS0+5}
    v_add_f32 v{vS0+6}, v{vS0+6}, v{vS0+7}
    v_mov_b32 v{vCP+1}, v{vCP}
    v_and_b32 v{vS0+2}, 31, v{vLANE}
    v_lshlrev_b32 v{vS0+2}, 2, v{vS0+2}
    v_permlane32_swap_b32 v{vCP}, v{vCP+1}
    v_add_f32 v{vS0+4}, v{vS0+4}, v{vS0+6}
    v_add_u32 v{vS0+2}, s{sCSO}, v{vS0+2}
    v_add_f32 v{vCP}, v{vCP}, v{vCP+1}
    v_add_u32 v{vS0+2}, {CSA}, v{vS0+2}
    v_mov_b32 v{vS0+5}, v{vS0+4}
    ds_write_b32 v{vS0+2}, v{vCP}
    v_mov_b32 v{vS0+6}, 8
    ds_write_b32 v{vPW}, v{vS0+6} offset:{CP - CTL}
    v_mov_b32 v{vS0}, v{vACC+16+12}
    v_mov_b32 v{vS0+1}, v{vACC+16+12}
    v_permlane32_swap_b32 v{vS0+4}, v{vS0+5}
    s_nop 0
    v_permlane32_swap_b32 v{vS0}, v{vS0+1}
    v_add_f32 v{vS0+4}, v{vS0+4}, v{vS0+5}
    v_mul_f32 v{vS0+4}, {f32bits(1.0/D):#x}, v{vS0+4}
    v_mul_f32 v{vNM}, {f32bits(-1.0/D):#x}, v{vS0+1}
    v_fma_f32 v{vS0+4}, -v{vNM}, v{vNM}, v{vS0+4}
    v_max_f32 v{vS0+4}, 0, v{vS0+4}
    v_add_f32 v{vS0+4}, {f32bits(1e-5):#x}, v{vS0+4}
    v_rsq_f32 v{vRSTD}, v{vS0+4}
    s_lshl_b32 s{sTMP}, s{sWAVE}, 8
    s_add_u32 s{sTMP}, s{sTMP}, {STA}
    v_and_b32 v{vS0+2}, 31, v{vLANE}
    v_lshlrev_b32 v{vS0+2}, 3, v{vS0+2}
    v_add_u32 v{vS0+2}, s{sTMP}, v{vS0+2}
    ds_write_b64 v{vS0+2}, {vr(vNM,2)}
    """)
    prog_wait(a, vPG, CP, 8, sleep=0)
    dry_end(a)
    a.label("c_epi")
    vCS2 = [vFR[0], vFR[0] + 16]
    def cs_read(j):
        a(f"v_add_u32 v{vXRC}, s{sCSO+j}, v{vCSR}")
        for g in range(4):
            a(f"ds_read_b128 {vr(vCS2[j%2]+4*g,4)}, v{vXRC} offset:{32*g}")
    cs_read(0)
    for j in range(4):
        acc = vACC + 16*j
        cs = vCS2[j % 2]
        if j == 2:
            dry_end(a)
            a.label("c_epi2")
        if j < 3:
            cs_read(j + 1)
            a("s_waitcnt lgkmcnt(4)")
        else:
            a("s_waitcnt lgkmcnt(0)")
        a(f"v_mul_f32 v{vA}, s{sSCL+j}, v{vRSTD}")
        for i in range(0, 16, 2):
            a(f"v_pk_fma_f32 {vr(acc+i,2)}, {vr(cs+i,2)}, {vr(vNM,2)}, {vr(acc+i,2)} op_sel_hi:[1,0,1]")
        for i in range(0, 16, 2):
            a(f"v_pk_mul_f32 {vr(acc+i,2)}, {vr(acc+i,2)}, {vr(vA,2)} op_sel_hi:[1,0]")
        for i in range(8):
            a(f"v_cvt_pk_bf16_f32 v{acc+i}, v{acc+2*i}, v{acc+2*i+1}")
        for i in range(8):
            a(f"v_pk_max_i16 v{acc+i}, v{acc+i}, s{sRELU}")
            if i == 5:
                a(f"buffer_store_dwordx4 {vr(acc,4)}, v{vL16}, {sr(sWS,4)}, s{sDST+j} offen sc1")
        a(f"v_and_or_b32 v{acc+6}, v{acc+6}, v{vMASK}, v{vCONST}")
        a(f"v_and_b32 v{acc+7}, v{acc+7}, v{vMASK}")
        a(f"buffer_store_dwordx4 {vr(acc+4,4)}, v{vL16}, {sr(sWS,4)}, s{sDST+j} offen offset:1024 sc1")
        if j == 2:
            if DRY: a("s_cbranch_execz c_epi3")
            a(f"s_cmp_eq_u32 s{sPASS}, 1")
            a("s_cbranch_scc1 c_epi_end")
            a.label("c_epi3")
    a("s_nop 1")
    for j in range(4):
        a(f"v_mfma_f32_32x32x16_bf16 {vr(vACC+16*j,16)}, {vr(vZ,4)}, {vr(vZ,4)}, 0")
    dry_end(a)
    a("s_branch c_done")
    a.label("c_epi_end")
    prog_set(a, vS0, CP, 9)
    stamp(a, 5)
    a(f"""
    s_mul_i32 s{sTMP}, s{sCOL}, 3
    s_lshr_b32 s{sTMP2}, s{sMT32}, 2
    v_lshrrev_b32 v{vS0+1}, 4, v{vLANE}
    v_add_u32 v{vS0+1}, s{sTMP}, v{vS0+1}
    v_and_b32 v{vS0+2}, 15, v{vS0+1}
    v_lshrrev_b32 v{vS0+1}, 4, v{vS0+1}
    v_and_b32 v{vS0+3}, 15, v{vLANE}
    v_lshl_add_u32 v{vS0+2}, v{vS0+2}, 4, v{vS0+3}
    v_lshlrev_b32 v{vS0+2}, 9, v{vS0+2}
    v_lshlrev_b32 v{vTB}, 4, v{vS0+1}
    v_add_u32 v{vTB}, s{sTMP2}, v{vTB}
    v_lshl_add_u32 v{vTB}, v{vTB}, 3, v{vS0+2}
    v_add_u32 v{vTB}, {F1_OFF}, v{vTB}
    v_cmp_eq_u32 vcc, 0, v{vS0+1}
    v_cmp_ne_u32 s[72:73], s{sTMP2}, v{vS0+3}
    s_and_b64 vcc, vcc, s[72:73]
    v_cmp_lt_u32 s[72:73], 47, v{vLANE}
    s_or_b64 vcc, vcc, s[72:73]
    v_mov_b32 v{vS0+1}, {OOB:#x}
    s_nop 0
    v_cndmask_b32 v{vTB}, v{vTB}, v{vS0+1}, vcc
    """)
    stamp(a, 8)
    a(f"""
    s_waitcnt vmcnt(0)
    v_readfirstlane_b32 s{sTAG}, v{vTG}
    v_readfirstlane_b32 s{sTAG+1}, v{vTG+1}
    s_cmp_lg_u32 s{sTAG}, 0
    s_cbranch_scc1 c_lb_tag
    """)
    get_tag(a, vS0+1)
    a.label("c_lb_tag")
    publish_flag(a, vS0+1, vTB, 0)
    stamp(a, 9)
    dry_end(a)
    if env("STS", 0):
        stamp_flush(a, 0, sWS, sW8, 20, wpw=8)
        a("s_endpgm")
    a("s_branch x_attn")
    a.label("c_passb")
    a(f"s_setprio {env('CPRIO', 2)}")
    set_srd(a, sCc, pDBG, 256)
    a(f"""
    buffer_load_dwordx2 {vr(vTG,2)}, v{vF0}, {sr(sCc,4)}, 0 offen sc1
    v_lshrrev_b32 v{vHH}, 5, v{vLANE}
    v_bfe_u32 v{vS0+1}, v{vLANE}, 2, 2
    v_bfe_u32 v{vS0+2}, v{vLANE}, 4, 1
    v_and_b32 v{vS0+3}, 3, v{vLANE}
    v_lshlrev_b32 v{vS0+2}, 5, v{vS0+2}
    v_lshl_add_u32 v{vS0+2}, v{vS0+3}, 3, v{vS0+2}
    v_lshl_add_u32 v{vS0+4}, v{vHH}, 3, v{vS0+1}
    v_mov_b32 v{vZ}, 0
    v_mov_b32 v{vZ+1}, 0
    v_mov_b32 v{vZ+2}, 0
    v_mov_b32 v{vZ+3}, 0
    v_lshlrev_b32 v{vCSR}, 4, v{vHH}
    v_add_u32 v{vCSR}, {CSA}, v{vCSR}
    v_lshlrev_b32 v{vT1}, 8, v{vS0+4}
    v_add_u32 v{vT1}, v{vT1}, v{vS0+2}
    v_lshlrev_b32 v{vS0+7}, 6, v{vS0+1}
    v_or_b32 v{vT1}, v{vT1}, v{vS0+7}
    s_lshl_b32 s{sTMP}, s{sWAVE}, 6
    v_xor_b32 v{vT1}, s{sTMP}, v{vT1}
    s_mov_b32 s{sONE}, 0x3f803f80
    """)
    for b in range(4):
        a(f"v_mfma_f32_32x32x16_bf16 {vr(vACC+16*b,16)}, {vr(vZ,4)}, {vr(vZ,4)}, 0")
        a(f"v_mov_b32 v{vS0+4+b}, 0")
        a(f"v_xor_b32 v{vTC+b}, {b << 6}, v{vT1}")
        a(f"v_add_u32 v{vTC+b}, {WB}, v{vTC+b}")
    prog_wait(a, vPG, LP, 10)
    stamp(a, 7)
    def rdB(step, b):
        f = vFR[step % 2]
        for p in range(2):
            a(f"ds_read_b64_tr_b16 {vr(f+4*b+2*p,2)}, v{vTC+b} offset:{4096*step + 1024*p}")
    def fetchx(step, i0):
        f = vFR[step % 2]
        a(f"s_set_gpr_idx_on s{sIDX}, gpr_idx(SRC0)")
        for i in range(i0, i0 + 2):
            a(f"v_mov_b32 v{f+16+i}, v{vXB+4*(step%4)+i}")
        a("s_set_gpr_idx_off")
    a(f"""
    s_mov_b32 s{sIT}, 0
    s_mov_b32 s{sIDX}, 0
    """)
    for b in range(4): rdB(0, b)
    a("s_waitcnt lgkmcnt(4)")
    for b in range(4): rdB(1, b)
    fetchx(0, 0); fetchx(0, 2)
    a.raw(".p2align 6")
    a.label("c_loopb")
    a(f"""
    s_bitcmp1_b32 {(1<<2)|(1<<4):#x}, s{sIT}
    s_cbranch_scc1 c_lb_rare
    """)
    a.label("c_lb_go")
    for k in range(4):
        f = vFR[k % 2]
        for b in range(4):
            if b % 2 == 0:
                a("s_waitcnt lgkmcnt(11)")
            if b == 0:
                for i in range(4):
                    a(f"v_dot2c_f32_bf16 v{vS0+4+i}, s{sONE}, v{f+i}")
            a(f"v_mfma_f32_32x32x16_bf16 {vr(vACC+16*b,16)}, {vr(f+4*b,4)}, {vr(f+16,4)}, {vr(vACC+16*b,16)}")
            rdB(k + 2, b)
            if k == 2 and b == 3:
                a(f"s_add_u32 s{sIDX}, s{sIDX}, 16")
                a(f"s_min_u32 s{sIDX}, s{sIDX}, 96")
            if b == 0: fetchx(k + 1, 0)
            if b == 2: fetchx(k + 1, 2)
            if k == 3:
                a(f"v_add_u32 v{vTC+b}, 16384, v{vTC+b}")
    dry_end(a)
    a(f"""
    s_add_u32 s{sIT}, s{sIT}, 1
    s_cmp_lt_u32 s{sIT}, 7
    s_cbranch_scc1 c_loopb
    s_waitcnt lgkmcnt(0)
    """)
    stamp(a, 6)
    a(f"""
    v_add_f32 v{vS0+4}, v{vS0+4}, v{vS0+5}
    v_add_f32 v{vS0+6}, v{vS0+6}, v{vS0+7}
    v_and_b32 v{vS0+2}, 31, v{vLANE}
    v_add_f32 v{vS0+4}, v{vS0+4}, v{vS0+6}
    v_lshlrev_b32 v{vS0+2}, 2, v{vS0+2}
    v_mov_b32 v{vS0+5}, v{vS0+4}
    s_lshl_b32 s{sTMP}, s{sWAVE}, 7
    s_add_u32 s{sTMP}, s{sTMP}, {CSB_}
    v_permlane32_swap_b32 v{vS0+4}, v{vS0+5}
    v_add_u32 v{vS0+2}, s{sTMP}, v{vS0+2}
    s_nop 0
    v_add_f32 v{vS0+4}, v{vS0+4}, v{vS0+5}
    ds_write_b32 v{vS0+2}, v{vS0+4}
    """)
    prog_set(a, vS0, SP, 2)
    a(f"""
    s_lshr_b32 s{sTMP}, s{sCOL}, 1
    s_mul_i32 s{sTMP}, s{sTMP}, 7
    s_and_b32 s{sTMP2}, s{sCOL}, 1
    s_mul_i32 s{sTMP2}, s{sTMP2}, 3
    s_add_u32 s{sTMP}, s{sTMP}, s{sTMP2}
    s_mul_i32 s{sTMP2}, s{sMT32}, 72
    s_add_u32 s{sTMP}, s{sTMP}, s{sTMP2}
    s_lshl_b32 s{sTMP}, s{sTMP}, 11
    s_add_u32 s{sTMP}, s{sTMP}, {HF_OFF}
    s_mov_b32 s{sRELU}, 0
    v_mov_b32 v{vMASK}, -1
    v_mov_b32 v{vCONST}, 0
    s_mov_b32 s{sPASS}, 2
    """)
    for j in range(4):
        a(f"""
        s_mov_b32 s{sSCL+j}, 1.0
        s_xor_b32 s{sTMP2}, s{sWAVE}, {j}
        s_lshl_b32 s{sTMP3}, s{sTMP2}, 7
        s_add_u32 s{sCSO+j}, s{sTMP3}, 512
        s_lshl_b32 s{sTMP2}, s{sTMP2}, 11
        s_add_u32 s{sDST+j}, s{sTMP}, s{sTMP2}
        """)
    a(f"""
    v_readfirstlane_b32 s{sTAG}, v{vTG}
    v_readfirstlane_b32 s{sTAG+1}, v{vTG+1}
    s_cmp_lg_u32 s{sTAG}, 0
    s_cbranch_scc1 c_lb_tag2
    """)
    get_tag(a, vS0+1)
    a.label("c_lb_tag2")
    prog_wait(a, vPG, CP, 9)
    a(f"""
    s_lshl_b32 s{sTMP}, s{sWAVE}, 8
    s_add_u32 s{sTMP}, s{sTMP}, {STA}
    v_and_b32 v{vS0+2}, 31, v{vLANE}
    v_lshlrev_b32 v{vS0+2}, 3, v{vS0+2}
    v_add_u32 v{vS0+2}, s{sTMP}, v{vS0+2}
    ds_read_b64 {vr(vNM,2)}, v{vS0+2}
    """)
    prog_wait(a, vPG, SP, 2, sleep=0)
    stamp(a, 11)
    a("s_branch c_epi")
    a.label("c_la_slow")
    a(f"""
    s_cmp_eq_u32 s{sIT}, 7
    s_cbranch_scc1 c_la_back
    s_add_u32 s{sTMP3}, s{sIT}, 1
    """)
    if env("STS", 0): stamp_dyn(a, 9, sIT)
    prog_wait(a, vPG, LP, f"s{sTMP3}", sleep=env("ASLEEP", 1))
    if env("STS", 0): stamp_dyn(a, 22, sIT)
    a("s_branch c_la_back")
    a.label("c_lb_rare")
    a(f"""
    s_cmp_lg_u32 s{sIT}, 2
    s_cbranch_scc1 c_lb_r1
    """)
    prog_set(a, vS0, SP, 1)
    a("s_waitcnt vmcnt(0)")
    prog_set(a, vS0+1, LP, 11)
    a("s_waitcnt lgkmcnt(0)")
    a("s_branch c_lb_go")
    a.label("c_lb_r1")
    prog_wait(a, vPG, LP, 11)
    stamp(a, 10)
    a("s_branch c_lb_go")
    a.label("c_done")
    stamp(a, 12)

from mk2 import gen_attn, gen_gemm2

def build():
    hdr = open("cdna_kernels/" + NAME + ".s.ref").read().split("\n")
    out = [l for l in hdr if l.startswith(";") and "@launch" not in l]
    body = Asm()
    body.raw(".p2align 8")
    d = gen(body)
    out.append(f"; @launch grid=({d['grid']},1,1) block=({d['block']},1,1) lds={d['lds']}")
    out.append('.amdgcn_target "amdgcn-amd-amdhsa--gfx950"')
    out.append(".text")
    out.append(f".globl {d['name']}")
    out.append(f".type {d['name']},@function")
    txt = "\n".join(out) + "\n" + body.text()
    txt += '.section .rodata,"a"\n.p2align 6\n' + kernel_desc(d['name'], d['nvgpr'], d['accum'])
    return txt
```

```python
import os
from asmlib import *
from mk import *

def reduce_write(a, vACC, vWA, sBASE):
    a(f"v_add_u32 v{vWA}, s{sBASE}, v{vL16}")
    for j in range(1, 4):
        for g in range(4):
            a(f"ds_write_b128 v{vWA}, {vr(vACC+16*j+4*g,4)} offset:{(j-1)*4096+g*1024}")
def reduce_read(a, vACC, vT, vRA, region0):
    for j in range(1, 4):
        a(f"""
        s_xor_b32 s{sTMP}, s{sWAVE}, {j}
        s_lshl_b32 s{sTMP}, s{sTMP}, 14
        s_add_u32 s{sTMP}, s{sTMP}, {region0 + (j-1)*4096}
        v_add_u32 v{vRA}, s{sTMP}, v{vL16}
        """)
        for g in range(4):
            a(f"ds_read_b128 {vr(vT+16*(j-1)+4*g,4)}, v{vRA} offset:{g*1024}")
    for j in range(3):
        for g in range(4):
            a(f"s_waitcnt lgkmcnt({11 - (4*j+g)})")
            for r in range(4):
                i = 4*g + r
                a(f"v_add_f32 v{vACC+i}, v{vACC+i}, v{vT+16*j+i}")

def gen_attn(a):
    sHEAD, sQB, sKV, sRD, sWR, sLB, sFB, sWV = sR, sR+1, sR+2, sR+3, sR+4, sR+5, sR+6, sR+7
    vKA, vVA, vKAb, vVAb, vHH, vHHI, vT0 = 3, 4, 5, 6, 7, 8, 12
    vQ = 16; vO = 48; vS = [112, 128]; vP = [144, 152]; vK = [160, 168]; vV = [176, 184]; vNM = 192
    vFA = 208
    a(f"""
    s_and_b32 s{sHEAD}, s{sSL}, 1
    s_lshl_b32 s{sTMP}, s{sXCD}, 1
    s_add_u32 s{sHEAD}, s{sHEAD}, s{sTMP}
    s_lshr_b32 s{sQB}, s{sSL}, 1
    s_lshl_b32 s{sKV}, s{sHEAD}, 17
    s_add_u32 s{sKV}, s{sKV}, {KF_OFF}
    s_lshl_b32 s{sLB}, s{sWAVE}, 14
    v_lshrrev_b32 v{vHH}, 5, v{vLANE}
    v_add_u32 v{vKAb}, s{sLB}, v{vL16}
    v_bfe_u32 v{vT0}, v{vLANE}, 4, 1
    v_lshlrev_b32 v{vVAb}, 10, v{vT0}
    v_and_b32 v{vT0}, 1, v{vLANE}
    v_lshl_add_u32 v{vVAb}, v{vT0}, 9, v{vVAb}
    v_bfe_u32 v{vT0}, v{vLANE}, 1, 1
    v_lshl_add_u32 v{vVAb}, v{vT0}, 3, v{vVAb}
    v_bfe_u32 v{vT0}, v{vLANE}, 2, 2
    v_lshl_add_u32 v{vT0}, v{vHH}, 2, v{vT0}
    v_lshl_add_u32 v{vVAb}, v{vT0}, 4, v{vVAb}
    v_add_u32 v{vVAb}, s{sLB}, v{vVAb}
    v_add_u32 v{vVAb}, 2048, v{vVAb}
    v_sub_u32 v{vHHI}, v{vHH}, 1
    v_sub_u32 v{vHH}, 0, v{vHH}
    """)
    a(f"""
    s_lshl_b32 s{sTMP}, s{sHEAD}, 4
    s_add_u32 s{sTMP}, s{sTMP}, s{sQB}
    s_lshl_b32 s{sTMP}, s{sTMP}, 9
    s_add_u32 s{sTMP}, s{sTMP}, {F1_OFF}
    s_lshl_b32 s{sTMP2}, s{sQB}, 3
    s_add_u32 s{sTMP2}, s{sTMP2}, s{sTMP}
    v_and_b32 v{vFA}, 1, v{vLANE}
    v_lshlrev_b32 v{vFA}, 7, v{vFA}
    v_add_u32 v{vFA}, s{sTMP2}, v{vFA}
    s_lshl_b32 s{sTMP2}, s{sWAVE}, 5
    s_add_u32 s{sTMP2}, s{sTMP2}, s{sTMP}
    s_add_u32 s{sTMP2}, s{sTMP2}, 128
    v_bfe_u32 v{vFA+1}, v{vLANE}, 2, 1
    v_lshlrev_b32 v{vFA+1}, 7, v{vFA+1}
    v_and_b32 v{vT0}, 3, v{vLANE}
    v_lshl_add_u32 v{vFA+1}, v{vT0}, 3, v{vFA+1}
    v_add_u32 v{vFA+1}, s{sTMP2}, v{vFA+1}
    """)
    mb23_addr(a, vFA+2, sQB, sHEAD, F3_OFF)
    a(f"v_mov_b32 v{vKA}, v{vKAb}")
    a(f"v_mov_b32 v{vVA}, v{vVAb}")
    stamp(a, 14)
    dry_by_wave(a, [["a_pro"], ["a_loop"], ["a_loop2"], ["a_tail"]], "dw2")
    a("s_waitcnt vmcnt(0) lgkmcnt(0)")
    for i in range(8):
        a(f"v_mov_b32 v{vP[1]+i}, 0")
        a(f"v_mov_b32 v{vV[1]+i}, 0")
    a(f"s_setprio {env('APRIO', 3)}")
    if env("PFW", 0):
        set_srd(a, sA, pW2, DFF*D*2)
        set_srd(a, sB, pWO, D*D*2)
        a(f"""
        s_lshl_b32 s{sTMP}, s{sSL}, 2
        s_add_u32 s{sTMP}, s{sTMP}, s{sWAVE}
        v_lshlrev_b32 v{vT0}, 7, v{vLANE}
        s_lshl_b32 s{sTMP2}, s{sTMP}, 14
        buffer_load_dword v{vNM}, v{vT0}, {sr(sA,4)}, s{sTMP2} offen sc1
        s_add_u32 s{sTMP2}, s{sTMP2}, 8192
        buffer_load_dword v{vNM+1}, v{vT0}, {sr(sA,4)}, s{sTMP2} offen sc1
        s_lshl_b32 s{sTMP2}, s{sTMP}, 13
        buffer_load_dword v{vNM+2}, v{vT0}, {sr(sB,4)}, s{sTMP2} offen sc1
        """)
    stamp(a, 15)
    poll_flags(a, vFA, vT0+2)
    a.label("a_pro")
    stamp(a, 16)
    a(f"""
    s_lshl_b32 s{sTMP}, s{sQB}, 13
    s_add_u32 s{sTMP}, s{sTMP}, s{sKV}
    buffer_load_dwordx4 {vr(vK[1],4)}, v{vL16}, {sr(sWS,4)}, s{sTMP} offen sc1
    buffer_load_dwordx4 {vr(vK[1]+4,4)}, v{vL16}, {sr(sWS,4)}, s{sTMP} offen offset:1024 sc1
    s_lshl_b32 s{sTMP2}, s{sQB}, 2
    s_lshl_b32 s{sTMP3}, s{sHEAD}, 6
    s_add_u32 s{sTMP2}, s{sTMP2}, s{sTMP3}
    """)
    for j in range(4):
        a(f"""
        s_xor_b32 s{sTMP}, s{sWAVE}, {j}
        s_add_u32 s{sTMP}, s{sTMP}, s{sTMP2}
        s_lshl_b32 s{sTMP}, s{sTMP}, 11
        buffer_load_dwordx4 {vr(vQ+8*j,4)}, v{vL16}, {sr(sWS,4)}, s{sTMP} offen sc1
        buffer_load_dwordx4 {vr(vQ+8*j+4,4)}, v{vL16}, {sr(sWS,4)}, s{sTMP} offen offset:1024 sc1
        """)
    prog_wait(a, vT0, SP, 1)
    poll_flags(a, vFA+1, vT0+2)
    stamp(a, 17)
    a(f"""
    s_lshl_b32 s{sTMP}, s{sWAVE}, 15
    s_add_u32 s{sWR}, s{sKV}, s{sTMP}
    s_mov_b32 m0, s{sLB}
    """)
    def dma_tile():
        a(f"s_add_u32 s{sWV}, s{sWR}, {VF_OFF - KF_OFF - 2048}")
        for i in range(4):
            a(f"buffer_load_dwordx4 v{vL16}, {sr(sWS,4)}, s{sWR if i < 2 else sWV} offen offset:{1024*i} sc1 lds")
    for t in range(4):
        dma_tile()
        a(f"s_add_u32 s{sWR}, s{sWR}, 2048")
        if t < 3:
            a(f"s_add_u32 m0, m0, 4096")
        a(f"v_mfma_f32_32x32x16_bf16 {vr(vO+16*t,16)}, {vr(vK[1],4)}, {vr(vQ+8*t,4)}, 0")
        a(f"v_mfma_f32_32x32x16_bf16 {vr(vO+16*t,16)}, {vr(vK[1]+4,4)}, {vr(vQ+8*t+4,4)}, {vr(vO+16*t,16)}")
    stamp(a, 18)
    def read_k(st, addr):
        a(f"ds_read_b128 {vr(vK[st],4)}, v{addr}")
        a(f"ds_read_b128 {vr(vK[st]+4,4)}, v{addr} offset:1024")
    def read_v_ins(st, addr):
        return [f"ds_read_b64_tr_b16 {vr(vV[st]+4*s_+2*p,2)}, v{addr} offset:{(16*s_+8*p)*16}" for s_ in range(2) for p in range(2)]
    for j in range(4):
        o = vO + 16*j
        if j == 3:
            a("s_waitcnt vmcnt(12)")
            read_k(0, vKAb)
            for x in read_v_ins(0, vVAb): a(x)
        t = vT0 + (j & 1) * 2
        a(f"v_max3_f32 v{t}, v{o}, v{o+1}, v{o+2}")
        for i in range(3, 15, 2):
            a(f"v_max3_f32 v{t}, v{t}, v{o+i}, v{o+i+1}")
        a(f"v_max_f32 v{t}, v{t}, v{o+15}")
        a(f"v_mov_b32 v{t+1}, v{t}")
        a(f"v_mfma_f32_32x32x16_bf16 {vr(o,16)}, {vr(vP[1],4)}, {vr(vP[1],4)}, 0")
        a("s_nop 0")
        a(f"v_permlane32_swap_b32 v{t}, v{t+1}")
        a("s_nop 1")
        a(f"v_max_f32 v{t}, v{t}, v{t+1}")
        a(f"v_add_f32 v{t}, {f32bits(BIAS - 1.0):#x}, v{t}")
        a(f"v_cvt_pk_bf16_f32 v{t}, -v{t}, 0")
        a(f"v_and_b32 v{t}, v{t}, v{vHH}")
        a(f"v_and_or_b32 v{vQ+8*j+6}, v{vQ+8*j+6}, v{vHHI}, v{t}")
    a(f"""
    s_mov_b32 s{sRD}, 0
    s_mov_b32 s{sIT}, 0
    s_waitcnt lgkmcnt(0)
    """)
    a(f"v_mfma_f32_32x32x16_bf16 {vr(vS[0],16)}, {vr(vK[0],4)}, {vr(vQ,4)}, 0")
    a(f"v_mfma_f32_32x32x16_bf16 {vr(vS[0],16)}, {vr(vK[0]+4,4)}, {vr(vQ+4,4)}, {vr(vS[0],16)}")
    a("s_nop 7")
    a("s_nop 3")
    def body(st):
        for j in range(4):
            sc = vS[j % 2]; sn = vS[(j + 1) % 2]
            pc = vP[j % 2]; pp = vP[(j + 1) % 2]
            kn = vK[st] if j < 3 else vK[1 - st]
            qn = vQ + 8 * ((j + 1) % 4)
            vv = vV[st] if j > 0 else vV[1 - st]
            op = vO + 16 * ((j + 3) % 4)
            mf = [
                f"v_mfma_f32_32x32x16_bf16 {vr(sn,16)}, {vr(kn,4)}, {vr(qn,4)}, 0",
                f"v_mfma_f32_32x32x16_bf16 {vr(sn,16)}, {vr(kn+4,4)}, {vr(qn+4,4)}, {vr(sn,16)}",
                f"v_mfma_f32_32x32x16_bf16 {vr(op,16)}, {vr(vv,4)}, {vr(pp,4)}, {vr(op,16)}",
                f"v_mfma_f32_32x32x16_bf16 {vr(op,16)}, {vr(vv+4,4)}, {vr(pp+4,4)}, {vr(op,16)}",
            ]
            if j == 3:
                a("s_waitcnt lgkmcnt(0)")
            plan = [[("e", 0), ("e", 1), ("e", 2)], [("e", 3), ("e", 4), ("e", 5)], [("e", 6), ("e", 7), ("e", 8)],
                    [("e", i) for i in range(9, 16)] + [("c", i) for i in range(8)]]
            for g in range(4):
                a(mf[g])
                if j == 0 and g == 3:
                    a(f"s_add_u32 m0, s{sLB}, s{sRD}")
                    a(f"s_add_u32 s{sRD}, s{sRD}, 4096")
                    if st == 0:
                        a(f"s_cmp_ge_u32 s{sIT}, 6")
                        a(f"s_cselect_b32 s{sWR}, {OOB:#x}, s{sWR}")
                    dma_tile()
                    a(f"s_add_u32 s{sWR}, s{sWR}, 2048")
                    a(f"s_and_b32 s{sRD}, s{sRD}, 0x3fff")
                    a(f"v_add_u32 v{vKA}, s{sRD}, v{vKAb}")
                    a(f"v_add_u32 v{vVA}, s{sRD}, v{vVAb}")
                if j == 1 and g == 3:
                    a("s_waitcnt vmcnt(12)")
                    read_k(1 - st, vKA)
                    for x in read_v_ins(1 - st, vVA): a(x)
                for kind, i in plan[g]:
                    if kind == "e":
                        a(f"v_exp_f32 v{sc+i}, v{sc+i}")
                    else:
                        a(f"v_cvt_pk_bf16_f32 v{pc+i}, v{sc+2*i}, v{sc+2*i+1}")
    a("s_setprio 1")
    stamp(a, 19)
    dry_end(a)
    a.raw(".p2align 6")
    a.label("a_loop")
    body(0)
    dry_end(a)
    a.label("a_loop2")
    body(1)
    dry_end(a)
    a(f"""
    s_add_u32 s{sIT}, s{sIT}, 1
    s_cmp_lt_u32 s{sIT}, 8
    s_cbranch_scc1 a_loop
    """)
    a.label("a_tail")
    stamp(a, 20)
    a("s_setprio 3")
    a("s_nop 1")
    a(f"v_mfma_f32_32x32x16_bf16 {vr(vO+48,16)}, {vr(vV[1],4)}, {vr(vP[1],4)}, {vr(vO+48,16)}")
    a(f"v_mfma_f32_32x32x16_bf16 {vr(vO+48,16)}, {vr(vV[1]+4,4)}, {vr(vP[1]+4,4)}, {vr(vO+48,16)}")
    a("s_waitcnt vmcnt(0)")
    a("s_nop 3")
    reduce_write(a, vO, vT0, sLB)
    a("s_waitcnt lgkmcnt(0)")
    prog_set(a, vT0, AP, 1)
    prog_wait(a, vT0, AP, 1, sleep=0)
    reduce_read(a, vO, vS[0], vT0, ATT0)
    a(f"s_mov_b32 s{sFB}, 0")
    stamp(a, 21)
    a.label("a_norm")
    a(f"""
    v_mov_b32 v{vT0}, v{vO+12}
    v_mov_b32 v{vT0+1}, v{vO+12}
    s_nop 1
    v_permlane32_swap_b32 v{vT0}, v{vT0+1}
    s_nop 1
    v_rcp_f32 v{vT0}, v{vT0+1}
    v_mov_b32 v{vT0+2}, 0
    """)
    for i in range(16):
        a(f"v_mul_f32 v{vS[0]+i}, v{vO+i}, v{vT0}")
    for i in range(16):
        a(f"v_fma_f32 v{vT0+2}, v{vS[0]+i}, 0, v{vT0+2}")
    a(f"""
    s_mov_b32 s{sTMP}, {f32bits(2.0**-90):#x}
    v_cmp_nle_f32 vcc, s{sTMP}, v{vT0+1}
    s_mov_b32 s{sTMP}, {f32bits(2.0**100):#x}
    v_cmp_nge_f32 s[72:73], s{sTMP}, v{vT0+1}
    v_cmp_u_f32 s[74:75], v{vT0+2}, v{vT0+2}
    s_or_b64 vcc, vcc, s[72:73]
    s_or_b64 vcc, vcc, s[74:75]
    s_cmp_lg_u32 s{sFB}, 0
    s_cbranch_scc1 a_store
    s_cbranch_vccnz a_fallback
    """)
    a.label("a_store")
    for i in range(8):
        a(f"v_cvt_pk_bf16_f32 v{vP[0]+i}, v{vS[0]+2*i}, v{vS[0]+2*i+1}")
    a(f"""
    v_and_b32 v{vP[0]+6}, v{vP[0]+6}, v{vHHI}
    v_and_b32 v{vP[0]+7}, v{vP[0]+7}, v{vHHI}
    s_lshl_b32 s{sTMP3}, s{sQB}, 2
    s_add_u32 s{sTMP3}, s{sTMP3}, s{sWAVE}
    s_mul_i32 s{sTMP}, s{sTMP3}, 144
    s_lshl_b32 s{sTMP2}, s{sHEAD}, 1
    s_add_u32 s{sTMP}, s{sTMP}, s{sTMP2}
    s_lshl_b32 s{sTMP}, s{sTMP}, 10
    s_add_u32 s{sTMP}, s{sTMP}, {HF_OFF + 112*1024}
    buffer_store_dwordx4 {vr(vP[0],4)}, v{vL16}, {sr(sWS,4)}, s{sTMP} offen sc1
    buffer_store_dwordx4 {vr(vP[0]+4,4)}, v{vL16}, {sr(sWS,4)}, s{sTMP} offen offset:1024 sc1
    s_waitcnt vmcnt(0)
    """)
    stamp(a, 22)
    publish_flag(a, vT0+2, vFA+2, 2)
    dry_end(a)
    stamp_flush(a, 0, sWS, sW8, 20, wpw=8)
    a("s_endpgm")
    a.label("a_fallback")
    a(f"""
    v_and_b32 v{vQ+6}, v{vQ+6}, v{vHHI}
    v_mov_b32 v{vT0}, 0xff800000
    s_mov_b32 s{sWR}, s{sKV}
    s_mov_b32 s{sIT}, 0
    """)
    a.label("a_fb1")
    a(f"""
    buffer_load_dwordx4 {vr(vK[0],4)}, v{vL16}, {sr(sWS,4)}, s{sWR} offen sc1
    buffer_load_dwordx4 {vr(vK[0]+4,4)}, v{vL16}, {sr(sWS,4)}, s{sWR} offen offset:1024 sc1
    s_waitcnt vmcnt(0)
    v_mfma_f32_32x32x16_bf16 {vr(vS[0],16)}, {vr(vK[0],4)}, {vr(vQ,4)}, 0
    v_mfma_f32_32x32x16_bf16 {vr(vS[0],16)}, {vr(vK[0]+4,4)}, {vr(vQ+4,4)}, {vr(vS[0],16)}
    s_nop 15
    s_nop 3
    """)
    for i in range(0, 16, 2):
        a(f"v_max3_f32 v{vT0}, v{vT0}, v{vS[0]+i}, v{vS[0]+i+1}")
    a(f"""
    s_add_u32 s{sWR}, s{sWR}, 2048
    s_add_u32 s{sIT}, s{sIT}, 1
    s_cmp_lt_u32 s{sIT}, 64
    s_cbranch_scc1 a_fb1
    v_mov_b32 v{vT0+1}, v{vT0}
    s_nop 1
    v_permlane32_swap_b32 v{vT0}, v{vT0+1}
    s_nop 1
    v_max_f32 v{vT0}, v{vT0}, v{vT0+1}
    """)
    for i in range(16):
        a(f"v_sub_f32 v{vNM+i}, 0, v{vT0}")
        a(f"v_mov_b32 v{vO+i}, 0")
    a(f"""
    s_add_u32 m0, s{sLB}, 12288
    v_add_u32 v{vKA}, 12288, v{vKAb}
    v_add_u32 v{vVA}, 12288, v{vVAb}
    s_mov_b32 s{sWR}, s{sKV}
    s_mov_b32 s{sIT}, 0
    """)
    a.label("a_fb2")
    dma_tile()
    a("s_waitcnt vmcnt(0)")
    read_k(0, vKA)
    for x in read_v_ins(0, vVA): a(x)
    a(f"""
    s_waitcnt lgkmcnt(0)
    v_mfma_f32_32x32x16_bf16 {vr(vS[0],16)}, {vr(vK[0],4)}, {vr(vQ,4)}, {vr(vNM,16)}
    v_mfma_f32_32x32x16_bf16 {vr(vS[0],16)}, {vr(vK[0]+4,4)}, {vr(vQ+4,4)}, {vr(vS[0],16)}
    s_nop 15
    s_nop 3
    """)
    for i in range(16):
        a(f"v_exp_f32 v{vS[0]+i}, v{vS[0]+i}")
    a("s_nop 0")
    for i in range(8):
        a(f"v_cvt_pk_bf16_f32 v{vP[0]+i}, v{vS[0]+2*i}, v{vS[0]+2*i+1}")
    a(f"""
    s_nop 1
    v_mfma_f32_32x32x16_bf16 {vr(vO,16)}, {vr(vV[0],4)}, {vr(vP[0],4)}, {vr(vO,16)}
    v_mfma_f32_32x32x16_bf16 {vr(vO,16)}, {vr(vV[0]+4,4)}, {vr(vP[0]+4,4)}, {vr(vO,16)}
    s_add_u32 s{sWR}, s{sWR}, 2048
    s_add_u32 s{sIT}, s{sIT}, 1
    s_cmp_lt_u32 s{sIT}, 64
    s_cbranch_scc1 a_fb2
    s_nop 15
    s_nop 3
    s_mov_b32 s{sFB}, 1
    s_branch a_norm
    """)

def gen_gemm2(a):
    sMT, sNT, sHO, sWOFF, sGB, sWO3 = sR, sR+1, sR+2, sR+3, sR+4, sR+5
    vH0, vH1, vWD, vTR0, vTR1, vXA, vT0, vFA = 3, 4, 5, 6, 7, 8, 12, 15
    vXD = 18
    vWF = 224
    vACC = 80
    vHR = 144
    vWB = 16
    if env("STS", 0):
        stamp_flush(a, 0, sWS, sW8, 20, wpw=8)
        a("s_endpgm")
    a(f"""
    s_mul_i32 s{sTMP}, s{sSL}, 37
    s_lshr_b32 s{sTMP}, s{sTMP}, 8
    s_mul_i32 s{sTMP2}, s{sTMP}, 7
    s_sub_u32 s{sNT}, s{sSL}, s{sTMP2}
    s_lshl_b32 s{sMT}, s{sXCD}, 2
    s_add_u32 s{sMT}, s{sMT}, s{sTMP}
    s_lshl_b32 s{sMT}, s{sMT}, 1
    """)
    a(f"""
    v_and_b32 v{vFA}, 15, v{vLANE}
    s_mul_i32 s{sTMP}, s{sXCD}, 28
    s_add_u32 s{sTMP}, s{sTMP}, s{sSL}
    s_lshl_b32 s{sTMP}, s{sTMP}, 4
    v_add_u32 v{vFA}, s{sTMP}, v{vFA}
    v_lshlrev_b32 v{vFA}, 3, v{vFA}
    v_add_u32 v{vFA}, {F2_OFF}, v{vFA}
    s_and_b32 s{sTMP}, s{sWAVE}, 1
    s_add_u32 s{sMT}, s{sMT}, s{sTMP}
    s_mul_i32 s{sTMP}, s{sMT}, {144*1024}
    s_add_u32 s{sTMP}, s{sTMP}, {HF_OFF}
    v_add_u32 v{vH0}, s{sTMP}, v{vL16}
    s_xor_b32 s{sTMP}, s{sMT}, 1
    s_mul_i32 s{sTMP}, s{sTMP}, {144*1024}
    s_add_u32 s{sTMP}, s{sTMP}, {HF_OFF}
    v_add_u32 v{vH1}, s{sTMP}, v{vL16}
    s_mul_i32 s{sHO}, s{sWAVE}, {28*1024}
    s_lshl_b32 s{sGB}, s{sWAVE}, 14
    s_add_u32 s{sGB}, s{sGB}, {GR0}
    """)
    a(f"""
    v_lshrrev_b32 v{vT0}, 3, v{vLANE}
    v_bfe_u32 v{vT0+1}, v{vLANE}, 4, 1
    v_lshlrev_b32 v{vT0+1}, 2, v{vT0+1}
    v_and_b32 v{vT0+2}, 7, v{vLANE}
    v_xor_b32 v{vT0+2}, v{vT0+2}, v{vT0+1}
    v_lshlrev_b32 v{vT0+2}, 4, v{vT0+2}
    s_movk_i32 s{sTMP}, 896
    v_mad_u32_u24 v{vWD}, v{vT0}, s{sTMP}, v{vT0+2}
    s_mul_i32 s{sWOFF}, s{sWAVE}, {448*896}
    s_lshl_b32 s{sTMP}, s{sNT}, 7
    s_add_u32 s{sWOFF}, s{sWOFF}, s{sTMP}
    """)
    a(f"""
    v_lshrrev_b32 v{vT0}, 5, v{vLANE}
    v_bfe_u32 v{vT0+1}, v{vLANE}, 2, 2
    v_lshl_add_u32 v{vT0}, v{vT0}, 2, v{vT0+1}
    v_lshlrev_b32 v{vTR0}, 7, v{vT0}
    v_bfe_u32 v{vT0+1}, v{vLANE}, 3, 1
    s_lshr_b32 s{sTMP}, s{sWAVE}, 1
    v_xor_b32 v{vT0+1}, s{sTMP}, v{vT0+1}
    v_lshl_add_u32 v{vTR0}, v{vT0+1}, 6, v{vTR0}
    v_bfe_u32 v{vT0+1}, v{vLANE}, 4, 1
    v_lshl_add_u32 v{vTR0}, v{vT0+1}, 5, v{vTR0}
    v_and_b32 v{vT0+1}, 3, v{vLANE}
    v_lshl_add_u32 v{vTR0}, v{vT0+1}, 3, v{vTR0}
    v_xor_b32 v{vTR1}, 64, v{vTR0}
    v_add_u32 v{vTR0}, s{sGB}, v{vTR0}
    v_add_u32 v{vTR1}, s{sGB}, v{vTR1}
    s_lshl_b32 s{sNT}, s{sNT}, 1
    s_add_u32 s{sNT}, s{sNT}, s{sTMP}
    """)
    a(f"s_lshr_b32 s{sTMP3}, s{sMT32}, 2")
    mb23_addr(a, 16, sTMP3, sCOL, F2_OFF)
    a(f"""
    v_mov_b32 v{vXA}, 0
    v_mov_b32 v220, 0
    v_mov_b32 v208, 0
    s_waitcnt vmcnt(0)
    """)
    publish_flag(a, vT0, 16, 1)
    a(f"""
    s_cmp_ge_u32 s{sSL}, 28
    s_cbranch_scc1 k_end
    """)
    stamp(a, 13)
    def loads(k):
        f = vHR + 8*k
        a(f"s_add_u32 m0, s{sGB}, {2048*k}")
        a(f"s_add_u32 s{sTMP}, s{sWOFF}, {8*896 - 1024}")
        a(f"buffer_load_dwordx4 v{vWD}, {sr(sB,4)}, s{sWOFF} offen lds")
        a(f"buffer_load_dwordx4 v{vWD}, {sr(sB,4)}, s{sTMP} offen offset:1024 lds")
        a(f"buffer_load_dwordx4 {vr(f,4)}, v{vH0}, {sr(sWS,4)}, s{sHO} offen sc1")
        a(f"buffer_load_dwordx4 {vr(f+4,4)}, v{vH1}, {sr(sWS,4)}, s{sHO} offen sc1")
        a(f"s_add_u32 s{sHO}, s{sHO}, 1024")
        a(f"s_add_u32 s{sWOFF}, s{sWOFF}, {16*896}")
    def rdw(k, dst):
        for t, ad in ((0, vTR0), (1, vTR1)):
            for p in range(2):
                a(f"ds_read_b64_tr_b16 {vr(dst+4*t+2*p,2)}, v{ad} offset:{2048*k + 1024*p}")
    def mfmas(w, h):
        for j in range(4):
            a(f"v_mfma_f32_32x32x16_bf16 {vr(vACC+16*j,16)}, {vr(w+4*(j>>1),4)}, {vr(h+4*(j&1),4)}, {vr(vACC+16*j,16)}")
    vFA3, vXD3, vOA = 208, 212, 220
    set_srd(a, sB, pWO, D*D*2)
    set_srd(a, sA, pX, S*D*2)
    set_srd(a, sCc, pOUT, S*D*2)
    a(f"""
    s_mul_i32 s{sWO3}, s{sWAVE}, {4*28*896}
    s_lshr_b32 s{sTMP}, s{sNT}, 1
    s_lshl_b32 s{sTMP}, s{sTMP}, 7
    s_add_u32 s{sWO3}, s{sWO3}, s{sTMP}
    """)
    for k in range(8):
        off = (28*(k >> 1) + 16*(k & 1)) * 896
        a(f"s_add_u32 m0, s{sGB}, {2048*k}")
        a(f"s_add_u32 s{sTMP}, s{sWO3}, {off}")
        a(f"buffer_load_dwordx4 v{vWD}, {sr(sB,4)}, s{sTMP} offen lds")
        a(f"s_add_u32 s{sTMP}, s{sWO3}, {off + 8*896 - 1024}")
        a(f"buffer_load_dwordx4 v{vWD}, {sr(sB,4)}, s{sTMP} offen offset:1024 lds")
    a(f"""
    v_add_u32 v{vFA3}, {F3_OFF - F2_OFF}, v{vFA}
    v_and_b32 v{vOA}, 31, v{vLANE}
    s_lshl_b32 s{sTMP}, s{sMT}, 5
    v_add_u32 v{vOA}, s{sTMP}, v{vOA}
    s_movk_i32 s{sTMP}, 896
    v_mul_lo_u32 v{vOA}, v{vOA}, s{sTMP}
    v_lshrrev_b32 v{vT0}, 5, v{vLANE}
    v_lshl_add_u32 v{vXA}, v{vT0}, 3, v{vOA}
    v_lshl_add_u32 v{vOA}, v{vT0}, 4, v{vOA}
    s_lshl_b32 s{sNT}, s{sNT}, 6
    """)
    for g in range(4):
        a(f"buffer_load_dwordx2 {vr(vXD3+2*g,2)}, v{vXA}, {sr(sA,4)}, s{sNT} offen offset:{16*g}")
    a("s_waitcnt vmcnt(0)")
    for k in range(8):
        rdw(k, vWB + 8*k)
        if k % 2 == 1: a("s_waitcnt lgkmcnt(0)")
    for g in range(4):
        for p in range(2):
            a(f"v_lshlrev_b32 v{vT0}, 16, v{vXD3+2*g+p}")
            a(f"v_and_b32 v{vT0+1}, 0xffff0000, v{vXD3+2*g+p}")
            a(f"v_add_f32 v{vACC+4*g+2*p}, v{vACC+4*g+2*p}, v{vT0}")
            a(f"v_add_f32 v{vACC+4*g+2*p+1}, v{vACC+4*g+2*p+1}, v{vT0+1}")
    set_srd(a, sB, pW2, DFF*D*2)
    a(f"s_setprio {env('GPRIO', 0)}")
    stamp(a, 20)
    poll_flags(a, vFA, vT0)
    stamp(a, 14)
    a.label("g_pre")
    for k in range(7):
        loads(k)
    a(f"s_mov_b32 s{sIT}, 0")
    dry_end(a)
    a.label("g_loop")
    a(f"""
    s_cmp_eq_u32 s{sIT}, 3
    s_cselect_b32 s{sHO}, {OOB:#x}, s{sHO}
    s_cselect_b32 s{sWOFF}, {OOB:#x}, s{sWOFF}
    """)
    for k in range(7):
        a("s_waitcnt vmcnt(24)")
        rdw(k, vWF)
        a("s_waitcnt lgkmcnt(0)")
        mfmas(vWF, vHR + 8*k)
        loads(k)
    dry_end(a)
    a(f"""
    s_add_u32 s{sIT}, s{sIT}, 1
    s_cmp_lt_u32 s{sIT}, 4
    s_cbranch_scc1 g_loop
    """)
    a.label("g_p3")
    a("s_setprio 2")
    a("s_waitcnt vmcnt(0)")
    stamp(a, 15)
    a(f"""
    s_lshl_b32 s{sHO}, s{sWAVE}, 13
    s_add_u32 s{sHO}, s{sHO}, {112*1024}
    s_add_u32 s{sTMP2}, s{sHO}, 4096
    """)
    stamp(a, 16)
    dry_end(a)
    a.label("g_tail")
    poll_flags(a, vFA3, vT0)
    stamp(a, 17)
    for k in range(8):
        f = vHR + 8*k
        so = sHO if k < 4 else sTMP2
        a(f"buffer_load_dwordx4 {vr(f,4)}, v{vH0}, {sr(sWS,4)}, s{so} offen offset:{1024*(k%4)} sc1")
        a(f"buffer_load_dwordx4 {vr(f+4,4)}, v{vH1}, {sr(sWS,4)}, s{so} offen offset:{1024*(k%4)} sc1")
    for k in range(8):
        a(f"s_waitcnt vmcnt({14 - 2*k})")
        mfmas(vWB + 8*k, vHR + 8*k)
    stamp(a, 18)
    a("s_nop 7")
    a("s_nop 3")
    reduce_write(a, vACC, vT0, sGB)
    a("s_waitcnt lgkmcnt(0)")
    prog_set(a, vT0, SP, 3)
    prog_wait(a, vT0, SP, 3, sleep=0)
    dry_end(a)
    a.label("g_tail2")
    reduce_read(a, vACC, vHR, vT0, GR0)
    stamp(a, 19)
    for i in range(8):
        a(f"v_cvt_pk_bf16_f32 v{vHR+i}, v{vACC+2*i}, v{vACC+2*i+1}")
    a("s_nop 1")
    for q in range(2):
        a(f"v_permlane32_swap_b32 v{vHR+4*q}, v{vHR+4*q+2}")
        a(f"v_permlane32_swap_b32 v{vHR+4*q+1}, v{vHR+4*q+3}")
    a("s_nop 1")
    for q in range(2):
        a(f"buffer_store_dwordx4 {vr(vHR+4*q,4)}, v{vOA}, {sr(sCc,4)}, s{sNT} offen offset:{32*q}")
    dry_end(a)
    stamp_flush(a, 0, sWS, sW8, 20, wpw=8)
```

```python
import sys, math, struct, os
from asmlib import *

NAME = "parallel_sum__mha_block__dense_activation_relu__prompt"
S, D, H, DH, DFF = 2048, 448, 16, 28, 1792
QF_OFF = 0
KF_OFF = 2 << 20
VF_OFF = 4 << 20
HF_OFF = 7 << 20
FL_OFF = 17 << 20
F1_OFF, F2_OFF, F3_OFF = FL_OFF, FL_OFF + 131072, FL_OFF + 131072 + 32768
WS_SIZE = 0x10000000
OOB = 0x40000000
BIAS = 80.0
SPIN_G = 1 << 14
SPIN_L = 1 << 20
def env(k, d): return int(os.environ.get(k, str(d)))
DRY = env("DRY", 0)

def f32bits(x): return struct.unpack("<I", struct.pack("<f", x))[0]
QSCALE = math.log2(math.e) / math.sqrt(DH)

class LgkmTracker:
    def __init__(self, a): self.a = a; self.q = []
    def issue(self, tag): self.q.append(tag)
    def need(self, tag):
        if tag in self.q:
            idx = len(self.q) - 1 - self.q[::-1].index(tag)
            n = min(len(self.q) - 1 - idx, 13)
            self.a(f"s_waitcnt lgkmcnt({n})")
            self.q = self.q[len(self.q) - n:] if n > 0 else []

SLOT = 28672
SL0 = 12288
WB = SL0 + SLOT
ATT0 = 0
GR0 = 90112
CTL = SL0 + 5*SLOT
CSA, CSB_, STA = CTL + 4096, CTL + 4608, CTL + 5120
LP, CP, AP, SP = CTL + 6144, CTL + 6160, CTL + 6176, CTL + 6192
LDS_TOTAL = 163840

pX, pWQ, pWO, pW1, pW2, pOUT, pDBG = 4, 6, 8, 12, 14, 16, 18
sWS, sA, sB, sCc = 20, 24, 28, 32
sXCD, sSL, sW8, sWAVE, sMT32, sCOL, sTMP, sTMP2, sTMP3, sIT = 36, 37, 38, 39, 40, 41, 42, 43, 44, 45
sR = 46
sTAG, sSPIN, sRET = 76, 78, 90
vLANE, vL16, vPW, vPR, vF0 = 1, 2, 9, 10, 0

def dry_end(a):
    if DRY: a("s_cbranch_execz dry_ret")
def dry_call(a, label):
    a(f"s_call_b64 s[{sRET}:{sRET+1}], {label}")
def dry_by_wave(a, plans, name):
    if not (DRY >> (int(name[-1]) - 1)) & 1: return
    a("s_mov_b64 exec, 0")
    for w in range(4):
        if w < 3:
            a(f"s_cmp_lg_u32 s{sWAVE}, {w}")
            a(f"s_cbranch_scc1 {name}_{w+1}")
        for lbl in plans[w]:
            dry_call(a, lbl)
        if w < 3:
            a(f"s_branch {name}_end")
            a.label(f"{name}_{w+1}")
    a.label(f"{name}_end")
    a("s_mov_b64 exec, -1")

def prog_wait(a, vD, base, target, sleep=1):
    lp = a.newlabel("lw"); dn = a.newlabel("lwd")
    a(f"s_mov_b32 s{sSPIN}, {SPIN_L}")
    a.label(lp)
    a(f"""
    ds_read_b32 v{vD}, v{vPR} offset:{base - CTL}
    s_waitcnt lgkmcnt(0)
    v_cmp_gt_u32 vcc, {target}, v{vD}
    s_cbranch_vccz {dn}
    s_sleep {sleep}
    s_sub_u32 s{sSPIN}, s{sSPIN}, 1
    s_cbranch_scc0 {lp}
    """)
    a.label(dn)
def prog_set(a, vD, base, val):
    a(f"v_mov_b32 v{vD}, {val}")
    a(f"ds_write_b32 v{vPW}, v{vD} offset:{base - CTL}")
def get_tag(a, vD):
    lp = a.newlabel("tg"); dn = a.newlabel("tgd")
    a(f"s_mov_b32 s{sSPIN}, {SPIN_G}")
    a.label(lp)
    a(f"""
    buffer_load_dwordx2 {vr(vD,2)}, v{vF0}, {sr(sCc,4)}, 0 offen sc1
    s_waitcnt vmcnt(0)
    v_readfirstlane_b32 s{sTAG}, v{vD}
    v_readfirstlane_b32 s{sTAG+1}, v{vD+1}
    s_cbranch_execz {dn}
    s_cmp_lg_u32 s{sTAG}, 0
    s_cbranch_scc1 {dn}
    s_sub_u32 s{sSPIN}, s{sSPIN}, 1
    s_cbranch_scc0 {lp}
    """)
    a.label(dn)
def poll_flags(a, vFA, vD):
    lp = a.newlabel("pf"); dn = a.newlabel("pfd")
    a(f"s_mov_b32 s{sSPIN}, {SPIN_G}")
    a.label(lp)
    a(f"""
    buffer_load_dwordx2 {vr(vD,2)}, v{vFA}, {sr(sWS,4)}, 0 offen sc1
    s_waitcnt vmcnt(0)
    v_cmp_ne_u64 vcc, {sr(sTAG,2)}, {vr(vD,2)}
    s_cbranch_vccz {dn}
    s_sleep {env('PSLEEP', 3)}
    s_sub_u32 s{sSPIN}, s{sSPIN}, 1
    s_cbranch_scc0 {lp}
    """)
    a.label(dn)
GC = CTL + 6208
def publish_flag(a, vD, vMB, gidx):
    sk = a.newlabel("pub")
    a(f"""
    s_lshl_b32 s{sSPIN}, s{sWAVE}, 2
    v_mov_b32 v{vD+1}, 1
    v_subrev_u32 v{vD}, s{sSPIN}, v{vPW}
    ds_add_rtn_u32 v{vD+1}, v{vD}, v{vD+1} offset:{GC + 4*gidx - CTL}
    v_mov_b32 v{vD}, s{sTAG}
    s_waitcnt lgkmcnt(0)
    v_readfirstlane_b32 s{sSPIN}, v{vD+1}
    v_mov_b32 v{vD+1}, s{sTAG+1}
    s_cmp_lg_u32 s{sSPIN}, 3
    s_cbranch_scc1 {sk}
    buffer_store_dwordx2 {vr(vD,2)}, v{vMB}, {sr(sWS,4)}, 0 offen sc1
    """)
    a.label(sk)
def mb23_addr(a, vMB, sBLK, sSLOT_, base):
    a(f"""
    s_mul_i32 s{sTMP}, s{sBLK}, {14*128}
    s_lshl_b32 s{sTMP2}, s{sSLOT_}, 3
    s_add_u32 s{sTMP}, s{sTMP}, s{sTMP2}
    s_add_u32 s{sTMP}, s{sTMP}, {base}
    v_lshlrev_b32 v{vMB}, 7, v{vLANE}
    v_add_u32 v{vMB}, s{sTMP}, v{vMB}
    v_cmp_lt_u32 vcc, 13, v{vLANE}
    v_mov_b32 v{vMB+1}, {OOB:#x}
    s_nop 0
    v_cndmask_b32 v{vMB}, v{vMB}, v{vMB+1}, vcc
    """)
def set_srd(a, srd, ptr, size):
    a(f"""
    s_mov_b32 s{srd}, s{ptr}
    s_mov_b32 s{srd+1}, s{ptr+1}
    s_mov_b32 s{srd+2}, {size}
    """)

def gen(a):
    KN = NAME + "_kernel"
    a.label(KN)
    a(f"""
    s_cmp_ge_u32 s2, 256
    s_cbranch_scc1 k_end
    """)
    stamp(a, 0)
    a(f"""
    s_load_dwordx4 s[4:7], s[0:1], 0
    s_load_dwordx2 s[8:9], s[0:1], 16
    s_load_dwordx8 s[12:19], s[0:1], 32
    s_load_dwordx2 s[{sWS}:{sWS+1}], s[0:1], 64
    v_lshlrev_b32 v7, 3, v0
    v_add_u32 v7, {CTL + 4096}, v7
    v_mov_b32 v4, 0
    v_mov_b32 v5, 0
    ds_write_b64 v7, v[4:5]
    v_and_b32 v{vLANE}, 63, v0
    v_lshrrev_b32 v7, 6, v0
    v_lshlrev_b32 v{vL16}, 4, v{vLANE}
    v_readfirstlane_b32 s{sW8}, v7
    s_and_b32 s{sXCD}, s2, 7
    s_lshr_b32 s{sSL}, s2, 3
    s_mov_b32 s{sWS+2}, {WS_SIZE:#x}
    s_mov_b32 s{sWS+3}, 0x00020000
    s_mov_b32 s{sA+3}, 0x00020000
    s_mov_b32 s{sB+3}, 0x00020000
    s_mov_b32 s{sCc+3}, 0x00020000
    s_and_b32 s{sWAVE}, s{sW8}, 3
    s_and_b32 s{sMT32}, s{sXCD}, 1
    s_lshl_b32 s{sMT32}, s{sMT32}, 3
    s_and_b32 s{sTMP}, s{sSL}, 7
    s_add_u32 s{sMT32}, s{sMT32}, s{sTMP}
    s_lshl_b32 s{sMT32}, s{sMT32}, 2
    s_add_u32 s{sMT32}, s{sMT32}, s{sWAVE}
    s_lshr_b32 s{sCOL}, s{sXCD}, 1
    s_lshl_b32 s{sCOL}, s{sCOL}, 2
    s_lshr_b32 s{sTMP}, s{sSL}, 3
    s_add_u32 s{sCOL}, s{sCOL}, s{sTMP}
    v_and_b32 v{vPR}, 3, v{vLANE}
    v_lshlrev_b32 v{vPR}, 2, v{vPR}
    v_add_u32 v{vPR}, {CTL}, v{vPR}
    s_lshl_b32 s{sTMP}, s{sWAVE}, 2
    s_add_u32 s{sTMP}, s{sTMP}, {CTL}
    v_min_u32 v{vF0}, 1, v{vLANE}
    v_lshlrev_b32 v{vPW}, 9, v{vF0}
    v_lshl_add_u32 v{vPW}, v{vLANE}, 2, v{vPW}
    v_add_u32 v{vPW}, s{sTMP}, v{vPW}
    v_lshlrev_b32 v{vF0}, 30, v{vF0}
    s_cmp_lt_u32 s{sW8}, 4
    s_cbranch_scc1 k_comp
    """)
    gen_loader(a)
    a("s_branch c_passb")
    a.label("k_comp")
    gen_comp(a)
    gen_gemm2(a)
    a("s_endpgm")
    a.label("x_attn")
    gen_attn(a)
    a.label("k_end")
    a("s_endpgm")
    if DRY:
        a.label("dry_ret")
        a(f"s_setpc_b64 s[{sRET}:{sRET+1}]")
    return dict(name=KN, grid=256, block=512, lds=LDS_TOTAL, nvgpr=256, accum=256)

def gen_loader(a):
    vXD, vXD2, vWQ, vB1, vT = 7, 8, 3, 13, 14
    vSX, vAX = 20, 22
    vRD = 40
    vXB = 144
    sXOFF, sQOFF, sSLW, sMX, sMQ, sBOFF, sIDX, sSLS, sMB = [sR + i for i in range(9)]
    a(f"""
    v_lshrrev_b32 v{vT}, 3, v{vLANE}
    v_lshrrev_b32 v{vT+1}, 4, v{vLANE}
    v_and_b32 v{vT+2}, 7, v{vLANE}
    v_xor_b32 v{vT+2}, v{vT+2}, v{vT+1}
    v_lshlrev_b32 v{vT+2}, 4, v{vT+2}
    s_movk_i32 s{sTMP}, 896
    v_mad_u32_u24 v{vXD}, v{vT}, s{sTMP}, v{vT+2}
    v_xor_b32 v{vXD2}, 64, v{vXD}
    s_mul_i32 s{sXOFF}, s{sMT32}, {32*896}
    s_lshl_b32 s{sMX}, s{sWAVE}, 12
    s_mul_i32 s{sMQ}, s{sWAVE}, 3072
    s_add_u32 s{sMQ}, s{sMQ}, 16384
    s_mul_i32 s{sQOFF}, s{sWAVE}, {16*2688}
    s_mul_i32 s{sTMP}, s{sCOL}, 168
    s_and_b32 s{sTMP}, s{sTMP}, -16
    s_add_u32 s{sQOFF}, s{sQOFF}, s{sTMP}
    s_movk_i32 s{sTMP}, 5462
    s_movk_i32 s{sTMP2}, 2688
    """)
    for i in range(3):
        a(f"""
        v_add_u32 v{vT}, {64*i}, v{vLANE}
        v_mul_u32_u24 v{vT+2}, s{sTMP}, v{vT}
        v_lshrrev_b32 v{vT+2}, 16, v{vT+2}
        v_mul_u32_u24 v{vT+3}, 12, v{vT+2}
        v_sub_u32 v{vT}, v{vT}, v{vT+3}
        v_lshlrev_b32 v{vT}, 4, v{vT}
        v_mad_u32_u24 v{vWQ+i}, v{vT+2}, s{sTMP2}, v{vT}
        """)
    a(f"""
    v_mov_b32 v{vB1}, 0
    s_mov_b32 s{sSLW}, {SL0 + 4*SLOT}
    s_mov_b32 s{sSLS}, {SL0 + 4*SLOT}
    s_mov_b32 s{sIT}, 0
    s_waitcnt lgkmcnt(0)
    s_barrier
    """)
    set_srd(a, sA, pX, S*D*2)
    set_srd(a, sB, pWQ, D*3*D*2)
    set_srd(a, sCc, pW1, D*DFF*2)
    stamp(a, 1)
    LDD = env("LDD", 1)
    a.label("ld_loop")
    a(f"""
    s_cmp_lt_u32 s{sIT}, 5
    s_cbranch_scc1 ld_isa
    s_sub_u32 s{sTMP3}, s{sIT}, 4
    """)
    BT = env("BTHROT", 10)
    if BT < 11:
        a(f"s_cmp_eq_u32 s{sIT}, {BT}")
        a(f"s_cselect_b32 s{sTMP3}, 9, s{sTMP3}")
    a(f"""
    s_waitcnt lgkmcnt(1)
    v_cmp_gt_u32 vcc, s{sTMP3}, v{vT+4}
    s_cbranch_vccz ld_free
    """)
    prog_wait(a, vT+1, CP, f"s{sTMP3}")
    a.label("ld_free")
    a(f"""
    s_cmp_ge_u32 s{sIT}, 7
    s_cbranch_scc1 ld_isb
    """)
    a.label("ld_isa")
    a(f"s_add_u32 m0, s{sSLW}, s{sMX}")
    for i in range(4):
        a(f"s_add_u32 s{sTMP}, s{sXOFF}, {8*896*i}")
        a(f"buffer_load_dwordx4 v{vXD if i % 2 == 0 else vXD2}, {sr(sA,4)}, s{sTMP} offen lds")
        if i < 3: a("s_add_u32 m0, m0, 1024")
    a(f"s_add_u32 m0, s{sSLW}, s{sMQ}")
    a(f"s_add_u32 s{sXOFF}, s{sXOFF}, 128")
    for i in range(3):
        a(f"buffer_load_dwordx4 v{vWQ+i}, {sr(sB,4)}, s{sQOFF} offen lds")
        if i < 2:
            a("s_add_u32 m0, m0, 1024")
            a("s_nop 0")
    a(f"""
    s_add_u32 s{sQOFF}, s{sQOFF}, {64*2688}
    s_cmp_lg_u32 s{sIT}, 1
    s_cbranch_scc1 ld_post
    """)
    a(f"""
    v_lshrrev_b32 v{vT+1}, 4, v{vLANE}
    v_lshlrev_b32 v{vT+3}, 2, v{vT+1}
    v_and_b32 v{vT+2}, 15, v{vLANE}
    v_xor_b32 v{vT+2}, v{vT+2}, v{vT+3}
    v_lshlrev_b32 v{vT+3}, 4, v{vT+2}
    s_movk_i32 s{sTMP}, 3584
    v_mad_u32_u24 v{vB1}, v{vT+1}, s{sTMP}, v{vT+3}
    s_lshr_b32 s{sTMP}, s{sCOL}, 1
    s_mul_i32 s{sBOFF}, s{sTMP}, 448
    s_and_b32 s{sTMP}, s{sCOL}, 1
    s_mul_i32 s{sTMP}, s{sTMP}, 192
    s_add_u32 s{sBOFF}, s{sBOFF}, s{sTMP}
    s_mul_i32 s{sTMP}, s{sWAVE}, {28*3584}
    s_add_u32 s{sBOFF}, s{sBOFF}, s{sTMP}
    s_mul_i32 s{sMB}, s{sWAVE}, 7168
    v_and_b32 v{vT}, 31, v{vLANE}
    v_lshrrev_b32 v{vT+1}, 5, v{vLANE}
    v_bfe_u32 v{vT+2}, v{vLANE}, 1, 3
    v_xor_b32 v{vT+1}, v{vT+1}, v{vT+2}
    v_lshlrev_b32 v{vT+1}, 4, v{vT+1}
    v_lshl_add_u32 v{vSX}, v{vT}, 7, v{vT+1}
    v_add_u32 v{vSX}, s{sMX}, v{vSX}
    v_mov_b32 v{vT}, 0
    """)
    a("s_branch ld_post")
    a.label("ld_isb")
    a(f"""
    s_add_u32 m0, s{sSLW}, s{sMB}
    s_mov_b32 s{sTMP}, s{sBOFF}
    """)
    for i in range(7):
        a(f"buffer_load_dwordx4 v{vB1}, {sr(sCc,4)}, s{sTMP} offen lds")
        if i < 6:
            a("s_add_u32 m0, m0, 1024")
            a(f"s_add_u32 s{sTMP}, s{sTMP}, {4*3584}")
    a(f"s_add_u32 s{sBOFF}, s{sBOFF}, {112*3584}")
    a.label("ld_post")
    a(f"""
    s_add_u32 s{sSLW}, s{sSLW}, {SLOT}
    s_cmp_ge_u32 s{sSLW}, {CTL}
    s_cselect_b32 s{sSLW}, {SL0}, s{sSLW}
    s_cmp_lt_u32 s{sIT}, {LDD}
    s_cbranch_scc1 ld_next
    s_sub_u32 s{sTMP}, s{sIT}, {LDD+1}
    s_cmp_ge_u32 s{sTMP}, 7
    s_cbranch_scc1 ld_sig
    v_add_u32 v{vAX}, s{sSLS}, v{vSX}
    v_xor_b32 v{vAX+1}, 32, v{vAX}
    v_xor_b32 v{vAX+2}, 64, v{vAX}
    v_xor_b32 v{vAX+3}, 96, v{vAX}
    """)
    a(f"""
    s_add_u32 s{sSLS}, s{sSLS}, {SLOT}
    s_cmp_ge_u32 s{sSLS}, {CTL}
    s_cselect_b32 s{sSLS}, {SL0}, s{sSLS}
    """)
    for c in range(7):
        if c < 6:
            a(f"s_cmp_lg_u32 s{sTMP}, {c}")
            a(f"s_cbranch_scc1 ld_sv{c+1}")
        for i in range(4):
            a(f"ds_read_b128 {vr(vXB+16*c+4*i,4)}, v{vAX+i}")
        if c < 6:
            a("s_branch ld_sig")
            a.label(f"ld_sv{c+1}")
    a.label("ld_sig")
    a(f"""
    ds_read_b32 v{vT+4}, v{vPR} offset:{CP - CTL}
    s_sub_u32 s{sTMP}, s{sIT}, {LDD-1}
    v_max_u32 v{vT}, s{sTMP}, v{vT}
    s_waitcnt vmcnt({7*LDD})
    ds_write_b32 v{vPW}, v{vT} offset:{LP - CTL}
    """)
    if LDD == 2:
        AD = env("ADRAIN", 7)
        a(f"""
        s_cmp_lg_u32 s{sIT}, {AD}
        s_cbranch_scc1 ld_next
        """)
        for k in range(AD - 1, 7):
            a(f"v_mov_b32 v{vT}, {k+1}")
            a(f"s_waitcnt vmcnt({7*(AD-k)})")
            a(f"ds_write_b32 v{vPW}, v{vT} offset:{LP - CTL}")
        a(f"ds_read_b32 v{vT+4}, v{vPR} offset:{CP - CTL}")
        a(f"ds_write_b32 v{vPW}, v{vT} offset:{LP - CTL}")
    a.label("ld_next")
    if env("STL", 0) & 1: stamp_dyn(a, 20, sIT)
    a(f"""
    s_add_u32 s{sIT}, s{sIT}, 1
    s_cmp_lt_u32 s{sIT}, 11
    s_cbranch_scc1 ld_loop
    """)
    stamp(a, 4)
    for k in range(LDD - 1, 0, -1):
        a(f"s_waitcnt vmcnt({7*k})")
        prog_set(a, vT, LP, 11 - k)

def gen_comp(a):
    vHH, vHHI, vMASK, vCONST, vXR, vXRC = 3, 4, 5, 6, 7, 8
    vNM, vRSTD, vA = 12, 13, 14
    vPG = 15
    vTB = 17
    vTG = 18
    vTN = 20
    vCP = 33
    vTC = 21
    vS0 = 25
    vCSR, vT1, vSEL = 35, 16, 28
    vZ = 36
    vFR = [40, 60]
    vACC = 80
    vXB = 144
    sDST, sSCL, sCSO = sR, sR+4, sR+8
    sRELU, sPASS, sSLOT, sONE, sIDX = sR+12, sR+13, sR+14, sR+15, sR+16
    a("""
    s_waitcnt lgkmcnt(0)
    s_barrier
    """)
    set_srd(a, sCc, pDBG, 256)
    set_srd(a, sA, pX, S*D*2)
    set_srd(a, sB, pW2, DFF*D*2)
    stamp(a, 1)
    a(f"""
    s_or_b32 s{sTMP}, s2, s{sWAVE}
    s_cmp_lg_u32 s{sTMP}, 0
    s_cbranch_scc1 c_notag
    s_memrealtime s[{sTAG}:{sTAG+1}]
    s_waitcnt lgkmcnt(0)
    s_or_b32 s{sTAG}, s{sTAG}, 1
    v_mov_b32 v{vTG}, s{sTAG}
    v_mov_b32 v{vTG+1}, s{sTAG+1}
    buffer_store_dwordx2 {vr(vTG,2)}, v{vF0}, {sr(sCc,4)}, 0 offen sc1
    """)
    a.label("c_notag")
    a(f"v_mov_b32 v{vTB}, {OOB:#x}")
    dry_by_wave(a, [["c_epi"], ["c_epi2", "c_posta"], ["c_loopa", "c_epi_end"], ["c_passb"]], "dw1")
    stamp(a, 2)
    a(f"""
    v_lshrrev_b32 v{vHH}, 5, v{vLANE}
    v_bfe_u32 v{vS0+1}, v{vLANE}, 2, 2
    v_bfe_u32 v{vS0+2}, v{vLANE}, 4, 1
    v_and_b32 v{vS0+3}, 3, v{vLANE}
    v_lshlrev_b32 v{vS0+2}, 5, v{vS0+2}
    v_lshl_add_u32 v{vS0+2}, v{vS0+3}, 3, v{vS0+2}
    v_lshl_add_u32 v{vS0+4}, v{vHH}, 3, v{vS0+1}
    s_movk_i32 s{sTMP}, 192
    v_mad_u32_u24 v{vTB}, v{vS0+4}, s{sTMP}, v{vS0+2}
    s_and_b32 s{sTMP}, s{sCOL}, 1
    s_lshl_b32 s{sTMP}, s{sTMP}, 3
    s_add_u32 s{sTMP}, s{sTMP}, 16384
    v_add_u32 v{vTB}, s{sTMP}, v{vTB}
    v_mov_b32 v{vZ}, 0
    v_mov_b32 v{vZ+1}, 0
    v_mov_b32 v{vZ+2}, 0
    v_mov_b32 v{vZ+3}, 0
    v_and_b32 v{vS0+5}, 31, v{vLANE}
    v_bfe_u32 v{vS0+6}, v{vLANE}, 1, 3
    v_xor_b32 v{vS0+6}, v{vS0+6}, v{vHH}
    v_lshlrev_b32 v{vS0+6}, 4, v{vS0+6}
    v_mfma_f32_32x32x16_bf16 {vr(vACC,16)}, {vr(vZ,4)}, {vr(vZ,4)}, 0
    v_lshl_add_u32 v{vXR}, v{vS0+5}, 7, v{vS0+6}
    s_lshl_b32 s{sTMP}, s{sWAVE}, 12
    v_add_u32 v{vXR}, s{sTMP}, v{vXR}
    v_lshlrev_b32 v{vCSR}, 4, v{vHH}
    v_add_u32 v{vCSR}, {CSA}, v{vCSR}
    v_lshlrev_b32 v{vT1}, 8, v{vS0+4}
    v_mfma_f32_32x32x16_bf16 {vr(vACC+16,16)}, {vr(vZ,4)}, {vr(vZ,4)}, 0
    v_add_u32 v{vT1}, v{vT1}, v{vS0+2}
    v_lshlrev_b32 v{vS0+7}, 6, v{vS0+1}
    v_or_b32 v{vT1}, v{vT1}, v{vS0+7}
    v_mfma_f32_32x32x16_bf16 {vr(vACC+32,16)}, {vr(vZ,4)}, {vr(vZ,4)}, 0
    v_sub_u32 v{vHHI}, v{vHH}, 1
    v_sub_u32 v{vHH}, 0, v{vHH}
    v_mov_b32 v{vMASK}, v{vHHI}
    v_and_b32 v{vCONST}, 0x3f80, v{vHH}
    s_mov_b32 s{sRELU}, 0x80008000
    s_mov_b32 s{sONE}, 0x3f803f80
    s_mov_b32 s{sIT}, 1
    s_mov_b32 s{sSLOT}, {SL0 + 4*SLOT}
    s_mov_b32 s{sIDX}, 0
    s_mul_i32 s{sTMP2}, s{sCOL}, 3
    s_cmp_eq_u32 s{sWAVE}, 3
    s_cselect_b32 s{sTMP3}, 0, s{sWAVE}
    v_mov_b32 v{vS0}, v{vTB}
    """)
    for j in range(3):
        a(f"""
        s_add_u32 s{sTMP}, s{sTMP2}, s{sTMP3}
        s_cmp_lt_u32 s{sTMP}, 16
        s_cselect_b32 s{sSCL+j}, {f32bits(QSCALE):#x}, 1.0
        s_cselect_b32 s{sIDX}, 11, 12
        s_cselect_b32 s{sSPIN}, 0, {KF_OFF}
        s_cmp_ge_u32 s{sTMP}, 32
        s_cselect_b32 s{sSPIN}, {KF_OFF + 2048}, s{sSPIN}
        s_and_b32 s{sTMP}, s{sTMP}, 15
        s_lshl_b32 s{sTMP}, s{sTMP}, 6
        s_add_u32 s{sTMP}, s{sTMP}, s{sMT32}
        s_lshl_b32 s{sTMP}, s{sTMP}, s{sIDX}
        s_add_u32 s{sDST+j}, s{sTMP}, s{sSPIN}
        s_lshl_b32 s{sCSO+j}, s{sTMP3}, 7
        s_mul_i32 s{sTMP}, s{sTMP3}, 56
        v_add_u32 v{vTB+j}, s{sTMP}, v{vS0}
        s_add_u32 s{sTMP3}, s{sTMP3}, 1
        s_cmp_eq_u32 s{sTMP3}, 3
        s_cselect_b32 s{sTMP3}, 0, s{sTMP3}
        v_add_u32 v{vTC+j}, s{sSLOT}, v{vTB+j}
        """)
    a(f"""
    s_mov_b32 s{sCSO+3}, 0
    s_mov_b32 s{sPASS}, 1
    v_add_u32 v{vXRC}, s{sSLOT}, v{vXR}
    v_mov_b32 v{vCP}, 0
    v_mov_b32 v{vCP+1}, 0
    v_and_b32 v{vS0}, 0x13, v{vLANE}
    v_cmp_ne_u32 vcc, 0x13, v{vS0}
    v_and_b32 v{vS0+1}, 7, v{vLANE}
    v_mul_u32_u24 v{vS0+1}, {4*192}, v{vS0+1}
    v_cndmask_b32 v{vSEL}, 0, 1, vcc
    v_lshrrev_b32 v{vS0+2}, 1, v{vLANE}
    v_and_b32 v{vS0+2}, 3, v{vS0+2}
    v_mul_u32_u24 v{vS0+2}, {8*192}, v{vS0+2}
    v_add_u32 v{vS0+1}, v{vS0+1}, v{vS0+2}
    v_mov_b32 v{vS0+5}, s{sONE}
    v_mov_b32 v{vS0+6}, s{sONE}
    ds_write_b64 v{vS0+1}, {vr(vS0+5,2)}
    v_mul_u32_u24 v{vTB+1}, v{vSEL}, v{vTB+1}
    v_mad_u32_u24 v{vTC+1}, v{vSEL}, s{sSLOT}, v{vTB+1}
    """)
    for i in range(4, 8):
        a(f"v_mov_b32 v{vS0+i}, 0")
    prog_wait(a, vPG, LP, env("AWAIT", 1))
    a(f"s_setprio {env('XPRIO', 3)}")
    stamp(a, 3)
    vCB = [128, 192]
    def reads(st):
        ops = []
        for q in range(4):
            f = vCB[st] + 16*q
            if q == 0:
                ops.append(f"ds_read_b128 {vr(f+12,4)}, v{vXRC}")
            else:
                ops.append(f"v_xor_b32 v{vTN}, {32*q}, v{vXRC}\nds_read_b128 {vr(f+12,4)}, v{vTN}")
            for j in range(3):
                for p in range(2):
                    ops.append(f"ds_read_b64_tr_b16 {vr(f+4*j+2*p,2)}, v{vTC+j} offset:{(16*q+4*p)*192}")
        return ops
    r0 = reads(0)
    for i, op in enumerate(r0):
        a(op)
        if i == 13: a("s_waitcnt lgkmcnt(0)")
    a.raw(".p2align 6")
    a.label("c_loopa")
    def half(st):
        a("s_waitcnt lgkmcnt(0)")
        if env("STL", 0) & 2: stamp_dyn(a, 22, sIT)
        a(f"""
        v_mov_b32 v{vTC+3}, s{sIT}
        s_add_u32 s{sSLOT}, s{sSLOT}, {SLOT}
        ds_write_b32 v{vPW}, v{vTC+3} offset:{CP - CTL}
        s_cmp_ge_u32 s{sSLOT}, {CTL}
        s_cselect_b32 s{sSLOT}, {SL0}, s{sSLOT}
        v_add_u32 v{vXRC}, s{sSLOT}, v{vXR}
        v_add_u32 v{vTC}, s{sSLOT}, v{vTB}
        v_mad_u32_u24 v{vTC+1}, v{vSEL}, s{sSLOT}, v{vTB+1}
        v_add_u32 v{vTC+2}, s{sSLOT}, v{vTB+2}
        ds_read_b32 v{vPG}, v{vPR} offset:{LP - CTL}
        """)
        for q in range(4):
            f = vCB[st] + 16*q
            for i in range(4):
                a(f"v_dot2c_f32_bf16 v{vCP+(i&1)}, s{sONE}, v{f+i}")
                a(f"v_dot2c_f32_bf16 v{vS0+4+i}, v{f+12+i}, v{f+12+i}")
        f0 = vCB[st]
        a(f"v_mfma_f32_32x32x16_bf16 {vr(vACC,16)}, {vr(f0,4)}, {vr(f0+12,4)}, {vr(vACC,16)}")
        a(f"""
        s_waitcnt lgkmcnt(0)
        v_cmp_ge_u32 vcc, s{sIT}, v{vPG}
        s_cbranch_vccnz c_la_slow{st}
        """)
        a.label(f"c_la_back{st}")
        nx = reads(1 - st)
        for _ in range(2): a(nx.pop(0))
        k = 0
        for q in range(4):
            f = vCB[st] + 16*q
            for j in range(3):
                if q == 0 and j == 0: continue
                a(f"v_mfma_f32_32x32x16_bf16 {vr(vACC+16*j,16)}, {vr(f+4*j,4)}, {vr(f+12,4)}, {vr(vACC+16*j,16)}")
                if k == 4 or k == 7: a("s_waitcnt lgkmcnt(5)")
                for _ in range(3):
                    if nx: a(nx.pop(0))
                k += 1
        assert not nx
        a(f"s_add_u32 s{sIT}, s{sIT}, 1")
    half(0)
    if DRY: a("s_cbranch_execz c_loopa2")
    a(f"""
    s_cmp_eq_u32 s{sIT}, 8
    s_cbranch_scc1 c_posta
    """)
    a.label("c_loopa2")
    half(1)
    dry_end(a)
    a("s_branch c_loopa")
    a.label("c_posta")
    stamp(a, 4)
    a(f"buffer_load_dwordx2 {vr(vTG,2)}, v{vF0}, {sr(sCc,4)}, 0 offen sc1")
    a(f"""
    v_add_f32 v{vCP}, v{vCP}, v{vCP+1}
    v_add_f32 v{vS0+4}, v{vS0+4}, v{vS0+5}
    v_add_f32 v{vS0+6}, v{vS0+6}, v{vS0+7}
    v_mov_b32 v{vCP+1}, v{vCP}
    v_and_b32 v{vS0+2}, 31, v{vLANE}
    v_lshlrev_b32 v{vS0+2}, 2, v{vS0+2}
    v_permlane32_swap_b32 v{vCP}, v{vCP+1}
    v_add_f32 v{vS0+4}, v{vS0+4}, v{vS0+6}
    v_add_u32 v{vS0+2}, s{sCSO}, v{vS0+2}
    v_add_f32 v{vCP}, v{vCP}, v{vCP+1}
    v_add_u32 v{vS0+2}, {CSA}, v{vS0+2}
    v_mov_b32 v{vS0+5}, v{vS0+4}
    ds_write_b32 v{vS0+2}, v{vCP}
    v_mov_b32 v{vS0+6}, 8
    ds_write_b32 v{vPW}, v{vS0+6} offset:{CP - CTL}
    v_mov_b32 v{vS0}, v{vACC+16+12}
    v_mov_b32 v{vS0+1}, v{vACC+16+12}
    v_permlane32_swap_b32 v{vS0+4}, v{vS0+5}
    s_nop 0
    v_permlane32_swap_b32 v{vS0}, v{vS0+1}
    v_add_f32 v{vS0+4}, v{vS0+4}, v{vS0+5}
    v_mul_f32 v{vS0+4}, {f32bits(1.0/D):#x}, v{vS0+4}
    v_mul_f32 v{vNM}, {f32bits(-1.0/D):#x}, v{vS0+1}
    v_fma_f32 v{vS0+4}, -v{vNM}, v{vNM}, v{vS0+4}
    v_max_f32 v{vS0+4}, 0, v{vS0+4}
    v_add_f32 v{vS0+4}, {f32bits(1e-5):#x}, v{vS0+4}
    v_rsq_f32 v{vRSTD}, v{vS0+4}
    s_lshl_b32 s{sTMP}, s{sWAVE}, 8
    s_add_u32 s{sTMP}, s{sTMP}, {STA}
    v_and_b32 v{vS0+2}, 31, v{vLANE}
    v_lshlrev_b32 v{vS0+2}, 3, v{vS0+2}
    v_add_u32 v{vS0+2}, s{sTMP}, v{vS0+2}
    ds_write_b64 v{vS0+2}, {vr(vNM,2)}
    """)
    prog_wait(a, vPG, CP, 8, sleep=0)
    dry_end(a)
    a.label("c_epi")
    vCS2 = [vFR[0], vFR[0] + 16]
    def cs_read(j):
        a(f"v_add_u32 v{vXRC}, s{sCSO+j}, v{vCSR}")
        for g in range(4):
            a(f"ds_read_b128 {vr(vCS2[j%2]+4*g,4)}, v{vXRC} offset:{32*g}")
    cs_read(0)
    for j in range(4):
        acc = vACC + 16*j
        cs = vCS2[j % 2]
        if j == 2:
            dry_end(a)
            a.label("c_epi2")
        if j < 3:
            cs_read(j + 1)
            a("s_waitcnt lgkmcnt(4)")
        else:
            a("s_waitcnt lgkmcnt(0)")
        if env("STL", 0) & 4 and j < 3: stamp(a, 10 + j)
        a(f"v_mul_f32 v{vA}, s{sSCL+j}, v{vRSTD}")
        for i in range(16):
            a(f"v_fmac_f32 v{acc+i}, v{cs+i}, v{vNM}")
        for i in range(16):
            a(f"v_mul_f32 v{acc+i}, v{vA}, v{acc+i}")
        for i in range(8):
            a(f"v_cvt_pk_bf16_f32 v{acc+i}, v{acc+2*i}, v{acc+2*i+1}")
        for i in range(8):
            a(f"v_pk_max_i16 v{acc+i}, v{acc+i}, s{sRELU}")
            if i == 5:
                a(f"buffer_store_dwordx4 {vr(acc,4)}, v{vL16}, {sr(sWS,4)}, s{sDST+j} offen sc1")
        a(f"v_and_or_b32 v{acc+6}, v{acc+6}, v{vMASK}, v{vCONST}")
        a(f"v_and_b32 v{acc+7}, v{acc+7}, v{vMASK}")
        a(f"buffer_store_dwordx4 {vr(acc+4,4)}, v{vL16}, {sr(sWS,4)}, s{sDST+j} offen offset:1024 sc1")
        if j == 2:
            if DRY: a("s_cbranch_execz c_epi3")
            a(f"s_cmp_eq_u32 s{sPASS}, 1")
            a("s_cbranch_scc1 c_epi_end")
            a.label("c_epi3")
    a("s_nop 1")
    for j in range(4):
        a(f"v_mfma_f32_32x32x16_bf16 {vr(vACC+16*j,16)}, {vr(vZ,4)}, {vr(vZ,4)}, 0")
    dry_end(a)
    a("s_branch c_done")
    a.label("c_epi_end")
    prog_set(a, vS0, CP, 9)
    stamp(a, 5)
    a(f"""
    s_mul_i32 s{sTMP}, s{sCOL}, 3
    s_lshr_b32 s{sTMP2}, s{sMT32}, 2
    v_lshrrev_b32 v{vS0+1}, 4, v{vLANE}
    v_add_u32 v{vS0+1}, s{sTMP}, v{vS0+1}
    v_and_b32 v{vS0+2}, 15, v{vS0+1}
    v_lshrrev_b32 v{vS0+1}, 4, v{vS0+1}
    v_and_b32 v{vS0+3}, 15, v{vLANE}
    v_lshl_add_u32 v{vS0+2}, v{vS0+2}, 4, v{vS0+3}
    v_lshlrev_b32 v{vS0+2}, 9, v{vS0+2}
    v_lshlrev_b32 v{vTB}, 4, v{vS0+1}
    v_add_u32 v{vTB}, s{sTMP2}, v{vTB}
    v_lshl_add_u32 v{vTB}, v{vTB}, 3, v{vS0+2}
    v_add_u32 v{vTB}, {F1_OFF}, v{vTB}
    v_cmp_eq_u32 vcc, 0, v{vS0+1}
    v_cmp_ne_u32 s[72:73], s{sTMP2}, v{vS0+3}
    s_and_b64 vcc, vcc, s[72:73]
    v_cmp_lt_u32 s[72:73], 47, v{vLANE}
    s_or_b64 vcc, vcc, s[72:73]
    v_mov_b32 v{vS0+1}, {OOB:#x}
    s_nop 0
    v_cndmask_b32 v{vTB}, v{vTB}, v{vS0+1}, vcc
    """)
    stamp(a, 8)
    a(f"""
    s_waitcnt vmcnt(0)
    v_readfirstlane_b32 s{sTAG}, v{vTG}
    v_readfirstlane_b32 s{sTAG+1}, v{vTG+1}
    s_cmp_lg_u32 s{sTAG}, 0
    s_cbranch_scc1 c_lb_tag
    """)
    get_tag(a, vS0+1)
    a.label("c_lb_tag")
    publish_flag(a, vS0+1, vTB, 0)
    stamp(a, 9)
    dry_end(a)
    if env("STS", 0):
        stamp_flush(a, 0, sWS, sW8, 20, wpw=8)
        a("s_endpgm")
    a("s_branch x_attn")
    a.label("c_passb")
    a(f"s_setprio {env('CPRIO', 2)}")
    set_srd(a, sCc, pDBG, 256)
    a(f"""
    buffer_load_dwordx2 {vr(vTG,2)}, v{vF0}, {sr(sCc,4)}, 0 offen sc1
    v_lshrrev_b32 v{vHH}, 5, v{vLANE}
    v_bfe_u32 v{vS0+1}, v{vLANE}, 2, 2
    v_bfe_u32 v{vS0+2}, v{vLANE}, 4, 1
    v_and_b32 v{vS0+3}, 3, v{vLANE}
    v_lshlrev_b32 v{vS0+2}, 5, v{vS0+2}
    v_lshl_add_u32 v{vS0+2}, v{vS0+3}, 3, v{vS0+2}
    v_lshl_add_u32 v{vS0+4}, v{vHH}, 3, v{vS0+1}
    v_mov_b32 v{vZ}, 0
    v_mov_b32 v{vZ+1}, 0
    v_mov_b32 v{vZ+2}, 0
    v_mov_b32 v{vZ+3}, 0
    v_lshlrev_b32 v{vCSR}, 4, v{vHH}
    v_add_u32 v{vCSR}, {CSA}, v{vCSR}
    v_lshlrev_b32 v{vT1}, 8, v{vS0+4}
    v_add_u32 v{vT1}, v{vT1}, v{vS0+2}
    v_lshlrev_b32 v{vS0+7}, 6, v{vS0+1}
    v_or_b32 v{vT1}, v{vT1}, v{vS0+7}
    s_lshl_b32 s{sTMP}, s{sWAVE}, 6
    v_xor_b32 v{vT1}, s{sTMP}, v{vT1}
    s_mov_b32 s{sONE}, 0x3f803f80
    """)
    for b in range(4):
        a(f"v_mfma_f32_32x32x16_bf16 {vr(vACC+16*b,16)}, {vr(vZ,4)}, {vr(vZ,4)}, 0")
        a(f"v_mov_b32 v{vS0+4+b}, 0")
        a(f"v_xor_b32 v{vTC+b}, {b << 6}, v{vT1}")
        a(f"v_add_u32 v{vTC+b}, {WB}, v{vTC+b}")
    prog_wait(a, vPG, LP, 10)
    stamp(a, 7)
    def rdB(step, b):
        f = vFR[step % 2]
        for p in range(2):
            a(f"ds_read_b64_tr_b16 {vr(f+4*b+2*p,2)}, v{vTC+b} offset:{4096*step + 1024*p}")
    def fetchx(step, i0):
        f = vFR[step % 2]
        a(f"s_set_gpr_idx_on s{sIDX}, gpr_idx(SRC0)")
        for i in range(i0, i0 + 2):
            a(f"v_mov_b32 v{f+16+i}, v{vXB+4*(step%4)+i}")
        a("s_set_gpr_idx_off")
    a(f"""
    s_mov_b32 s{sIT}, 0
    s_mov_b32 s{sIDX}, 0
    """)
    for b in range(4): rdB(0, b)
    a("s_waitcnt lgkmcnt(4)")
    for b in range(4): rdB(1, b)
    fetchx(0, 0); fetchx(0, 2)
    a.raw(".p2align 6")
    a.label("c_loopb")
    a(f"""
    s_bitcmp1_b32 {(1<<2)|(1<<4):#x}, s{sIT}
    s_cbranch_scc1 c_lb_rare
    """)
    a.label("c_lb_go")
    for k in range(4):
        f = vFR[k % 2]
        for b in range(4):
            if b % 2 == 0:
                a("s_waitcnt lgkmcnt(11)")
            if b == 0:
                for i in range(4):
                    a(f"v_dot2c_f32_bf16 v{vS0+4+i}, s{sONE}, v{f+i}")
            a(f"v_mfma_f32_32x32x16_bf16 {vr(vACC+16*b,16)}, {vr(f+4*b,4)}, {vr(f+16,4)}, {vr(vACC+16*b,16)}")
            rdB(k + 2, b)
            if k == 2 and b == 3:
                a(f"s_add_u32 s{sIDX}, s{sIDX}, 16")
                a(f"s_min_u32 s{sIDX}, s{sIDX}, 96")
            if b == 0: fetchx(k + 1, 0)
            if b == 2: fetchx(k + 1, 2)
            if k == 3:
                a(f"v_add_u32 v{vTC+b}, 16384, v{vTC+b}")
    dry_end(a)
    a(f"""
    s_add_u32 s{sIT}, s{sIT}, 1
    s_cmp_lt_u32 s{sIT}, 7
    s_cbranch_scc1 c_loopb
    s_waitcnt lgkmcnt(0)
    """)
    stamp(a, 6)
    a(f"""
    v_add_f32 v{vS0+4}, v{vS0+4}, v{vS0+5}
    v_add_f32 v{vS0+6}, v{vS0+6}, v{vS0+7}
    v_and_b32 v{vS0+2}, 31, v{vLANE}
    v_add_f32 v{vS0+4}, v{vS0+4}, v{vS0+6}
    v_lshlrev_b32 v{vS0+2}, 2, v{vS0+2}
    v_mov_b32 v{vS0+5}, v{vS0+4}
    s_lshl_b32 s{sTMP}, s{sWAVE}, 7
    s_add_u32 s{sTMP}, s{sTMP}, {CSB_}
    v_permlane32_swap_b32 v{vS0+4}, v{vS0+5}
    v_add_u32 v{vS0+2}, s{sTMP}, v{vS0+2}
    s_nop 0
    v_add_f32 v{vS0+4}, v{vS0+4}, v{vS0+5}
    ds_write_b32 v{vS0+2}, v{vS0+4}
    """)
    prog_set(a, vS0, SP, 2)
    a(f"""
    s_lshr_b32 s{sTMP}, s{sCOL}, 1
    s_mul_i32 s{sTMP}, s{sTMP}, 7
    s_and_b32 s{sTMP2}, s{sCOL}, 1
    s_mul_i32 s{sTMP2}, s{sTMP2}, 3
    s_add_u32 s{sTMP}, s{sTMP}, s{sTMP2}
    s_mul_i32 s{sTMP2}, s{sMT32}, 72
    s_add_u32 s{sTMP}, s{sTMP}, s{sTMP2}
    s_lshl_b32 s{sTMP}, s{sTMP}, 11
    s_add_u32 s{sTMP}, s{sTMP}, {HF_OFF}
    s_mov_b32 s{sRELU}, 0
    v_mov_b32 v{vMASK}, -1
    v_mov_b32 v{vCONST}, 0
    s_mov_b32 s{sPASS}, 2
    """)
    for j in range(4):
        a(f"""
        s_mov_b32 s{sSCL+j}, 1.0
        s_xor_b32 s{sTMP2}, s{sWAVE}, {j}
        s_lshl_b32 s{sTMP3}, s{sTMP2}, 7
        s_add_u32 s{sCSO+j}, s{sTMP3}, 512
        s_lshl_b32 s{sTMP2}, s{sTMP2}, 11
        s_add_u32 s{sDST+j}, s{sTMP}, s{sTMP2}
        """)
    a(f"""
    v_readfirstlane_b32 s{sTAG}, v{vTG}
    v_readfirstlane_b32 s{sTAG+1}, v{vTG+1}
    s_cmp_lg_u32 s{sTAG}, 0
    s_cbranch_scc1 c_lb_tag2
    """)
    get_tag(a, vS0+1)
    a.label("c_lb_tag2")
    prog_wait(a, vPG, CP, 9)
    a(f"""
    s_lshl_b32 s{sTMP}, s{sWAVE}, 8
    s_add_u32 s{sTMP}, s{sTMP}, {STA}
    v_and_b32 v{vS0+2}, 31, v{vLANE}
    v_lshlrev_b32 v{vS0+2}, 3, v{vS0+2}
    v_add_u32 v{vS0+2}, s{sTMP}, v{vS0+2}
    ds_read_b64 {vr(vNM,2)}, v{vS0+2}
    """)
    prog_wait(a, vPG, SP, 2, sleep=0)
    stamp(a, 11)
    a("s_branch c_epi")
    for st in range(2):
        a.label(f"c_la_slow{st}")
        a(f"""
        s_cmp_eq_u32 s{sIT}, 7
        s_cbranch_scc1 c_la_back{st}
        s_add_u32 s{sTMP3}, s{sIT}, 1
        """)
        prog_wait(a, vPG, LP, f"s{sTMP3}", sleep=env("ASLEEP", 1))
        a(f"s_branch c_la_back{st}")
    a.label("c_lb_rare")
    a(f"""
    s_cmp_lg_u32 s{sIT}, 2
    s_cbranch_scc1 c_lb_r1
    """)
    prog_set(a, vS0, SP, 1)
    a("s_waitcnt vmcnt(0)")
    prog_set(a, vS0+1, LP, 11)
    a("s_waitcnt lgkmcnt(0)")
    a("s_branch c_lb_go")
    a.label("c_lb_r1")
    prog_wait(a, vPG, LP, 11)
    stamp(a, 10)
    a("s_branch c_lb_go")
    a.label("c_done")
    stamp(a, 12)

from mk2 import gen_attn, gen_gemm2

def build():
    hdr = open("cdna_kernels/" + NAME + ".s.ref").read().split("\n")
    out = [l for l in hdr if l.startswith(";") and "@launch" not in l]
    body = Asm()
    body.raw(".p2align 8")
    d = gen(body)
    out.append(f"; @launch grid=({d['grid']},1,1) block=({d['block']},1,1) lds={d['lds']}")
    out.append('.amdgcn_target "amdgcn-amd-amdhsa--gfx950"')
    out.append(".text")
    out.append(f".globl {d['name']}")
    out.append(f".type {d['name']},@function")
    txt = "\n".join(out) + "\n" + body.text()
    txt += '.section .rodata,"a"\n.p2align 6\n' + kernel_desc(d['name'], d['nvgpr'], d['accum'])
    return txt
```

```python
import os
from asmlib import *
from mk import *

def reduce_write(a, vACC, vWA, sBASE):
    a(f"v_add_u32 v{vWA}, s{sBASE}, v{vL16}")
    for j in range(1, 4):
        for g in range(4):
            a(f"ds_write_b128 v{vWA}, {vr(vACC+16*j+4*g,4)} offset:{(j-1)*4096+g*1024}")
def reduce_read(a, vACC, vT, vRA, region0):
    for j in range(1, 4):
        a(f"""
        s_xor_b32 s{sTMP}, s{sWAVE}, {j}
        s_lshl_b32 s{sTMP}, s{sTMP}, 14
        s_add_u32 s{sTMP}, s{sTMP}, {region0 + (j-1)*4096}
        v_add_u32 v{vRA}, s{sTMP}, v{vL16}
        """)
        for g in range(4):
            a(f"ds_read_b128 {vr(vT+16*(j-1)+4*g,4)}, v{vRA} offset:{g*1024}")
    for j in range(3):
        for g in range(4):
            a(f"s_waitcnt lgkmcnt({11 - (4*j+g)})")
            for r in range(4):
                i = 4*g + r
                a(f"v_add_f32 v{vACC+i}, v{vACC+i}, v{vT+16*j+i}")

def gen_attn(a):
    sHEAD, sQB, sKV, sRD, sWR, sLB, sFB, sWV = sR, sR+1, sR+2, sR+3, sR+4, sR+5, sR+6, sR+7
    vKA, vVA, vKAb, vVAb, vHH, vHHI, vT0 = 3, 4, 5, 6, 7, 8, 12
    vQ = 16; vO = 48; vS = [112, 128]; vP = [144, 152]; vK = [160, 168]; vV = [176, 184]; vNM = 192
    vFA = 208
    a(f"""
    s_and_b32 s{sHEAD}, s{sSL}, 1
    s_lshl_b32 s{sTMP}, s{sXCD}, 1
    s_add_u32 s{sHEAD}, s{sHEAD}, s{sTMP}
    s_lshr_b32 s{sQB}, s{sSL}, 1
    s_lshl_b32 s{sKV}, s{sHEAD}, 18
    s_add_u32 s{sKV}, s{sKV}, {KF_OFF}
    s_lshl_b32 s{sLB}, s{sWAVE}, 14
    v_lshrrev_b32 v{vHH}, 5, v{vLANE}
    v_add_u32 v{vKAb}, s{sLB}, v{vL16}
    v_bfe_u32 v{vT0}, v{vLANE}, 4, 1
    v_lshlrev_b32 v{vVAb}, 10, v{vT0}
    v_and_b32 v{vT0}, 1, v{vLANE}
    v_lshl_add_u32 v{vVAb}, v{vT0}, 9, v{vVAb}
    v_bfe_u32 v{vT0}, v{vLANE}, 1, 1
    v_lshl_add_u32 v{vVAb}, v{vT0}, 3, v{vVAb}
    v_bfe_u32 v{vT0}, v{vLANE}, 2, 2
    v_lshl_add_u32 v{vT0}, v{vHH}, 2, v{vT0}
    v_lshl_add_u32 v{vVAb}, v{vT0}, 4, v{vVAb}
    v_add_u32 v{vVAb}, s{sLB}, v{vVAb}
    v_add_u32 v{vVAb}, 2048, v{vVAb}
    v_sub_u32 v{vHHI}, v{vHH}, 1
    v_sub_u32 v{vHH}, 0, v{vHH}
    """)
    a(f"""
    s_lshl_b32 s{sTMP}, s{sHEAD}, 4
    s_add_u32 s{sTMP}, s{sTMP}, s{sQB}
    s_lshl_b32 s{sTMP}, s{sTMP}, 9
    s_add_u32 s{sTMP}, s{sTMP}, {F1_OFF}
    s_lshl_b32 s{sTMP2}, s{sQB}, 3
    s_add_u32 s{sTMP2}, s{sTMP2}, s{sTMP}
    v_and_b32 v{vFA}, 1, v{vLANE}
    v_lshlrev_b32 v{vFA}, 7, v{vFA}
    v_add_u32 v{vFA}, s{sTMP2}, v{vFA}
    s_lshl_b32 s{sTMP2}, s{sWAVE}, 5
    s_add_u32 s{sTMP2}, s{sTMP2}, s{sTMP}
    s_add_u32 s{sTMP2}, s{sTMP2}, 128
    v_bfe_u32 v{vFA+1}, v{vLANE}, 2, 1
    v_lshlrev_b32 v{vFA+1}, 7, v{vFA+1}
    v_and_b32 v{vT0}, 3, v{vLANE}
    v_lshl_add_u32 v{vFA+1}, v{vT0}, 3, v{vFA+1}
    v_add_u32 v{vFA+1}, s{sTMP2}, v{vFA+1}
    """)
    mb23_addr(a, vFA+2, sQB, sHEAD, F3_OFF)
    a(f"v_mov_b32 v{vKA}, v{vKAb}")
    a(f"v_mov_b32 v{vVA}, v{vVAb}")
    stamp(a, 14)
    dry_by_wave(a, [["a_pro"], ["a_loop"], ["a_loop2"], ["a_tail"]], "dw2")
    a("s_waitcnt vmcnt(0) lgkmcnt(0)")
    for i in range(8):
        a(f"v_mov_b32 v{vP[1]+i}, 0")
        a(f"v_mov_b32 v{vV[1]+i}, 0")
    a(f"s_setprio {env('APRIO', 3)}")
    if env("PFW", 0):
        set_srd(a, sA, pW2, DFF*D*2)
        set_srd(a, sB, pWO, D*D*2)
        a(f"""
        s_lshl_b32 s{sTMP}, s{sSL}, 2
        s_add_u32 s{sTMP}, s{sTMP}, s{sWAVE}
        v_lshlrev_b32 v{vT0}, 7, v{vLANE}
        s_lshl_b32 s{sTMP2}, s{sTMP}, 14
        buffer_load_dword v{vNM}, v{vT0}, {sr(sA,4)}, s{sTMP2} offen sc1
        s_add_u32 s{sTMP2}, s{sTMP2}, 8192
        buffer_load_dword v{vNM+1}, v{vT0}, {sr(sA,4)}, s{sTMP2} offen sc1
        s_lshl_b32 s{sTMP2}, s{sTMP}, 13
        buffer_load_dword v{vNM+2}, v{vT0}, {sr(sB,4)}, s{sTMP2} offen sc1
        """)
    stamp(a, 15)
    poll_flags(a, vFA, vT0+2)
    a.label("a_pro")
    stamp(a, 16)
    a(f"""
    s_lshl_b32 s{sTMP}, s{sQB}, 14
    s_add_u32 s{sTMP}, s{sTMP}, s{sKV}
    buffer_load_dwordx4 {vr(vK[1],4)}, v{vL16}, {sr(sWS,4)}, s{sTMP} offen sc1
    buffer_load_dwordx4 {vr(vK[1]+4,4)}, v{vL16}, {sr(sWS,4)}, s{sTMP} offen offset:1024 sc1
    s_lshl_b32 s{sTMP2}, s{sQB}, 2
    s_lshl_b32 s{sTMP3}, s{sHEAD}, 6
    s_add_u32 s{sTMP2}, s{sTMP2}, s{sTMP3}
    """)
    for j in range(4):
        a(f"""
        s_xor_b32 s{sTMP}, s{sWAVE}, {j}
        s_add_u32 s{sTMP}, s{sTMP}, s{sTMP2}
        s_lshl_b32 s{sTMP}, s{sTMP}, 11
        buffer_load_dwordx4 {vr(vQ+8*j,4)}, v{vL16}, {sr(sWS,4)}, s{sTMP} offen sc1
        buffer_load_dwordx4 {vr(vQ+8*j+4,4)}, v{vL16}, {sr(sWS,4)}, s{sTMP} offen offset:1024 sc1
        """)
    prog_wait(a, vT0, SP, 1)
    poll_flags(a, vFA+1, vT0+2)
    stamp(a, 17)
    a(f"""
    s_lshl_b32 s{sTMP}, s{sWAVE}, 16
    s_add_u32 s{sWR}, s{sKV}, s{sTMP}
    s_mov_b32 m0, s{sLB}
    s_nop 0
    """)
    def dma_tile():
        for i in range(4):
            a(f"buffer_load_dwordx4 v{vL16}, {sr(sWS,4)}, s{sWR} offen offset:{1024*i} sc1 lds")
    for t in range(4):
        dma_tile()
        a(f"s_add_u32 s{sWR}, s{sWR}, 4096")
        if t < 3:
            a(f"s_add_u32 m0, m0, 4096")
        a(f"v_mfma_f32_32x32x16_bf16 {vr(vO+16*t,16)}, {vr(vK[1],4)}, {vr(vQ+8*t,4)}, 0")
        a(f"v_mfma_f32_32x32x16_bf16 {vr(vO+16*t,16)}, {vr(vK[1]+4,4)}, {vr(vQ+8*t+4,4)}, {vr(vO+16*t,16)}")
    stamp(a, 18)
    def read_k(st, addr, off=0):
        a(f"ds_read_b128 {vr(vK[st],4)}, v{addr} offset:{off}")
        a(f"ds_read_b128 {vr(vK[st]+4,4)}, v{addr} offset:{off+1024}")
    def read_v_ins(st, addr, off=0):
        return [f"ds_read_b64_tr_b16 {vr(vV[st]+4*s_+2*p,2)}, v{addr} offset:{off+(16*s_+8*p)*16}" for s_ in range(2) for p in range(2)]
    for j in range(4):
        o = vO + 16*j
        if j == 3:
            a("s_waitcnt vmcnt(12)")
            read_k(0, vKAb)
            for x in read_v_ins(0, vVAb): a(x)
        t = vT0 + (j & 1) * 2
        a(f"v_max3_f32 v{t}, v{o}, v{o+1}, v{o+2}")
        for i in range(3, 15, 2):
            a(f"v_max3_f32 v{t}, v{t}, v{o+i}, v{o+i+1}")
        a(f"v_max_f32 v{t}, v{t}, v{o+15}")
        a(f"v_mov_b32 v{t+1}, v{t}")
        a(f"v_mfma_f32_32x32x16_bf16 {vr(o,16)}, {vr(vP[1],4)}, {vr(vP[1],4)}, 0")
        a("s_nop 0")
        a(f"v_permlane32_swap_b32 v{t}, v{t+1}")
        a("s_nop 1")
        a(f"v_max_f32 v{t}, v{t}, v{t+1}")
        a(f"v_add_f32 v{t}, {f32bits(BIAS - 1.0):#x}, v{t}")
        a(f"v_cvt_pk_bf16_f32 v{t}, -v{t}, 0")
        a(f"v_and_b32 v{t}, v{t}, v{vHH}")
        a(f"v_and_or_b32 v{vQ+8*j+6}, v{vQ+8*j+6}, v{vHHI}, v{t}")
    a(f"""
    s_mov_b32 s{sRD}, 0
    s_mov_b32 s{sIT}, 0
    s_waitcnt lgkmcnt(0)
    """)
    a(f"v_mfma_f32_32x32x16_bf16 {vr(vS[0],16)}, {vr(vK[0],4)}, {vr(vQ,4)}, 0")
    a(f"v_mfma_f32_32x32x16_bf16 {vr(vS[0],16)}, {vr(vK[0]+4,4)}, {vr(vQ+4,4)}, {vr(vS[0],16)}")
    a("s_nop 7")
    a("s_nop 3")
    def body(sl):
        st = sl % 2
        for j in range(4):
            sc = vS[j % 2]; sn = vS[(j + 1) % 2]
            pc = vP[j % 2]; pp = vP[(j + 1) % 2]
            kn = vK[st] if j < 3 else vK[1 - st]
            qn = vQ + 8 * ((j + 1) % 4)
            vv = vV[st] if j > 0 else vV[1 - st]
            op = vO + 16 * ((j + 3) % 4)
            mf = [
                f"v_mfma_f32_32x32x16_bf16 {vr(sn,16)}, {vr(kn,4)}, {vr(qn,4)}, 0",
                f"v_mfma_f32_32x32x16_bf16 {vr(sn,16)}, {vr(kn+4,4)}, {vr(qn+4,4)}, {vr(sn,16)}",
                f"v_mfma_f32_32x32x16_bf16 {vr(op,16)}, {vr(vv,4)}, {vr(pp,4)}, {vr(op,16)}",
                f"v_mfma_f32_32x32x16_bf16 {vr(op,16)}, {vr(vv+4,4)}, {vr(pp+4,4)}, {vr(op,16)}",
            ]
            if j == 3:
                a("s_waitcnt lgkmcnt(0)")
            plan = [[("e", 0), ("e", 1), ("e", 2)], [("e", 3), ("e", 4), ("e", 5)], [("e", 6), ("e", 7), ("e", 8)],
                    [("e", i) for i in range(9, 16)] + [("c", i) for i in range(8)]]
            for g in range(4):
                a(mf[g])
                if j == 0 and g == 2:
                    a(f"s_add_u32 m0, s{sLB}, {4096*sl}")
                if j == 0 and g == 3:
                    dma_tile()
                    a(f"s_add_u32 s{sWR}, s{sWR}, 4096")
                if j == 1 and g == 3:
                    a("s_waitcnt vmcnt(12)")
                    read_k(1 - st, vKAb, 4096*((sl+1) % 4))
                    for x in read_v_ins(1 - st, vVAb, 4096*((sl+1) % 4)): a(x)
                for kind, i in plan[g]:
                    if kind == "e":
                        a(f"v_exp_f32 v{sc+i}, v{sc+i}")
                    else:
                        a(f"v_cvt_pk_bf16_f32 v{pc+i}, v{sc+2*i}, v{sc+2*i+1}")
    a("s_setprio 1")
    stamp(a, 19)
    dry_end(a)
    a.raw(".p2align 6")
    a.label("a_loop")
    body(0)
    body(1)
    dry_end(a)
    a.label("a_loop2")
    body(2)
    body(3)
    dry_end(a)
    a(f"""
    s_add_u32 s{sIT}, s{sIT}, 1
    s_cmp_eq_u32 s{sIT}, 3
    s_cselect_b32 s{sWR}, {OOB:#x}, s{sWR}
    s_cmp_lt_u32 s{sIT}, 4
    s_cbranch_scc1 a_loop
    """)
    a.label("a_tail")
    stamp(a, 20)
    a("s_setprio 3")
    a("s_nop 1")
    a(f"v_mfma_f32_32x32x16_bf16 {vr(vO+48,16)}, {vr(vV[1],4)}, {vr(vP[1],4)}, {vr(vO+48,16)}")
    a(f"v_mfma_f32_32x32x16_bf16 {vr(vO+48,16)}, {vr(vV[1]+4,4)}, {vr(vP[1]+4,4)}, {vr(vO+48,16)}")
    a("s_waitcnt vmcnt(0)")
    a("s_nop 3")
    reduce_write(a, vO, vT0, sLB)
    a("s_waitcnt lgkmcnt(0)")
    prog_set(a, vT0, AP, 1)
    prog_wait(a, vT0, AP, 1, sleep=0)
    reduce_read(a, vO, vS[0], vT0, ATT0)
    a(f"s_mov_b32 s{sFB}, 0")
    stamp(a, 21)
    a.label("a_norm")
    a(f"""
    v_mov_b32 v{vT0}, v{vO+12}
    v_mov_b32 v{vT0+1}, v{vO+12}
    s_nop 1
    v_permlane32_swap_b32 v{vT0}, v{vT0+1}
    s_nop 1
    v_rcp_f32 v{vT0}, v{vT0+1}
    v_mov_b32 v{vT0+2}, 0
    """)
    for i in range(16):
        a(f"v_mul_f32 v{vS[0]+i}, v{vO+i}, v{vT0}")
    for i in range(16):
        a(f"v_fma_f32 v{vT0+2}, v{vS[0]+i}, 0, v{vT0+2}")
    a(f"""
    s_mov_b32 s{sTMP}, {f32bits(2.0**-90):#x}
    v_cmp_nle_f32 vcc, s{sTMP}, v{vT0+1}
    s_mov_b32 s{sTMP}, {f32bits(2.0**100):#x}
    v_cmp_nge_f32 s[72:73], s{sTMP}, v{vT0+1}
    v_cmp_u_f32 s[74:75], v{vT0+2}, v{vT0+2}
    s_or_b64 vcc, vcc, s[72:73]
    s_or_b64 vcc, vcc, s[74:75]
    s_cmp_lg_u32 s{sFB}, 0
    s_cbranch_scc1 a_store
    s_cbranch_vccnz a_fallback
    """)
    a.label("a_store")
    for i in range(8):
        a(f"v_cvt_pk_bf16_f32 v{vP[0]+i}, v{vS[0]+2*i}, v{vS[0]+2*i+1}")
    a(f"""
    v_and_b32 v{vP[0]+6}, v{vP[0]+6}, v{vHHI}
    v_and_b32 v{vP[0]+7}, v{vP[0]+7}, v{vHHI}
    s_lshl_b32 s{sTMP3}, s{sQB}, 2
    s_add_u32 s{sTMP3}, s{sTMP3}, s{sWAVE}
    s_mul_i32 s{sTMP}, s{sTMP3}, 144
    s_lshl_b32 s{sTMP2}, s{sHEAD}, 1
    s_add_u32 s{sTMP}, s{sTMP}, s{sTMP2}
    s_lshl_b32 s{sTMP}, s{sTMP}, 10
    s_add_u32 s{sTMP}, s{sTMP}, {HF_OFF + 112*1024}
    buffer_store_dwordx4 {vr(vP[0],4)}, v{vL16}, {sr(sWS,4)}, s{sTMP} offen sc1
    buffer_store_dwordx4 {vr(vP[0]+4,4)}, v{vL16}, {sr(sWS,4)}, s{sTMP} offen offset:1024 sc1
    s_waitcnt vmcnt(0)
    """)
    stamp(a, 22)
    publish_flag(a, vT0+2, vFA+2, 2)
    dry_end(a)
    stamp_flush(a, 0, sWS, sW8, 20, wpw=8)
    a("s_endpgm")
    a.label("a_fallback")
    a(f"""
    v_and_b32 v{vQ+6}, v{vQ+6}, v{vHHI}
    v_mov_b32 v{vT0}, 0xff800000
    s_mov_b32 s{sWR}, s{sKV}
    s_mov_b32 s{sIT}, 0
    """)
    a.label("a_fb1")
    a(f"""
    buffer_load_dwordx4 {vr(vK[0],4)}, v{vL16}, {sr(sWS,4)}, s{sWR} offen sc1
    buffer_load_dwordx4 {vr(vK[0]+4,4)}, v{vL16}, {sr(sWS,4)}, s{sWR} offen offset:1024 sc1
    s_waitcnt vmcnt(0)
    v_mfma_f32_32x32x16_bf16 {vr(vS[0],16)}, {vr(vK[0],4)}, {vr(vQ,4)}, 0
    v_mfma_f32_32x32x16_bf16 {vr(vS[0],16)}, {vr(vK[0]+4,4)}, {vr(vQ+4,4)}, {vr(vS[0],16)}
    s_nop 15
    s_nop 3
    """)
    for i in range(0, 16, 2):
        a(f"v_max3_f32 v{vT0}, v{vT0}, v{vS[0]+i}, v{vS[0]+i+1}")
    a(f"""
    s_add_u32 s{sWR}, s{sWR}, 4096
    s_add_u32 s{sIT}, s{sIT}, 1
    s_cmp_lt_u32 s{sIT}, 64
    s_cbranch_scc1 a_fb1
    v_mov_b32 v{vT0+1}, v{vT0}
    s_nop 1
    v_permlane32_swap_b32 v{vT0}, v{vT0+1}
    s_nop 1
    v_max_f32 v{vT0}, v{vT0}, v{vT0+1}
    """)
    for i in range(16):
        a(f"v_sub_f32 v{vNM+i}, 0, v{vT0}")
        a(f"v_mov_b32 v{vO+i}, 0")
    a(f"""
    s_add_u32 m0, s{sLB}, 12288
    v_add_u32 v{vKA}, 12288, v{vKAb}
    v_add_u32 v{vVA}, 12288, v{vVAb}
    s_mov_b32 s{sWR}, s{sKV}
    s_mov_b32 s{sIT}, 0
    """)
    a.label("a_fb2")
    dma_tile()
    a("s_waitcnt vmcnt(0)")
    read_k(0, vKA)
    for x in read_v_ins(0, vVA): a(x)
    a(f"""
    s_waitcnt lgkmcnt(0)
    v_mfma_f32_32x32x16_bf16 {vr(vS[0],16)}, {vr(vK[0],4)}, {vr(vQ,4)}, {vr(vNM,16)}
    v_mfma_f32_32x32x16_bf16 {vr(vS[0],16)}, {vr(vK[0]+4,4)}, {vr(vQ+4,4)}, {vr(vS[0],16)}
    s_nop 15
    s_nop 3
    """)
    for i in range(16):
        a(f"v_exp_f32 v{vS[0]+i}, v{vS[0]+i}")
    a("s_nop 0")
    for i in range(8):
        a(f"v_cvt_pk_bf16_f32 v{vP[0]+i}, v{vS[0]+2*i}, v{vS[0]+2*i+1}")
    a(f"""
    s_nop 1
    v_mfma_f32_32x32x16_bf16 {vr(vO,16)}, {vr(vV[0],4)}, {vr(vP[0],4)}, {vr(vO,16)}
    v_mfma_f32_32x32x16_bf16 {vr(vO,16)}, {vr(vV[0]+4,4)}, {vr(vP[0]+4,4)}, {vr(vO,16)}
    s_add_u32 s{sWR}, s{sWR}, 4096
    s_add_u32 s{sIT}, s{sIT}, 1
    s_cmp_lt_u32 s{sIT}, 64
    s_cbranch_scc1 a_fb2
    s_nop 15
    s_nop 3
    s_mov_b32 s{sFB}, 1
    s_branch a_norm
    """)

def gen_gemm2(a):
    sMT, sNT, sHO, sWOFF, sGB, sWO3 = sR, sR+1, sR+2, sR+3, sR+4, sR+5
    vH0, vH1, vWD, vTR0, vTR1, vXA, vT0, vFA = 3, 4, 5, 6, 7, 8, 12, 15
    vXD = 18
    vWF = 224
    vACC = 80
    vHR = 144
    vWB = 16
    if env("STS", 0):
        stamp_flush(a, 0, sWS, sW8, 20, wpw=8)
        a("s_endpgm")
    a(f"""
    s_mul_i32 s{sTMP}, s{sSL}, 37
    s_lshr_b32 s{sTMP}, s{sTMP}, 8
    s_mul_i32 s{sTMP2}, s{sTMP}, 7
    s_sub_u32 s{sNT}, s{sSL}, s{sTMP2}
    s_lshl_b32 s{sMT}, s{sXCD}, 2
    s_add_u32 s{sMT}, s{sMT}, s{sTMP}
    s_lshl_b32 s{sMT}, s{sMT}, 1
    """)
    a(f"""
    v_and_b32 v{vFA}, 15, v{vLANE}
    s_mul_i32 s{sTMP}, s{sXCD}, 28
    s_add_u32 s{sTMP}, s{sTMP}, s{sSL}
    s_lshl_b32 s{sTMP}, s{sTMP}, 4
    v_add_u32 v{vFA}, s{sTMP}, v{vFA}
    v_lshlrev_b32 v{vFA}, 3, v{vFA}
    v_add_u32 v{vFA}, {F2_OFF}, v{vFA}
    s_and_b32 s{sTMP}, s{sWAVE}, 1
    s_add_u32 s{sMT}, s{sMT}, s{sTMP}
    s_mul_i32 s{sTMP}, s{sMT}, {144*1024}
    s_add_u32 s{sTMP}, s{sTMP}, {HF_OFF}
    v_add_u32 v{vH0}, s{sTMP}, v{vL16}
    s_xor_b32 s{sTMP}, s{sMT}, 1
    s_mul_i32 s{sTMP}, s{sTMP}, {144*1024}
    s_add_u32 s{sTMP}, s{sTMP}, {HF_OFF}
    v_add_u32 v{vH1}, s{sTMP}, v{vL16}
    s_mul_i32 s{sHO}, s{sWAVE}, {28*1024}
    s_lshl_b32 s{sGB}, s{sWAVE}, 14
    s_add_u32 s{sGB}, s{sGB}, {GR0}
    """)
    a(f"""
    v_lshrrev_b32 v{vT0}, 3, v{vLANE}
    v_bfe_u32 v{vT0+1}, v{vLANE}, 4, 1
    v_lshlrev_b32 v{vT0+1}, 2, v{vT0+1}
    v_and_b32 v{vT0+2}, 7, v{vLANE}
    v_xor_b32 v{vT0+2}, v{vT0+2}, v{vT0+1}
    v_lshlrev_b32 v{vT0+2}, 4, v{vT0+2}
    s_movk_i32 s{sTMP}, 896
    v_mad_u32_u24 v{vWD}, v{vT0}, s{sTMP}, v{vT0+2}
    s_mul_i32 s{sWOFF}, s{sWAVE}, {448*896}
    s_lshl_b32 s{sTMP}, s{sNT}, 7
    s_add_u32 s{sWOFF}, s{sWOFF}, s{sTMP}
    """)
    a(f"""
    v_lshrrev_b32 v{vT0}, 5, v{vLANE}
    v_bfe_u32 v{vT0+1}, v{vLANE}, 2, 2
    v_lshl_add_u32 v{vT0}, v{vT0}, 2, v{vT0+1}
    v_lshlrev_b32 v{vTR0}, 7, v{vT0}
    v_bfe_u32 v{vT0+1}, v{vLANE}, 3, 1
    s_lshr_b32 s{sTMP}, s{sWAVE}, 1
    v_xor_b32 v{vT0+1}, s{sTMP}, v{vT0+1}
    v_lshl_add_u32 v{vTR0}, v{vT0+1}, 6, v{vTR0}
    v_bfe_u32 v{vT0+1}, v{vLANE}, 4, 1
    v_lshl_add_u32 v{vTR0}, v{vT0+1}, 5, v{vTR0}
    v_and_b32 v{vT0+1}, 3, v{vLANE}
    v_lshl_add_u32 v{vTR0}, v{vT0+1}, 3, v{vTR0}
    v_xor_b32 v{vTR1}, 64, v{vTR0}
    v_add_u32 v{vTR0}, s{sGB}, v{vTR0}
    v_add_u32 v{vTR1}, s{sGB}, v{vTR1}
    s_lshl_b32 s{sNT}, s{sNT}, 1
    s_add_u32 s{sNT}, s{sNT}, s{sTMP}
    """)
    a(f"s_lshr_b32 s{sTMP3}, s{sMT32}, 2")
    mb23_addr(a, 16, sTMP3, sCOL, F2_OFF)
    a(f"""
    v_mov_b32 v{vXA}, 0
    v_mov_b32 v220, 0
    v_mov_b32 v208, 0
    s_waitcnt vmcnt(0)
    """)
    publish_flag(a, vT0, 16, 1)
    a(f"""
    s_cmp_ge_u32 s{sSL}, 28
    s_cbranch_scc1 k_end
    """)
    stamp(a, 13)
    def loads(k):
        f = vHR + 8*k
        a(f"s_add_u32 m0, s{sGB}, {2048*k}")
        a(f"s_add_u32 s{sTMP}, s{sWOFF}, {8*896 - 1024}")
        a(f"buffer_load_dwordx4 v{vWD}, {sr(sB,4)}, s{sWOFF} offen lds")
        a(f"buffer_load_dwordx4 v{vWD}, {sr(sB,4)}, s{sTMP} offen offset:1024 lds")
        a(f"buffer_load_dwordx4 {vr(f,4)}, v{vH0}, {sr(sWS,4)}, s{sHO} offen sc1")
        a(f"buffer_load_dwordx4 {vr(f+4,4)}, v{vH1}, {sr(sWS,4)}, s{sHO} offen sc1")
        a(f"s_add_u32 s{sHO}, s{sHO}, 1024")
        a(f"s_add_u32 s{sWOFF}, s{sWOFF}, {16*896}")
    def rdw(k, dst):
        for t, ad in ((0, vTR0), (1, vTR1)):
            for p in range(2):
                a(f"ds_read_b64_tr_b16 {vr(dst+4*t+2*p,2)}, v{ad} offset:{2048*k + 1024*p}")
    def mfmas(w, h):
        for j in range(4):
            a(f"v_mfma_f32_32x32x16_bf16 {vr(vACC+16*j,16)}, {vr(w+4*(j>>1),4)}, {vr(h+4*(j&1),4)}, {vr(vACC+16*j,16)}")
    vFA3, vXD3, vOA = 208, 212, 220
    set_srd(a, sB, pWO, D*D*2)
    set_srd(a, sA, pX, S*D*2)
    set_srd(a, sCc, pOUT, S*D*2)
    a(f"""
    s_mul_i32 s{sWO3}, s{sWAVE}, {4*28*896}
    s_lshr_b32 s{sTMP}, s{sNT}, 1
    s_lshl_b32 s{sTMP}, s{sTMP}, 7
    s_add_u32 s{sWO3}, s{sWO3}, s{sTMP}
    """)
    for k in range(8):
        off = (28*(k >> 1) + 16*(k & 1)) * 896
        a(f"s_add_u32 m0, s{sGB}, {2048*k}")
        a(f"s_add_u32 s{sTMP}, s{sWO3}, {off}")
        a(f"buffer_load_dwordx4 v{vWD}, {sr(sB,4)}, s{sTMP} offen lds")
        a(f"s_add_u32 s{sTMP}, s{sWO3}, {off + 8*896 - 1024}")
        a(f"buffer_load_dwordx4 v{vWD}, {sr(sB,4)}, s{sTMP} offen offset:1024 lds")
    a(f"""
    v_add_u32 v{vFA3}, {F3_OFF - F2_OFF}, v{vFA}
    v_and_b32 v{vOA}, 31, v{vLANE}
    s_lshl_b32 s{sTMP}, s{sMT}, 5
    v_add_u32 v{vOA}, s{sTMP}, v{vOA}
    s_movk_i32 s{sTMP}, 896
    v_mul_lo_u32 v{vOA}, v{vOA}, s{sTMP}
    v_lshrrev_b32 v{vT0}, 5, v{vLANE}
    v_lshl_add_u32 v{vXA}, v{vT0}, 3, v{vOA}
    v_lshl_add_u32 v{vOA}, v{vT0}, 4, v{vOA}
    s_lshl_b32 s{sNT}, s{sNT}, 6
    """)
    for g in range(4):
        a(f"buffer_load_dwordx2 {vr(vXD3+2*g,2)}, v{vXA}, {sr(sA,4)}, s{sNT} offen offset:{16*g}")
    a("s_waitcnt vmcnt(0)")
    for k in range(8):
        rdw(k, vWB + 8*k)
        if k % 2 == 1: a("s_waitcnt lgkmcnt(0)")
    for g in range(4):
        for p in range(2):
            a(f"v_lshlrev_b32 v{vT0}, 16, v{vXD3+2*g+p}")
            a(f"v_and_b32 v{vT0+1}, 0xffff0000, v{vXD3+2*g+p}")
            a(f"v_add_f32 v{vACC+4*g+2*p}, v{vACC+4*g+2*p}, v{vT0}")
            a(f"v_add_f32 v{vACC+4*g+2*p+1}, v{vACC+4*g+2*p+1}, v{vT0+1}")
    set_srd(a, sB, pW2, DFF*D*2)
    a(f"s_setprio {env('GPRIO', 0)}")
    stamp(a, 20)
    poll_flags(a, vFA, vT0)
    stamp(a, 14)
    a.label("g_pre")
    for k in range(7):
        loads(k)
    a(f"s_mov_b32 s{sIT}, 0")
    dry_end(a)
    a.label("g_loop")
    a(f"""
    s_cmp_eq_u32 s{sIT}, 3
    s_cselect_b32 s{sHO}, {OOB:#x}, s{sHO}
    s_cselect_b32 s{sWOFF}, {OOB:#x}, s{sWOFF}
    """)
    for k in range(7):
        a("s_waitcnt vmcnt(24)")
        rdw(k, vWF)
        a("s_waitcnt lgkmcnt(0)")
        mfmas(vWF, vHR + 8*k)
        loads(k)
    dry_end(a)
    a(f"""
    s_add_u32 s{sIT}, s{sIT}, 1
    s_cmp_lt_u32 s{sIT}, 4
    s_cbranch_scc1 g_loop
    """)
    a.label("g_p3")
    a("s_setprio 2")
    a("s_waitcnt vmcnt(0)")
    stamp(a, 15)
    a(f"""
    s_lshl_b32 s{sHO}, s{sWAVE}, 13
    s_add_u32 s{sHO}, s{sHO}, {112*1024}
    s_add_u32 s{sTMP2}, s{sHO}, 4096
    """)
    stamp(a, 16)
    dry_end(a)
    a.label("g_tail")
    poll_flags(a, vFA3, vT0)
    stamp(a, 17)
    for k in range(8):
        f = vHR + 8*k
        so = sHO if k < 4 else sTMP2
        a(f"buffer_load_dwordx4 {vr(f,4)}, v{vH0}, {sr(sWS,4)}, s{so} offen offset:{1024*(k%4)} sc1")
        a(f"buffer_load_dwordx4 {vr(f+4,4)}, v{vH1}, {sr(sWS,4)}, s{so} offen offset:{1024*(k%4)} sc1")
    for k in range(8):
        a(f"s_waitcnt vmcnt({14 - 2*k})")
        mfmas(vWB + 8*k, vHR + 8*k)
    stamp(a, 18)
    a("s_nop 7")
    a("s_nop 3")
    reduce_write(a, vACC, vT0, sGB)
    a("s_waitcnt lgkmcnt(0)")
    prog_set(a, vT0, SP, 3)
    prog_wait(a, vT0, SP, 3, sleep=0)
    dry_end(a)
    a.label("g_tail2")
    reduce_read(a, vACC, vHR, vT0, GR0)
    stamp(a, 19)
    for i in range(8):
        a(f"v_cvt_pk_bf16_f32 v{vHR+i}, v{vACC+2*i}, v{vACC+2*i+1}")
    a("s_nop 1")
    for q in range(2):
        a(f"v_permlane32_swap_b32 v{vHR+4*q}, v{vHR+4*q+2}")
        a(f"v_permlane32_swap_b32 v{vHR+4*q+1}, v{vHR+4*q+3}")
    a("s_nop 1")
    for q in range(2):
        a(f"buffer_store_dwordx4 {vr(vHR+4*q,4)}, v{vOA}, {sr(sCc,4)}, s{sNT} offen offset:{32*q}")
    dry_end(a)
    stamp_flush(a, 0, sWS, sW8, 20, wpw=8)
```

```python
class Asm:
    def __init__(self):
        self.lines = []
        self.nlabel = 0
    def __call__(self, s):
        for l in s.strip("\n").split("\n"):
            self.lines.append("  " + l.strip())
    def label(self, name):
        self.lines.append(name + ":")
    def newlabel(self, base="L"):
        self.nlabel += 1
        return f"{base}_{self.nlabel}"
    def raw(self, s):
        self.lines.append(s)
    def comment(self, s):
        self.lines.append("  ; " + s)
    def text(self):
        return "\n".join(self.lines) + "\n"

def vr(base, n):
    return f"v[{base}:{base+n-1}]"
def ar(base, n):
    return f"a[{base}:{base+n-1}]"
def sr(base, n):
    return f"s[{base}:{base+n-1}]"

def kernel_desc(name, nvgpr, accum, nsgpr=100):
    return f""".amdhsa_kernel {name}
  .amdhsa_next_free_vgpr {nvgpr}
  .amdhsa_next_free_sgpr {nsgpr}
  .amdhsa_accum_offset {accum}
  .amdhsa_group_segment_fixed_size 0
  .amdhsa_kernarg_size 72
  .amdhsa_user_sgpr_count 2
  .amdhsa_user_sgpr_kernarg_segment_ptr 1
  .amdhsa_system_sgpr_workgroup_id_x 1
.end_amdhsa_kernel
"""

import os
STAMP = bool(int(os.environ.get("STAMP", "0")))
ST_OFF = 64 << 20
VST = 11
EVT = os.environ.get("EVT", "")
ROLE = ["X"]
def stamp(a, idx, sref=80):
    if EVT and EVT == f"{ROLE[0]}{idx}":
        a("s_memrealtime s[92:93]\ns_waitcnt lgkmcnt(0)")
    if not STAMP: return
    if idx == 0: a(f"v_mov_b32 v{VST}, 0")
    a(f"""
    s_memtime s[96:97]
    s_memrealtime s[98:99]
    s_waitcnt lgkmcnt(0)
    v_writelane_b32 v{VST}, s96, {2*idx}
    v_writelane_b32 v{VST}, s98, {2*idx+1}
    """)
def stamp_flush(a, kidx, sWS, sWAVE, vtmp, sref=80, n=32, wpw=4):
    if EVT and EVT[0] == ROLE[0]:
        lb = a.newlabel("evs")
        a("s_waitcnt vmcnt(0) lgkmcnt(0)")
        a("s_sub_u32 s92, s92, s76")
        a("s_add_u32 s92, s92, 4000")
        a.label(lb)
        a(f"""
        s_memrealtime s[94:95]
        s_waitcnt lgkmcnt(0)
        s_sub_u32 s94, s94, s76
        s_sleep 4
        s_cmp_lt_u32 s94, s92
        s_cbranch_scc1 {lb}
        """)
    if not STAMP: return
    a(f"s_waitcnt vmcnt(0)")
    stamp(a, n-1, sref)
    a(f"""
    v_mbcnt_lo_u32_b32 v{vtmp+1}, -1, 0
    v_mbcnt_hi_u32_b32 v{vtmp+1}, -1, v{vtmp+1}
    v_lshlrev_b32 v{vtmp+1}, 2, v{vtmp+1}
    s_mul_i32 s96, s2, {wpw}
    s_add_u32 s96, s96, s{sWAVE}
    s_lshl_b32 s96, s96, 8
    s_add_u32 s96, s96, {ST_OFF + kidx*(1<<20)}
    buffer_store_dword v{VST}, v{vtmp+1}, s[{sWS}:{sWS+3}], s96 offen
    """)

def stamp_dyn(a, base, sIdx):
    if not STAMP: return
    a(f"""
    s_memtime s[96:97]
    s_memrealtime s[98:99]
    s_lshl_b32 s95, s{sIdx}, 1
    s_add_u32 m0, s95, {2*base}
    s_waitcnt lgkmcnt(0)
    v_writelane_b32 v{VST}, s96, m0
    s_add_u32 m0, m0, 1
    s_nop 0
    v_writelane_b32 v{VST}, s98, m0
    """)
```

```python
import sys, math, struct, os
from asmlib import *

NAME = "parallel_sum__mha_block__dense_activation_relu__prompt"
S, D, H, DH, DFF = 2048, 448, 16, 28, 1792
QF_OFF = 0
KF_OFF = 2 << 20
VF_OFF = 4 << 20
HF_OFF = 7 << 20
FL_OFF = 17 << 20
F1_OFF, F2_OFF, F3_OFF = FL_OFF, FL_OFF + 131072, FL_OFF + 131072 + 32768
WS_SIZE = 0x10000000
OOB = 0x40000000
BIAS = 80.0
SPIN_G = 1 << 14
SPIN_L = 1 << 20
def env(k, d): return int(os.environ.get(k, str(d)))
DRY = env("DRY", 0)

def f32bits(x): return struct.unpack("<I", struct.pack("<f", x))[0]
QSCALE = math.log2(math.e) / math.sqrt(DH)

class LgkmTracker:
    def __init__(self, a): self.a = a; self.q = []
    def issue(self, tag): self.q.append(tag)
    def need(self, tag):
        if tag in self.q:
            idx = len(self.q) - 1 - self.q[::-1].index(tag)
            n = min(len(self.q) - 1 - idx, 13)
            self.a(f"s_waitcnt lgkmcnt({n})")
            self.q = self.q[len(self.q) - n:] if n > 0 else []

SLOT = 28672
SL0 = 12288
WB = SL0 + SLOT
ATT0 = 0
GR0 = 90112
CTL = SL0 + 5*SLOT
CSA, CSB_, STA = CTL + 4096, CTL + 4608, CTL + 5120
LP, CP, AP, SP = CTL + 6144, CTL + 6160, CTL + 6176, CTL + 6192
LDS_TOTAL = 163840

pX, pWQ, pWO, pW1, pW2, pOUT, pDBG = 4, 6, 8, 12, 14, 16, 18
sWS, sA, sB, sCc = 20, 24, 28, 32
sXCD, sSL, sW8, sWAVE, sMT32, sCOL, sTMP, sTMP2, sTMP3, sIT = 36, 37, 38, 39, 40, 41, 42, 43, 44, 45
sR = 46
sTAG, sSPIN, sRET = 76, 78, 90
vLANE, vL16, vPW, vPR, vF0 = 1, 2, 9, 10, 0

def dry_end(a):
    if DRY: a("s_cbranch_execz dry_ret")
def dry_call(a, label):
    a(f"s_call_b64 s[{sRET}:{sRET+1}], {label}")
def dry_by_wave(a, plans, name):
    if not (DRY >> (int(name[-1]) - 1)) & 1: return
    a("s_mov_b64 exec, 0")
    for w in range(4):
        if w < 3:
            a(f"s_cmp_lg_u32 s{sWAVE}, {w}")
            a(f"s_cbranch_scc1 {name}_{w+1}")
        for lbl in plans[w]:
            dry_call(a, lbl)
        if w < 3:
            a(f"s_branch {name}_end")
            a.label(f"{name}_{w+1}")
    a.label(f"{name}_end")
    a("s_mov_b64 exec, -1")

def prog_wait(a, vD, base, target, sleep=1):
    lp = a.newlabel("lw"); dn = a.newlabel("lwd")
    a(f"s_mov_b32 s{sSPIN}, {SPIN_L}")
    a.label(lp)
    a(f"""
    ds_read_b32 v{vD}, v{vPR} offset:{base - CTL}
    s_waitcnt lgkmcnt(0)
    v_cmp_gt_u32 vcc, {target}, v{vD}
    s_cbranch_vccz {dn}
    s_sleep {sleep}
    s_sub_u32 s{sSPIN}, s{sSPIN}, 1
    s_cbranch_scc0 {lp}
    """)
    a.label(dn)
def prog_set(a, vD, base, val):
    a(f"v_mov_b32 v{vD}, {val}")
    a(f"ds_write_b32 v{vPW}, v{vD} offset:{base - CTL}")
def get_tag(a, vD):
    lp = a.newlabel("tg"); dn = a.newlabel("tgd")
    a(f"s_mov_b32 s{sSPIN}, {SPIN_G}")
    a.label(lp)
    a(f"""
    buffer_load_dwordx2 {vr(vD,2)}, v{vF0}, {sr(sCc,4)}, 0 offen sc1
    s_waitcnt vmcnt(0)
    v_readfirstlane_b32 s{sTAG}, v{vD}
    v_readfirstlane_b32 s{sTAG+1}, v{vD+1}
    s_cbranch_execz {dn}
    s_cmp_lg_u32 s{sTAG}, 0
    s_cbranch_scc1 {dn}
    s_sub_u32 s{sSPIN}, s{sSPIN}, 1
    s_cbranch_scc0 {lp}
    """)
    a.label(dn)
def poll_flags(a, vFA, vD):
    lp = a.newlabel("pf"); dn = a.newlabel("pfd")
    a(f"s_mov_b32 s{sSPIN}, {SPIN_G}")
    a.label(lp)
    a(f"""
    buffer_load_dwordx2 {vr(vD,2)}, v{vFA}, {sr(sWS,4)}, 0 offen sc1
    s_waitcnt vmcnt(0)
    v_cmp_ne_u64 vcc, {sr(sTAG,2)}, {vr(vD,2)}
    s_cbranch_vccz {dn}
    s_sleep {env('PSLEEP', 3)}
    s_sub_u32 s{sSPIN}, s{sSPIN}, 1
    s_cbranch_scc0 {lp}
    """)
    a.label(dn)
GC = CTL + 6208
def publish_flag(a, vD, vMB, gidx):
    sk = a.newlabel("pub")
    a(f"""
    s_lshl_b32 s{sSPIN}, s{sWAVE}, 2
    v_mov_b32 v{vD+1}, 1
    v_subrev_u32 v{vD}, s{sSPIN}, v{vPW}
    ds_add_rtn_u32 v{vD+1}, v{vD}, v{vD+1} offset:{GC + 4*gidx - CTL}
    v_mov_b32 v{vD}, s{sTAG}
    s_waitcnt lgkmcnt(0)
    v_readfirstlane_b32 s{sSPIN}, v{vD+1}
    v_mov_b32 v{vD+1}, s{sTAG+1}
    s_cmp_lg_u32 s{sSPIN}, 3
    s_cbranch_scc1 {sk}
    buffer_store_dwordx2 {vr(vD,2)}, v{vMB}, {sr(sWS,4)}, 0 offen sc1
    """)
    a.label(sk)
def mb23_addr(a, vMB, sBLK, sSLOT_, base):
    a(f"""
    s_mul_i32 s{sTMP}, s{sBLK}, {14*128}
    s_lshl_b32 s{sTMP2}, s{sSLOT_}, 3
    s_add_u32 s{sTMP}, s{sTMP}, s{sTMP2}
    s_add_u32 s{sTMP}, s{sTMP}, {base}
    v_lshlrev_b32 v{vMB}, 7, v{vLANE}
    v_add_u32 v{vMB}, s{sTMP}, v{vMB}
    v_cmp_lt_u32 vcc, 13, v{vLANE}
    v_mov_b32 v{vMB+1}, {OOB:#x}
    s_nop 0
    v_cndmask_b32 v{vMB}, v{vMB}, v{vMB+1}, vcc
    """)
def set_srd(a, srd, ptr, size):
    a(f"""
    s_mov_b32 s{srd}, s{ptr}
    s_mov_b32 s{srd+1}, s{ptr+1}
    s_mov_b32 s{srd+2}, {size}
    """)

def gen(a):
    KN = NAME + "_kernel"
    a.label(KN)
    a(f"""
    s_cmp_ge_u32 s2, 256
    s_cbranch_scc1 k_end
    """)
    stamp(a, 0)
    a(f"""
    s_load_dwordx4 s[4:7], s[0:1], 0
    s_load_dwordx2 s[8:9], s[0:1], 16
    s_load_dwordx8 s[12:19], s[0:1], 32
    s_load_dwordx2 s[{sWS}:{sWS+1}], s[0:1], 64
    v_lshlrev_b32 v7, 3, v0
    v_add_u32 v7, {CTL + 4096}, v7
    v_mov_b32 v4, 0
    v_mov_b32 v5, 0
    ds_write_b64 v7, v[4:5]
    v_and_b32 v{vLANE}, 63, v0
    v_lshrrev_b32 v7, 6, v0
    v_lshlrev_b32 v{vL16}, 4, v{vLANE}
    v_readfirstlane_b32 s{sW8}, v7
    s_and_b32 s{sXCD}, s2, 7
    s_lshr_b32 s{sSL}, s2, 3
    s_mov_b32 s{sWS+2}, {WS_SIZE:#x}
    s_mov_b32 s{sWS+3}, 0x00020000
    s_mov_b32 s{sA+3}, 0x00020000
    s_mov_b32 s{sB+3}, 0x00020000
    s_mov_b32 s{sCc+3}, 0x00020000
    s_and_b32 s{sWAVE}, s{sW8}, 3
    s_and_b32 s{sMT32}, s{sXCD}, 1
    s_lshl_b32 s{sMT32}, s{sMT32}, 3
    s_and_b32 s{sTMP}, s{sSL}, 7
    s_add_u32 s{sMT32}, s{sMT32}, s{sTMP}
    s_lshl_b32 s{sMT32}, s{sMT32}, 2
    s_add_u32 s{sMT32}, s{sMT32}, s{sWAVE}
    s_lshr_b32 s{sCOL}, s{sXCD}, 1
    s_lshl_b32 s{sCOL}, s{sCOL}, 2
    s_lshr_b32 s{sTMP}, s{sSL}, 3
    s_add_u32 s{sCOL}, s{sCOL}, s{sTMP}
    v_and_b32 v{vPR}, 3, v{vLANE}
    v_lshlrev_b32 v{vPR}, 2, v{vPR}
    v_add_u32 v{vPR}, {CTL}, v{vPR}
    s_lshl_b32 s{sTMP}, s{sWAVE}, 2
    s_add_u32 s{sTMP}, s{sTMP}, {CTL}
    v_min_u32 v{vF0}, 1, v{vLANE}
    v_lshlrev_b32 v{vPW}, 9, v{vF0}
    v_lshl_add_u32 v{vPW}, v{vLANE}, 2, v{vPW}
    v_add_u32 v{vPW}, s{sTMP}, v{vPW}
    v_lshlrev_b32 v{vF0}, 30, v{vF0}
    s_cmp_lt_u32 s{sW8}, 4
    s_cbranch_scc1 k_comp
    """)
    ROLE[0] = "Y"
    gen_loader(a)
    a("s_branch c_passb")
    a.label("k_comp")
    ROLE[0] = "X"
    gen_comp(a)
    gen_gemm2(a)
    a("s_endpgm")
    a.label("x_attn")
    ROLE[0] = "X"
    gen_attn(a)
    a.label("k_end")
    a("s_endpgm")
    if DRY:
        a.label("dry_ret")
        a(f"s_setpc_b64 s[{sRET}:{sRET+1}]")
    return dict(name=KN, grid=256, block=512, lds=LDS_TOTAL, nvgpr=256, accum=256)

def gen_loader(a):
    vXD, vXD2, vWQ, vB1, vT = 7, 8, 3, 13, 14
    vSX, vAX = 20, 22
    vRD = 40
    vXB = 144
    sXOFF, sQOFF, sSLW, sMX, sMQ, sBOFF, sIDX, sSLS, sMB = [sR + i for i in range(9)]
    a(f"""
    v_lshrrev_b32 v{vT}, 3, v{vLANE}
    v_lshrrev_b32 v{vT+1}, 4, v{vLANE}
    v_and_b32 v{vT+2}, 7, v{vLANE}
    v_xor_b32 v{vT+2}, v{vT+2}, v{vT+1}
    v_lshlrev_b32 v{vT+2}, 4, v{vT+2}
    s_movk_i32 s{sTMP}, 896
    v_mad_u32_u24 v{vXD}, v{vT}, s{sTMP}, v{vT+2}
    v_xor_b32 v{vXD2}, 64, v{vXD}
    s_mul_i32 s{sXOFF}, s{sMT32}, {32*896}
    s_lshl_b32 s{sMX}, s{sWAVE}, 12
    s_mul_i32 s{sMQ}, s{sWAVE}, 3072
    s_add_u32 s{sMQ}, s{sMQ}, 16384
    s_mul_i32 s{sQOFF}, s{sWAVE}, {16*2688}
    s_mul_i32 s{sTMP}, s{sCOL}, 168
    s_and_b32 s{sTMP}, s{sTMP}, -16
    s_add_u32 s{sQOFF}, s{sQOFF}, s{sTMP}
    s_movk_i32 s{sTMP}, 5462
    s_movk_i32 s{sTMP2}, 2688
    """)
    for i in range(3):
        a(f"""
        v_add_u32 v{vT}, {64*i}, v{vLANE}
        v_mul_u32_u24 v{vT+2}, s{sTMP}, v{vT}
        v_lshrrev_b32 v{vT+2}, 16, v{vT+2}
        v_mul_u32_u24 v{vT+3}, 12, v{vT+2}
        v_sub_u32 v{vT}, v{vT}, v{vT+3}
        v_lshlrev_b32 v{vT}, 4, v{vT}
        v_mad_u32_u24 v{vWQ+i}, v{vT+2}, s{sTMP2}, v{vT}
        """)
    a(f"""
    v_mov_b32 v{vB1}, 0
    s_mov_b32 s{sSLW}, {SL0 + 4*SLOT}
    s_mov_b32 s{sSLS}, {SL0 + 4*SLOT}
    s_mov_b32 s{sIT}, 0
    s_waitcnt lgkmcnt(0)
    s_barrier
    """)
    set_srd(a, sA, pX, S*D*2)
    set_srd(a, sB, pWQ, D*3*D*2)
    set_srd(a, sCc, pW1, D*DFF*2)
    stamp(a, 1)
    LDD = env("LDD", 1)
    a.label("ld_loop")
    a(f"""
    s_cmp_lt_u32 s{sIT}, 5
    s_cbranch_scc1 ld_isa
    s_sub_u32 s{sTMP3}, s{sIT}, 4
    """)
    BT = env("BTHROT", 10)
    if BT < 11:
        a(f"s_cmp_eq_u32 s{sIT}, {BT}")
        a(f"s_cselect_b32 s{sTMP3}, 9, s{sTMP3}")
    a(f"""
    s_waitcnt lgkmcnt(1)
    v_cmp_gt_u32 vcc, s{sTMP3}, v{vT+4}
    s_cbranch_vccz ld_free
    """)
    prog_wait(a, vT+1, CP, f"s{sTMP3}")
    a.label("ld_free")
    a(f"""
    s_cmp_ge_u32 s{sIT}, 7
    s_cbranch_scc1 ld_isb
    """)
    a.label("ld_isa")
    a(f"s_add_u32 m0, s{sSLW}, s{sMX}")
    for i in range(4):
        a(f"s_add_u32 s{sTMP}, s{sXOFF}, {8*896*i}")
        a(f"buffer_load_dwordx4 v{vXD if i % 2 == 0 else vXD2}, {sr(sA,4)}, s{sTMP} offen lds")
        if i < 3: a("s_add_u32 m0, m0, 1024")
    a(f"s_add_u32 m0, s{sSLW}, s{sMQ}")
    a(f"s_add_u32 s{sXOFF}, s{sXOFF}, 128")
    for i in range(3):
        a(f"buffer_load_dwordx4 v{vWQ+i}, {sr(sB,4)}, s{sQOFF} offen lds")
        if i < 2:
            a("s_add_u32 m0, m0, 1024")
            a("s_nop 0")
    a(f"""
    s_add_u32 s{sQOFF}, s{sQOFF}, {64*2688}
    s_cmp_lg_u32 s{sIT}, 1
    s_cbranch_scc1 ld_post
    """)
    a(f"""
    v_lshrrev_b32 v{vT+1}, 4, v{vLANE}
    v_lshlrev_b32 v{vT+3}, 2, v{vT+1}
    v_and_b32 v{vT+2}, 15, v{vLANE}
    v_xor_b32 v{vT+2}, v{vT+2}, v{vT+3}
    v_lshlrev_b32 v{vT+3}, 4, v{vT+2}
    s_movk_i32 s{sTMP}, 3584
    v_mad_u32_u24 v{vB1}, v{vT+1}, s{sTMP}, v{vT+3}
    s_lshr_b32 s{sTMP}, s{sCOL}, 1
    s_mul_i32 s{sBOFF}, s{sTMP}, 448
    s_and_b32 s{sTMP}, s{sCOL}, 1
    s_mul_i32 s{sTMP}, s{sTMP}, 192
    s_add_u32 s{sBOFF}, s{sBOFF}, s{sTMP}
    s_mul_i32 s{sTMP}, s{sWAVE}, {28*3584}
    s_add_u32 s{sBOFF}, s{sBOFF}, s{sTMP}
    s_mul_i32 s{sMB}, s{sWAVE}, 7168
    v_and_b32 v{vT}, 31, v{vLANE}
    v_lshrrev_b32 v{vT+1}, 5, v{vLANE}
    v_bfe_u32 v{vT+2}, v{vLANE}, 1, 3
    v_xor_b32 v{vT+1}, v{vT+1}, v{vT+2}
    v_lshlrev_b32 v{vT+1}, 4, v{vT+1}
    v_lshl_add_u32 v{vSX}, v{vT}, 7, v{vT+1}
    v_add_u32 v{vSX}, s{sMX}, v{vSX}
    v_mov_b32 v{vT}, 0
    """)
    a("s_branch ld_post")
    a.label("ld_isb")
    a(f"""
    s_add_u32 m0, s{sSLW}, s{sMB}
    s_mov_b32 s{sTMP}, s{sBOFF}
    """)
    for i in range(7):
        a(f"buffer_load_dwordx4 v{vB1}, {sr(sCc,4)}, s{sTMP} offen lds")
        if i < 6:
            a("s_add_u32 m0, m0, 1024")
            a(f"s_add_u32 s{sTMP}, s{sTMP}, {4*3584}")
    a(f"s_add_u32 s{sBOFF}, s{sBOFF}, {112*3584}")
    a.label("ld_post")
    a(f"""
    s_add_u32 s{sSLW}, s{sSLW}, {SLOT}
    s_cmp_ge_u32 s{sSLW}, {CTL}
    s_cselect_b32 s{sSLW}, {SL0}, s{sSLW}
    s_cmp_lt_u32 s{sIT}, {LDD}
    s_cbranch_scc1 ld_next
    s_sub_u32 s{sTMP}, s{sIT}, {LDD+1}
    s_cmp_ge_u32 s{sTMP}, 7
    s_cbranch_scc1 ld_sig
    v_add_u32 v{vAX}, s{sSLS}, v{vSX}
    v_xor_b32 v{vAX+1}, 32, v{vAX}
    v_xor_b32 v{vAX+2}, 64, v{vAX}
    v_xor_b32 v{vAX+3}, 96, v{vAX}
    """)
    a(f"""
    s_add_u32 s{sSLS}, s{sSLS}, {SLOT}
    s_cmp_ge_u32 s{sSLS}, {CTL}
    s_cselect_b32 s{sSLS}, {SL0}, s{sSLS}
    """)
    for c in range(7):
        if c < 6:
            a(f"s_cmp_lg_u32 s{sTMP}, {c}")
            a(f"s_cbranch_scc1 ld_sv{c+1}")
        for i in range(4):
            a(f"ds_read_b128 {vr(vXB+16*c+4*i,4)}, v{vAX+i}")
        if c < 6:
            a("s_branch ld_sig")
            a.label(f"ld_sv{c+1}")
    a.label("ld_sig")
    a(f"""
    ds_read_b32 v{vT+4}, v{vPR} offset:{CP - CTL}
    s_sub_u32 s{sTMP}, s{sIT}, {LDD-1}
    v_max_u32 v{vT}, s{sTMP}, v{vT}
    s_waitcnt vmcnt({7*LDD})
    ds_write_b32 v{vPW}, v{vT} offset:{LP - CTL}
    """)
    if LDD == 2:
        AD = env("ADRAIN", 7)
        a(f"""
        s_cmp_lg_u32 s{sIT}, {AD}
        s_cbranch_scc1 ld_next
        """)
        for k in range(AD - 1, 7):
            a(f"v_mov_b32 v{vT}, {k+1}")
            a(f"s_waitcnt vmcnt({7*(AD-k)})")
            a(f"ds_write_b32 v{vPW}, v{vT} offset:{LP - CTL}")
        a(f"ds_read_b32 v{vT+4}, v{vPR} offset:{CP - CTL}")
        a(f"ds_write_b32 v{vPW}, v{vT} offset:{LP - CTL}")
    a.label("ld_next")
    if env("STL", 0) & 1: stamp_dyn(a, 20, sIT)
    a(f"""
    s_add_u32 s{sIT}, s{sIT}, 1
    s_cmp_lt_u32 s{sIT}, 11
    s_cbranch_scc1 ld_loop
    """)
    stamp(a, 4)
    for k in range(LDD - 1, 0, -1):
        a(f"s_waitcnt vmcnt({7*k})")
        prog_set(a, vT, LP, 11 - k)

def gen_comp(a):
    vHH, vHHI, vMASK, vCONST, vXR, vXRC = 3, 4, 5, 6, 7, 8
    vNM, vRSTD, vA = 12, 13, 14
    vPG = 15
    vTB = 17
    vTG = 18
    vTN = 20
    vCP = 33
    vTC = 21
    vS0 = 25
    vCSR, vT1, vSEL = 35, 16, 28
    vZ = 36
    vFR = [40, 60]
    vACC = 80
    vXB = 144
    sDST, sSCL, sCSO = sR, sR+4, sR+8
    sRELU, sPASS, sSLOT, sONE, sIDX = sR+12, sR+13, sR+14, sR+15, sR+16
    a("""
    s_waitcnt lgkmcnt(0)
    s_barrier
    """)
    set_srd(a, sCc, pDBG, 256)
    set_srd(a, sA, pX, S*D*2)
    set_srd(a, sB, pW2, DFF*D*2)
    stamp(a, 1)
    a(f"""
    s_or_b32 s{sTMP}, s2, s{sWAVE}
    s_cmp_lg_u32 s{sTMP}, 0
    s_cbranch_scc1 c_notag
    s_memrealtime s[{sTAG}:{sTAG+1}]
    s_waitcnt lgkmcnt(0)
    s_or_b32 s{sTAG}, s{sTAG}, 1
    v_mov_b32 v{vTG}, s{sTAG}
    v_mov_b32 v{vTG+1}, s{sTAG+1}
    buffer_store_dwordx2 {vr(vTG,2)}, v{vF0}, {sr(sCc,4)}, 0 offen sc1
    """)
    a.label("c_notag")
    a(f"v_mov_b32 v{vTB}, {OOB:#x}")
    dry_by_wave(a, [["c_epi"], ["c_epi2", "c_posta"], ["c_loopa", "c_epi_end"], ["c_passb"]], "dw1")
    stamp(a, 2)
    a(f"""
    v_lshrrev_b32 v{vHH}, 5, v{vLANE}
    v_bfe_u32 v{vS0+1}, v{vLANE}, 2, 2
    v_bfe_u32 v{vS0+2}, v{vLANE}, 4, 1
    v_and_b32 v{vS0+3}, 3, v{vLANE}
    v_lshlrev_b32 v{vS0+2}, 5, v{vS0+2}
    v_lshl_add_u32 v{vS0+2}, v{vS0+3}, 3, v{vS0+2}
    v_lshl_add_u32 v{vS0+4}, v{vHH}, 3, v{vS0+1}
    s_movk_i32 s{sTMP}, 192
    v_mad_u32_u24 v{vTB}, v{vS0+4}, s{sTMP}, v{vS0+2}
    s_and_b32 s{sTMP}, s{sCOL}, 1
    s_lshl_b32 s{sTMP}, s{sTMP}, 3
    s_add_u32 s{sTMP}, s{sTMP}, 16384
    v_add_u32 v{vTB}, s{sTMP}, v{vTB}
    v_mov_b32 v{vZ}, 0
    v_mov_b32 v{vZ+1}, 0
    v_mov_b32 v{vZ+2}, 0
    v_mov_b32 v{vZ+3}, 0
    v_and_b32 v{vS0+5}, 31, v{vLANE}
    v_bfe_u32 v{vS0+6}, v{vLANE}, 1, 3
    v_xor_b32 v{vS0+6}, v{vS0+6}, v{vHH}
    v_lshlrev_b32 v{vS0+6}, 4, v{vS0+6}
    v_mfma_f32_32x32x16_bf16 {vr(vACC,16)}, {vr(vZ,4)}, {vr(vZ,4)}, 0
    v_lshl_add_u32 v{vXR}, v{vS0+5}, 7, v{vS0+6}
    s_lshl_b32 s{sTMP}, s{sWAVE}, 12
    v_add_u32 v{vXR}, s{sTMP}, v{vXR}
    v_lshlrev_b32 v{vCSR}, 4, v{vHH}
    v_add_u32 v{vCSR}, {CSA}, v{vCSR}
    v_lshlrev_b32 v{vT1}, 8, v{vS0+4}
    v_mfma_f32_32x32x16_bf16 {vr(vACC+16,16)}, {vr(vZ,4)}, {vr(vZ,4)}, 0
    v_add_u32 v{vT1}, v{vT1}, v{vS0+2}
    v_lshlrev_b32 v{vS0+7}, 6, v{vS0+1}
    v_or_b32 v{vT1}, v{vT1}, v{vS0+7}
    v_mfma_f32_32x32x16_bf16 {vr(vACC+32,16)}, {vr(vZ,4)}, {vr(vZ,4)}, 0
    v_sub_u32 v{vHHI}, v{vHH}, 1
    v_sub_u32 v{vHH}, 0, v{vHH}
    v_mov_b32 v{vMASK}, v{vHHI}
    v_and_b32 v{vCONST}, 0x3f80, v{vHH}
    s_mov_b32 s{sRELU}, 0x80008000
    s_mov_b32 s{sONE}, 0x3f803f80
    s_mov_b32 s{sIT}, 1
    s_mov_b32 s{sSLOT}, {SL0 + 4*SLOT}
    s_mov_b32 s{sIDX}, 0
    s_mul_i32 s{sTMP2}, s{sCOL}, 3
    s_cmp_eq_u32 s{sWAVE}, 3
    s_cselect_b32 s{sTMP3}, 0, s{sWAVE}
    v_mov_b32 v{vS0}, v{vTB}
    """)
    for j in range(3):
        a(f"""
        s_add_u32 s{sTMP}, s{sTMP2}, s{sTMP3}
        s_cmp_lt_u32 s{sTMP}, 16
        s_cselect_b32 s{sSCL+j}, {f32bits(QSCALE):#x}, 1.0
        s_cselect_b32 s{sIDX}, 11, 12
        s_cselect_b32 s{sSPIN}, 0, {KF_OFF}
        s_cmp_ge_u32 s{sTMP}, 32
        s_cselect_b32 s{sSPIN}, {KF_OFF + 2048}, s{sSPIN}
        s_and_b32 s{sTMP}, s{sTMP}, 15
        s_lshl_b32 s{sTMP}, s{sTMP}, 6
        s_add_u32 s{sTMP}, s{sTMP}, s{sMT32}
        s_lshl_b32 s{sTMP}, s{sTMP}, s{sIDX}
        s_add_u32 s{sDST+j}, s{sTMP}, s{sSPIN}
        s_lshl_b32 s{sCSO+j}, s{sTMP3}, 7
        s_mul_i32 s{sTMP}, s{sTMP3}, 56
        v_add_u32 v{vTB+j}, s{sTMP}, v{vS0}
        s_add_u32 s{sTMP3}, s{sTMP3}, 1
        s_cmp_eq_u32 s{sTMP3}, 3
        s_cselect_b32 s{sTMP3}, 0, s{sTMP3}
        v_add_u32 v{vTC+j}, s{sSLOT}, v{vTB+j}
        """)
    a(f"""
    s_mov_b32 s{sCSO+3}, 0
    s_mov_b32 s{sPASS}, 1
    v_add_u32 v{vXRC}, s{sSLOT}, v{vXR}
    v_mov_b32 v{vCP}, 0
    v_mov_b32 v{vCP+1}, 0
    v_and_b32 v{vS0}, 0x13, v{vLANE}
    v_cmp_ne_u32 vcc, 0x13, v{vS0}
    v_and_b32 v{vS0+1}, 7, v{vLANE}
    v_mul_u32_u24 v{vS0+1}, {4*192}, v{vS0+1}
    v_cndmask_b32 v{vSEL}, 0, 1, vcc
    v_lshrrev_b32 v{vS0+2}, 1, v{vLANE}
    v_and_b32 v{vS0+2}, 3, v{vS0+2}
    v_mul_u32_u24 v{vS0+2}, {8*192}, v{vS0+2}
    v_add_u32 v{vS0+1}, v{vS0+1}, v{vS0+2}
    v_mov_b32 v{vS0+5}, s{sONE}
    v_mov_b32 v{vS0+6}, s{sONE}
    ds_write_b64 v{vS0+1}, {vr(vS0+5,2)}
    v_mul_u32_u24 v{vTB+1}, v{vSEL}, v{vTB+1}
    v_mad_u32_u24 v{vTC+1}, v{vSEL}, s{sSLOT}, v{vTB+1}
    """)
    for i in range(4, 8):
        a(f"v_mov_b32 v{vS0+i}, 0")
    prog_wait(a, vPG, LP, env("AWAIT", 1))
    a(f"s_setprio {env('XPRIO', 3)}")
    stamp(a, 3)
    vCB = [128, 192]
    def reads(st):
        ops = []
        for q in range(4):
            f = vCB[st] + 16*q
            if q == 0:
                ops.append(f"ds_read_b128 {vr(f+12,4)}, v{vXRC}")
            else:
                ops.append(f"v_xor_b32 v{vTN}, {32*q}, v{vXRC}\nds_read_b128 {vr(f+12,4)}, v{vTN}")
            for j in range(3):
                for p in range(2):
                    ops.append(f"ds_read_b64_tr_b16 {vr(f+4*j+2*p,2)}, v{vTC+j} offset:{(16*q+4*p)*192}")
        return ops
    r0 = reads(0)
    for i, op in enumerate(r0):
        a(op)
        if i == 13: a("s_waitcnt lgkmcnt(0)")
    a.raw(".p2align 6")
    a.label("c_loopa")
    def half(st):
        a("s_waitcnt lgkmcnt(0)")
        if env("STL", 0) & 2: stamp_dyn(a, 22, sIT)
        a(f"""
        v_mov_b32 v{vTC+3}, s{sIT}
        s_add_u32 s{sSLOT}, s{sSLOT}, {SLOT}
        ds_write_b32 v{vPW}, v{vTC+3} offset:{CP - CTL}
        s_cmp_ge_u32 s{sSLOT}, {CTL}
        s_cselect_b32 s{sSLOT}, {SL0}, s{sSLOT}
        v_add_u32 v{vXRC}, s{sSLOT}, v{vXR}
        v_add_u32 v{vTC}, s{sSLOT}, v{vTB}
        v_mad_u32_u24 v{vTC+1}, v{vSEL}, s{sSLOT}, v{vTB+1}
        v_add_u32 v{vTC+2}, s{sSLOT}, v{vTB+2}
        ds_read_b32 v{vPG}, v{vPR} offset:{LP - CTL}
        """)
        for q in range(4):
            f = vCB[st] + 16*q
            for i in range(4):
                a(f"v_dot2c_f32_bf16 v{vCP+(i&1)}, s{sONE}, v{f+i}")
                a(f"v_dot2c_f32_bf16 v{vS0+4+i}, v{f+12+i}, v{f+12+i}")
        f0 = vCB[st]
        a(f"v_mfma_f32_32x32x16_bf16 {vr(vACC,16)}, {vr(f0,4)}, {vr(f0+12,4)}, {vr(vACC,16)}")
        a(f"""
        s_waitcnt lgkmcnt(0)
        v_cmp_ge_u32 vcc, s{sIT}, v{vPG}
        s_cbranch_vccnz c_la_slow{st}
        """)
        a.label(f"c_la_back{st}")
        nx = reads(1 - st)
        for _ in range(2): a(nx.pop(0))
        k = 0
        for q in range(4):
            f = vCB[st] + 16*q
            for j in range(3):
                if q == 0 and j == 0: continue
                a(f"v_mfma_f32_32x32x16_bf16 {vr(vACC+16*j,16)}, {vr(f+4*j,4)}, {vr(f+12,4)}, {vr(vACC+16*j,16)}")
                if k == 4 or k == 7: a("s_waitcnt lgkmcnt(5)")
                for _ in range(3):
                    if nx: a(nx.pop(0))
                k += 1
        assert not nx
        a(f"s_add_u32 s{sIT}, s{sIT}, 1")
    half(0)
    if DRY: a("s_cbranch_execz c_loopa2")
    a(f"""
    s_cmp_eq_u32 s{sIT}, 8
    s_cbranch_scc1 c_posta
    """)
    a.label("c_loopa2")
    half(1)
    dry_end(a)
    a("s_branch c_loopa")
    a.label("c_posta")
    stamp(a, 4)
    a(f"buffer_load_dwordx2 {vr(vTG,2)}, v{vF0}, {sr(sCc,4)}, 0 offen sc1")
    a(f"""
    v_add_f32 v{vCP}, v{vCP}, v{vCP+1}
    v_add_f32 v{vS0+4}, v{vS0+4}, v{vS0+5}
    v_add_f32 v{vS0+6}, v{vS0+6}, v{vS0+7}
    v_mov_b32 v{vCP+1}, v{vCP}
    v_and_b32 v{vS0+2}, 31, v{vLANE}
    v_lshlrev_b32 v{vS0+2}, 2, v{vS0+2}
    v_permlane32_swap_b32 v{vCP}, v{vCP+1}
    v_add_f32 v{vS0+4}, v{vS0+4}, v{vS0+6}
    v_add_u32 v{vS0+2}, s{sCSO}, v{vS0+2}
    v_add_f32 v{vCP}, v{vCP}, v{vCP+1}
    v_add_u32 v{vS0+2}, {CSA}, v{vS0+2}
    v_mov_b32 v{vS0+5}, v{vS0+4}
    ds_write_b32 v{vS0+2}, v{vCP}
    v_mov_b32 v{vS0+6}, 8
    ds_write_b32 v{vPW}, v{vS0+6} offset:{CP - CTL}
    v_mov_b32 v{vS0}, v{vACC+16+12}
    v_mov_b32 v{vS0+1}, v{vACC+16+12}
    v_permlane32_swap_b32 v{vS0+4}, v{vS0+5}
    s_nop 0
    v_permlane32_swap_b32 v{vS0}, v{vS0+1}
    v_add_f32 v{vS0+4}, v{vS0+4}, v{vS0+5}
    v_mul_f32 v{vS0+4}, {f32bits(1.0/D):#x}, v{vS0+4}
    v_mul_f32 v{vNM}, {f32bits(-1.0/D):#x}, v{vS0+1}
    v_fma_f32 v{vS0+4}, -v{vNM}, v{vNM}, v{vS0+4}
    v_max_f32 v{vS0+4}, 0, v{vS0+4}
    v_add_f32 v{vS0+4}, {f32bits(1e-5):#x}, v{vS0+4}
    v_rsq_f32 v{vRSTD}, v{vS0+4}
    s_lshl_b32 s{sTMP}, s{sWAVE}, 8
    s_add_u32 s{sTMP}, s{sTMP}, {STA}
    v_and_b32 v{vS0+2}, 31, v{vLANE}
    v_lshlrev_b32 v{vS0+2}, 3, v{vS0+2}
    v_add_u32 v{vS0+2}, s{sTMP}, v{vS0+2}
    ds_write_b64 v{vS0+2}, {vr(vNM,2)}
    """)
    prog_wait(a, vPG, CP, 8, sleep=0)
    dry_end(a)
    a.label("c_epi")
    vCS2 = [vFR[0], vFR[0] + 16]
    def cs_read(j):
        a(f"v_add_u32 v{vXRC}, s{sCSO+j}, v{vCSR}")
        for g in range(4):
            a(f"ds_read_b128 {vr(vCS2[j%2]+4*g,4)}, v{vXRC} offset:{32*g}")
    cs_read(0)
    for j in range(4):
        acc = vACC + 16*j
        cs = vCS2[j % 2]
        if j == 2:
            dry_end(a)
            a.label("c_epi2")
        if j < 3:
            cs_read(j + 1)
            a("s_waitcnt lgkmcnt(4)")
        else:
            a("s_waitcnt lgkmcnt(0)")
        if env("STL", 0) & 4 and j < 3: stamp(a, 10 + j)
        a(f"v_mul_f32 v{vA}, s{sSCL+j}, v{vRSTD}")
        for i in range(16):
            a(f"v_fmac_f32 v{acc+i}, v{cs+i}, v{vNM}")
        for i in range(16):
            a(f"v_mul_f32 v{acc+i}, v{vA}, v{acc+i}")
        for i in range(8):
            a(f"v_cvt_pk_bf16_f32 v{acc+i}, v{acc+2*i}, v{acc+2*i+1}")
        for i in range(8):
            a(f"v_pk_max_i16 v{acc+i}, v{acc+i}, s{sRELU}")
            if i == 5:
                a(f"buffer_store_dwordx4 {vr(acc,4)}, v{vL16}, {sr(sWS,4)}, s{sDST+j} offen sc1")
        a(f"v_and_or_b32 v{acc+6}, v{acc+6}, v{vMASK}, v{vCONST}")
        a(f"v_and_b32 v{acc+7}, v{acc+7}, v{vMASK}")
        a(f"buffer_store_dwordx4 {vr(acc+4,4)}, v{vL16}, {sr(sWS,4)}, s{sDST+j} offen offset:1024 sc1")
        if j == 2:
            if DRY: a("s_cbranch_execz c_epi3")
            a(f"s_cmp_eq_u32 s{sPASS}, 1")
            a("s_cbranch_scc1 c_epi_end")
            a.label("c_epi3")
    a("s_nop 1")
    for j in range(4):
        a(f"v_mfma_f32_32x32x16_bf16 {vr(vACC+16*j,16)}, {vr(vZ,4)}, {vr(vZ,4)}, 0")
    dry_end(a)
    a("s_branch c_done")
    a.label("c_epi_end")
    prog_set(a, vS0, CP, 9)
    stamp(a, 5)
    a(f"""
    s_mul_i32 s{sTMP}, s{sCOL}, 3
    s_lshr_b32 s{sTMP2}, s{sMT32}, 2
    v_lshrrev_b32 v{vS0+1}, 4, v{vLANE}
    v_add_u32 v{vS0+1}, s{sTMP}, v{vS0+1}
    v_and_b32 v{vS0+2}, 15, v{vS0+1}
    v_lshrrev_b32 v{vS0+1}, 4, v{vS0+1}
    v_and_b32 v{vS0+3}, 15, v{vLANE}
    v_lshl_add_u32 v{vS0+2}, v{vS0+2}, 4, v{vS0+3}
    v_lshlrev_b32 v{vS0+2}, 9, v{vS0+2}
    v_lshlrev_b32 v{vTB}, 4, v{vS0+1}
    v_add_u32 v{vTB}, s{sTMP2}, v{vTB}
    v_lshl_add_u32 v{vTB}, v{vTB}, 3, v{vS0+2}
    v_add_u32 v{vTB}, {F1_OFF}, v{vTB}
    v_cmp_eq_u32 vcc, 0, v{vS0+1}
    v_cmp_ne_u32 s[72:73], s{sTMP2}, v{vS0+3}
    s_and_b64 vcc, vcc, s[72:73]
    v_cmp_lt_u32 s[72:73], 47, v{vLANE}
    s_or_b64 vcc, vcc, s[72:73]
    v_mov_b32 v{vS0+1}, {OOB:#x}
    s_nop 0
    v_cndmask_b32 v{vTB}, v{vTB}, v{vS0+1}, vcc
    """)
    stamp(a, 8)
    a(f"""
    s_waitcnt vmcnt(0)
    v_readfirstlane_b32 s{sTAG}, v{vTG}
    v_readfirstlane_b32 s{sTAG+1}, v{vTG+1}
    s_cmp_lg_u32 s{sTAG}, 0
    s_cbranch_scc1 c_lb_tag
    """)
    get_tag(a, vS0+1)
    a.label("c_lb_tag")
    publish_flag(a, vS0+1, vTB, 0)
    stamp(a, 9)
    dry_end(a)
    if env("STS", 0):
        stamp_flush(a, 0, sWS, sW8, 20, wpw=8)
        a("s_endpgm")
    a("s_branch x_attn")
    ROLE[0] = "Y"
    a.label("c_passb")
    a(f"s_setprio {env('CPRIO', 2)}")
    set_srd(a, sCc, pDBG, 256)
    a(f"""
    buffer_load_dwordx2 {vr(vTG,2)}, v{vF0}, {sr(sCc,4)}, 0 offen sc1
    v_lshrrev_b32 v{vHH}, 5, v{vLANE}
    v_bfe_u32 v{vS0+1}, v{vLANE}, 2, 2
    v_bfe_u32 v{vS0+2}, v{vLANE}, 4, 1
    v_and_b32 v{vS0+3}, 3, v{vLANE}
    v_lshlrev_b32 v{vS0+2}, 5, v{vS0+2}
    v_lshl_add_u32 v{vS0+2}, v{vS0+3}, 3, v{vS0+2}
    v_lshl_add_u32 v{vS0+4}, v{vHH}, 3, v{vS0+1}
    v_mov_b32 v{vZ}, 0
    v_mov_b32 v{vZ+1}, 0
    v_mov_b32 v{vZ+2}, 0
    v_mov_b32 v{vZ+3}, 0
    v_lshlrev_b32 v{vCSR}, 4, v{vHH}
    v_add_u32 v{vCSR}, {CSA}, v{vCSR}
    v_lshlrev_b32 v{vT1}, 8, v{vS0+4}
    v_add_u32 v{vT1}, v{vT1}, v{vS0+2}
    v_lshlrev_b32 v{vS0+7}, 6, v{vS0+1}
    v_or_b32 v{vT1}, v{vT1}, v{vS0+7}
    s_lshl_b32 s{sTMP}, s{sWAVE}, 6
    v_xor_b32 v{vT1}, s{sTMP}, v{vT1}
    s_mov_b32 s{sONE}, 0x3f803f80
    """)
    for b in range(4):
        a(f"v_mfma_f32_32x32x16_bf16 {vr(vACC+16*b,16)}, {vr(vZ,4)}, {vr(vZ,4)}, 0")
        a(f"v_mov_b32 v{vS0+4+b}, 0")
        a(f"v_xor_b32 v{vTC+b}, {b << 6}, v{vT1}")
        a(f"v_add_u32 v{vTC+b}, {WB}, v{vTC+b}")
    prog_wait(a, vPG, LP, 10)
    stamp(a, 7)
    def rdB(step, b):
        f = vFR[step % 2]
        for p in range(2):
            a(f"ds_read_b64_tr_b16 {vr(f+4*b+2*p,2)}, v{vTC+b} offset:{4096*step + 1024*p}")
    def fetchx(step, i0):
        f = vFR[step % 2]
        a(f"s_set_gpr_idx_on s{sIDX}, gpr_idx(SRC0)")
        for i in range(i0, i0 + 2):
            a(f"v_mov_b32 v{f+16+i}, v{vXB+4*(step%4)+i}")
        a("s_set_gpr_idx_off")
    a(f"""
    s_mov_b32 s{sIT}, 0
    s_mov_b32 s{sIDX}, 0
    """)
    for b in range(4): rdB(0, b)
    a("s_waitcnt lgkmcnt(4)")
    for b in range(4): rdB(1, b)
    fetchx(0, 0); fetchx(0, 2)
    a.raw(".p2align 6")
    a.label("c_loopb")
    a(f"""
    s_bitcmp1_b32 {(1<<2)|(1<<4):#x}, s{sIT}
    s_cbranch_scc1 c_lb_rare
    """)
    a.label("c_lb_go")
    for k in range(4):
        f = vFR[k % 2]
        for b in range(4):
            if b % 2 == 0:
                a("s_waitcnt lgkmcnt(11)")
            if b == 0:
                for i in range(4):
                    a(f"v_dot2c_f32_bf16 v{vS0+4+i}, s{sONE}, v{f+i}")
            a(f"v_mfma_f32_32x32x16_bf16 {vr(vACC+16*b,16)}, {vr(f+4*b,4)}, {vr(f+16,4)}, {vr(vACC+16*b,16)}")
            rdB(k + 2, b)
            if k == 2 and b == 3:
                a(f"s_add_u32 s{sIDX}, s{sIDX}, 16")
                a(f"s_min_u32 s{sIDX}, s{sIDX}, 96")
            if b == 0: fetchx(k + 1, 0)
            if b == 2: fetchx(k + 1, 2)
            if k == 3:
                a(f"v_add_u32 v{vTC+b}, 16384, v{vTC+b}")
    dry_end(a)
    a(f"""
    s_add_u32 s{sIT}, s{sIT}, 1
    s_cmp_lt_u32 s{sIT}, 7
    s_cbranch_scc1 c_loopb
    s_waitcnt lgkmcnt(0)
    """)
    stamp(a, 6)
    a(f"""
    v_add_f32 v{vS0+4}, v{vS0+4}, v{vS0+5}
    v_add_f32 v{vS0+6}, v{vS0+6}, v{vS0+7}
    v_and_b32 v{vS0+2}, 31, v{vLANE}
    v_add_f32 v{vS0+4}, v{vS0+4}, v{vS0+6}
    v_lshlrev_b32 v{vS0+2}, 2, v{vS0+2}
    v_mov_b32 v{vS0+5}, v{vS0+4}
    s_lshl_b32 s{sTMP}, s{sWAVE}, 7
    s_add_u32 s{sTMP}, s{sTMP}, {CSB_}
    v_permlane32_swap_b32 v{vS0+4}, v{vS0+5}
    v_add_u32 v{vS0+2}, s{sTMP}, v{vS0+2}
    s_nop 0
    v_add_f32 v{vS0+4}, v{vS0+4}, v{vS0+5}
    ds_write_b32 v{vS0+2}, v{vS0+4}
    """)
    prog_set(a, vS0, SP, 2)
    a(f"""
    s_lshr_b32 s{sTMP}, s{sCOL}, 1
    s_mul_i32 s{sTMP}, s{sTMP}, 7
    s_and_b32 s{sTMP2}, s{sCOL}, 1
    s_mul_i32 s{sTMP2}, s{sTMP2}, 3
    s_add_u32 s{sTMP}, s{sTMP}, s{sTMP2}
    s_mul_i32 s{sTMP2}, s{sMT32}, 72
    s_add_u32 s{sTMP}, s{sTMP}, s{sTMP2}
    s_lshl_b32 s{sTMP}, s{sTMP}, 11
    s_add_u32 s{sTMP}, s{sTMP}, {HF_OFF}
    s_mov_b32 s{sRELU}, 0
    v_mov_b32 v{vMASK}, -1
    v_mov_b32 v{vCONST}, 0
    s_mov_b32 s{sPASS}, 2
    """)
    for j in range(4):
        a(f"""
        s_mov_b32 s{sSCL+j}, 1.0
        s_xor_b32 s{sTMP2}, s{sWAVE}, {j}
        s_lshl_b32 s{sTMP3}, s{sTMP2}, 7
        s_add_u32 s{sCSO+j}, s{sTMP3}, 512
        s_lshl_b32 s{sTMP2}, s{sTMP2}, 11
        s_add_u32 s{sDST+j}, s{sTMP}, s{sTMP2}
        """)
    a(f"""
    v_readfirstlane_b32 s{sTAG}, v{vTG}
    v_readfirstlane_b32 s{sTAG+1}, v{vTG+1}
    s_cmp_lg_u32 s{sTAG}, 0
    s_cbranch_scc1 c_lb_tag2
    """)
    get_tag(a, vS0+1)
    a.label("c_lb_tag2")
    prog_wait(a, vPG, CP, 9)
    a(f"""
    s_lshl_b32 s{sTMP}, s{sWAVE}, 8
    s_add_u32 s{sTMP}, s{sTMP}, {STA}
    v_and_b32 v{vS0+2}, 31, v{vLANE}
    v_lshlrev_b32 v{vS0+2}, 3, v{vS0+2}
    v_add_u32 v{vS0+2}, s{sTMP}, v{vS0+2}
    ds_read_b64 {vr(vNM,2)}, v{vS0+2}
    """)
    prog_wait(a, vPG, SP, 2, sleep=0)
    stamp(a, 11)
    a("s_branch c_epi")
    for st in range(2):
        a.label(f"c_la_slow{st}")
        a(f"""
        s_cmp_eq_u32 s{sIT}, 7
        s_cbranch_scc1 c_la_back{st}
        s_add_u32 s{sTMP3}, s{sIT}, 1
        """)
        prog_wait(a, vPG, LP, f"s{sTMP3}", sleep=env("ASLEEP", 1))
        a(f"s_branch c_la_back{st}")
    a.label("c_lb_rare")
    a(f"""
    s_cmp_lg_u32 s{sIT}, 2
    s_cbranch_scc1 c_lb_r1
    """)
    prog_set(a, vS0, SP, 1)
    a("s_waitcnt vmcnt(0)")
    prog_set(a, vS0+1, LP, 11)
    a("s_waitcnt lgkmcnt(0)")
    a("s_branch c_lb_go")
    a.label("c_lb_r1")
    prog_wait(a, vPG, LP, 11)
    stamp(a, 10)
    a("s_branch c_lb_go")
    a.label("c_done")
    stamp(a, 12)

from mk2 import gen_attn, gen_gemm2

def build():
    hdr = open("cdna_kernels/" + NAME + ".s.ref").read().split("\n")
    out = [l for l in hdr if l.startswith(";") and "@launch" not in l]
    body = Asm()
    body.raw(".p2align 8")
    d = gen(body)
    out.append(f"; @launch grid=({d['grid']},1,1) block=({d['block']},1,1) lds={d['lds']}")
    out.append('.amdgcn_target "amdgcn-amd-amdhsa--gfx950"')
    out.append(".text")
    out.append(f".globl {d['name']}")
    out.append(f".type {d['name']},@function")
    txt = "\n".join(out) + "\n" + body.text()
    txt += '.section .rodata,"a"\n.p2align 6\n' + kernel_desc(d['name'], d['nvgpr'], d['accum'])
    return txt
```

```python
import os
from asmlib import *
from mk import *

def reduce_write(a, vACC, vWA, sBASE):
    a(f"v_add_u32 v{vWA}, s{sBASE}, v{vL16}")
    for j in range(1, 4):
        for g in range(4):
            a(f"ds_write_b128 v{vWA}, {vr(vACC+16*j+4*g,4)} offset:{(j-1)*4096+g*1024}")
def reduce_read(a, vACC, vT, vRA, region0):
    for j in range(1, 4):
        a(f"""
        s_xor_b32 s{sTMP}, s{sWAVE}, {j}
        s_lshl_b32 s{sTMP}, s{sTMP}, 14
        s_add_u32 s{sTMP}, s{sTMP}, {region0 + (j-1)*4096}
        v_add_u32 v{vRA}, s{sTMP}, v{vL16}
        """)
        for g in range(4):
            a(f"ds_read_b128 {vr(vT+16*(j-1)+4*g,4)}, v{vRA} offset:{g*1024}")
    for j in range(3):
        for g in range(4):
            a(f"s_waitcnt lgkmcnt({11 - (4*j+g)})")
            for r in range(4):
                i = 4*g + r
                a(f"v_add_f32 v{vACC+i}, v{vACC+i}, v{vT+16*j+i}")

def gen_attn(a):
    sHEAD, sQB, sKV, sRD, sWR, sLB, sFB, sWV = sR, sR+1, sR+2, sR+3, sR+4, sR+5, sR+6, sR+7
    vKA, vVA, vKAb, vVAb, vHH, vHHI, vT0 = 3, 4, 5, 6, 7, 8, 12
    vQ = 16; vO = 48; vS = [112, 128]; vP = [144, 152]; vK = [160, 168]; vV = [176, 184]; vNM = 192
    vFA = 208
    a(f"""
    s_and_b32 s{sHEAD}, s{sSL}, 1
    s_lshl_b32 s{sTMP}, s{sXCD}, 1
    s_add_u32 s{sHEAD}, s{sHEAD}, s{sTMP}
    s_lshr_b32 s{sQB}, s{sSL}, 1
    s_lshl_b32 s{sKV}, s{sHEAD}, 18
    s_add_u32 s{sKV}, s{sKV}, {KF_OFF}
    s_lshl_b32 s{sLB}, s{sWAVE}, 14
    v_lshrrev_b32 v{vHH}, 5, v{vLANE}
    v_add_u32 v{vKAb}, s{sLB}, v{vL16}
    v_bfe_u32 v{vT0}, v{vLANE}, 4, 1
    v_lshlrev_b32 v{vVAb}, 10, v{vT0}
    v_and_b32 v{vT0}, 1, v{vLANE}
    v_lshl_add_u32 v{vVAb}, v{vT0}, 9, v{vVAb}
    v_bfe_u32 v{vT0}, v{vLANE}, 1, 1
    v_lshl_add_u32 v{vVAb}, v{vT0}, 3, v{vVAb}
    v_bfe_u32 v{vT0}, v{vLANE}, 2, 2
    v_lshl_add_u32 v{vT0}, v{vHH}, 2, v{vT0}
    v_lshl_add_u32 v{vVAb}, v{vT0}, 4, v{vVAb}
    v_add_u32 v{vVAb}, s{sLB}, v{vVAb}
    v_add_u32 v{vVAb}, 2048, v{vVAb}
    v_sub_u32 v{vHHI}, v{vHH}, 1
    v_sub_u32 v{vHH}, 0, v{vHH}
    """)
    a(f"""
    s_lshl_b32 s{sTMP}, s{sHEAD}, 4
    s_add_u32 s{sTMP}, s{sTMP}, s{sQB}
    s_lshl_b32 s{sTMP}, s{sTMP}, 9
    s_add_u32 s{sTMP}, s{sTMP}, {F1_OFF}
    s_lshl_b32 s{sTMP2}, s{sQB}, 3
    s_add_u32 s{sTMP2}, s{sTMP2}, s{sTMP}
    v_and_b32 v{vFA}, 1, v{vLANE}
    v_lshlrev_b32 v{vFA}, 7, v{vFA}
    v_add_u32 v{vFA}, s{sTMP2}, v{vFA}
    s_lshl_b32 s{sTMP2}, s{sWAVE}, 5
    s_add_u32 s{sTMP2}, s{sTMP2}, s{sTMP}
    s_add_u32 s{sTMP2}, s{sTMP2}, 128
    v_bfe_u32 v{vFA+1}, v{vLANE}, 2, 1
    v_lshlrev_b32 v{vFA+1}, 7, v{vFA+1}
    v_and_b32 v{vT0}, 3, v{vLANE}
    v_lshl_add_u32 v{vFA+1}, v{vT0}, 3, v{vFA+1}
    v_add_u32 v{vFA+1}, s{sTMP2}, v{vFA+1}
    """)
    mb23_addr(a, vFA+2, sQB, sHEAD, F3_OFF)
    a(f"v_mov_b32 v{vKA}, v{vKAb}")
    a(f"v_mov_b32 v{vVA}, v{vVAb}")
    stamp(a, 14)
    dry_by_wave(a, [["a_pro"], ["a_loop"], ["a_loop2"], ["a_tail"]], "dw2")
    a("s_waitcnt vmcnt(0) lgkmcnt(0)")
    for i in range(8):
        a(f"v_mov_b32 v{vP[1]+i}, 0")
        a(f"v_mov_b32 v{vV[1]+i}, 0")
    a(f"s_setprio {env('APRIO', 3)}")
    if env("PFW", 0):
        set_srd(a, sA, pW2, DFF*D*2)
        set_srd(a, sB, pWO, D*D*2)
        a(f"""
        s_lshl_b32 s{sTMP}, s{sSL}, 2
        s_add_u32 s{sTMP}, s{sTMP}, s{sWAVE}
        v_lshlrev_b32 v{vT0}, 7, v{vLANE}
        s_lshl_b32 s{sTMP2}, s{sTMP}, 14
        buffer_load_dword v{vNM}, v{vT0}, {sr(sA,4)}, s{sTMP2} offen sc1
        s_add_u32 s{sTMP2}, s{sTMP2}, 8192
        buffer_load_dword v{vNM+1}, v{vT0}, {sr(sA,4)}, s{sTMP2} offen sc1
        s_lshl_b32 s{sTMP2}, s{sTMP}, 13
        buffer_load_dword v{vNM+2}, v{vT0}, {sr(sB,4)}, s{sTMP2} offen sc1
        """)
    stamp(a, 15)
    poll_flags(a, vFA, vT0+2)
    a.label("a_pro")
    stamp(a, 16)
    a(f"""
    s_lshl_b32 s{sTMP}, s{sQB}, 14
    s_add_u32 s{sTMP}, s{sTMP}, s{sKV}
    buffer_load_dwordx4 {vr(vK[1],4)}, v{vL16}, {sr(sWS,4)}, s{sTMP} offen sc1
    buffer_load_dwordx4 {vr(vK[1]+4,4)}, v{vL16}, {sr(sWS,4)}, s{sTMP} offen offset:1024 sc1
    s_lshl_b32 s{sTMP2}, s{sQB}, 2
    s_lshl_b32 s{sTMP3}, s{sHEAD}, 6
    s_add_u32 s{sTMP2}, s{sTMP2}, s{sTMP3}
    """)
    for j in range(4):
        a(f"""
        s_xor_b32 s{sTMP}, s{sWAVE}, {j}
        s_add_u32 s{sTMP}, s{sTMP}, s{sTMP2}
        s_lshl_b32 s{sTMP}, s{sTMP}, 11
        buffer_load_dwordx4 {vr(vQ+8*j,4)}, v{vL16}, {sr(sWS,4)}, s{sTMP} offen sc1
        buffer_load_dwordx4 {vr(vQ+8*j+4,4)}, v{vL16}, {sr(sWS,4)}, s{sTMP} offen offset:1024 sc1
        """)
    prog_wait(a, vT0, SP, 1)
    poll_flags(a, vFA+1, vT0+2)
    stamp(a, 17)
    a(f"""
    s_lshl_b32 s{sTMP}, s{sWAVE}, 16
    s_add_u32 s{sWR}, s{sKV}, s{sTMP}
    s_mov_b32 m0, s{sLB}
    s_nop 0
    """)
    def dma_tile():
        for i in range(4):
            a(f"buffer_load_dwordx4 v{vL16}, {sr(sWS,4)}, s{sWR} offen offset:{1024*i} sc1 lds")
    for t in range(4):
        dma_tile()
        a(f"s_add_u32 s{sWR}, s{sWR}, 4096")
        if t < 3:
            a(f"s_add_u32 m0, m0, 4096")
        a(f"v_mfma_f32_32x32x16_bf16 {vr(vO+16*t,16)}, {vr(vK[1],4)}, {vr(vQ+8*t,4)}, 0")
        a(f"v_mfma_f32_32x32x16_bf16 {vr(vO+16*t,16)}, {vr(vK[1]+4,4)}, {vr(vQ+8*t+4,4)}, {vr(vO+16*t,16)}")
    stamp(a, 18)
    def read_k(st, addr, off=0):
        a(f"ds_read_b128 {vr(vK[st],4)}, v{addr} offset:{off}")
        a(f"ds_read_b128 {vr(vK[st]+4,4)}, v{addr} offset:{off+1024}")
    def read_v_ins(st, addr, off=0):
        return [f"ds_read_b64_tr_b16 {vr(vV[st]+4*s_+2*p,2)}, v{addr} offset:{off+(16*s_+8*p)*16}" for s_ in range(2) for p in range(2)]
    for j in range(4):
        o = vO + 16*j
        if j == 3:
            a("s_waitcnt vmcnt(12)")
            read_k(0, vKAb)
            for x in read_v_ins(0, vVAb): a(x)
        t = vT0 + (j & 1) * 2
        a(f"v_max3_f32 v{t}, v{o}, v{o+1}, v{o+2}")
        for i in range(3, 15, 2):
            a(f"v_max3_f32 v{t}, v{t}, v{o+i}, v{o+i+1}")
        a(f"v_max_f32 v{t}, v{t}, v{o+15}")
        a(f"v_mov_b32 v{t+1}, v{t}")
        a(f"v_mfma_f32_32x32x16_bf16 {vr(o,16)}, {vr(vP[1],4)}, {vr(vP[1],4)}, 0")
        a("s_nop 0")
        a(f"v_permlane32_swap_b32 v{t}, v{t+1}")
        a("s_nop 1")
        a(f"v_max_f32 v{t}, v{t}, v{t+1}")
        a(f"v_add_f32 v{t}, {f32bits(BIAS - 1.0):#x}, v{t}")
        a(f"v_cvt_pk_bf16_f32 v{t}, -v{t}, 0")
        a(f"v_and_b32 v{t}, v{t}, v{vHH}")
        a(f"v_and_or_b32 v{vQ+8*j+6}, v{vQ+8*j+6}, v{vHHI}, v{t}")
    a(f"""
    s_mov_b32 s{sRD}, 0
    s_mov_b32 s{sIT}, 0
    s_waitcnt lgkmcnt(0)
    """)
    a(f"v_mfma_f32_32x32x16_bf16 {vr(vS[0],16)}, {vr(vK[0],4)}, {vr(vQ,4)}, 0")
    a(f"v_mfma_f32_32x32x16_bf16 {vr(vS[0],16)}, {vr(vK[0]+4,4)}, {vr(vQ+4,4)}, {vr(vS[0],16)}")
    a("s_nop 7")
    a("s_nop 3")
    def body(sl):
        st = sl % 2
        for j in range(4):
            sc = vS[j % 2]; sn = vS[(j + 1) % 2]
            pc = vP[j % 2]; pp = vP[(j + 1) % 2]
            kn = vK[st] if j < 3 else vK[1 - st]
            qn = vQ + 8 * ((j + 1) % 4)
            vv = vV[st] if j > 0 else vV[1 - st]
            op = vO + 16 * ((j + 3) % 4)
            mf = [
                f"v_mfma_f32_32x32x16_bf16 {vr(sn,16)}, {vr(kn,4)}, {vr(qn,4)}, 0",
                f"v_mfma_f32_32x32x16_bf16 {vr(sn,16)}, {vr(kn+4,4)}, {vr(qn+4,4)}, {vr(sn,16)}",
                f"v_mfma_f32_32x32x16_bf16 {vr(op,16)}, {vr(vv,4)}, {vr(pp,4)}, {vr(op,16)}",
                f"v_mfma_f32_32x32x16_bf16 {vr(op,16)}, {vr(vv+4,4)}, {vr(pp+4,4)}, {vr(op,16)}",
            ]
            if j == 3:
                a("s_waitcnt lgkmcnt(0)")
            plan = [[("e", 0), ("e", 1), ("e", 2)], [("e", 3), ("e", 4), ("e", 5)], [("e", 6), ("e", 7), ("e", 8)],
                    [("e", i) for i in range(9, 16)] + [("c", i) for i in range(8)]]
            for g in range(4):
                a(mf[g])
                if j == 0 and g == 2:
                    a(f"s_add_u32 m0, s{sLB}, {4096*sl}")
                if j == 0 and g == 3:
                    dma_tile()
                    a(f"s_add_u32 s{sWR}, s{sWR}, 4096")
                if j == 1 and g == 3:
                    a("s_waitcnt vmcnt(12)")
                    read_k(1 - st, vKAb, 4096*((sl+1) % 4))
                    for x in read_v_ins(1 - st, vVAb, 4096*((sl+1) % 4)): a(x)
                for kind, i in plan[g]:
                    if kind == "e":
                        a(f"v_exp_f32 v{sc+i}, v{sc+i}")
                    else:
                        a(f"v_cvt_pk_bf16_f32 v{pc+i}, v{sc+2*i}, v{sc+2*i+1}")
    a("s_setprio 1")
    stamp(a, 19)
    dry_end(a)
    a.raw(".p2align 6")
    a.label("a_loop")
    body(0)
    body(1)
    dry_end(a)
    a.label("a_loop2")
    body(2)
    body(3)
    dry_end(a)
    a(f"""
    s_add_u32 s{sIT}, s{sIT}, 1
    s_cmp_eq_u32 s{sIT}, 3
    s_cselect_b32 s{sWR}, {OOB:#x}, s{sWR}
    s_cmp_lt_u32 s{sIT}, 4
    s_cbranch_scc1 a_loop
    """)
    a.label("a_tail")
    stamp(a, 20)
    a("s_setprio 3")
    a("s_nop 1")
    a(f"v_mfma_f32_32x32x16_bf16 {vr(vO+48,16)}, {vr(vV[1],4)}, {vr(vP[1],4)}, {vr(vO+48,16)}")
    a(f"v_mfma_f32_32x32x16_bf16 {vr(vO+48,16)}, {vr(vV[1]+4,4)}, {vr(vP[1]+4,4)}, {vr(vO+48,16)}")
    a("s_waitcnt vmcnt(0)")
    a("s_nop 3")
    reduce_write(a, vO, vT0, sLB)
    a("s_waitcnt lgkmcnt(0)")
    prog_set(a, vT0, AP, 1)
    prog_wait(a, vT0, AP, 1, sleep=0)
    reduce_read(a, vO, vS[0], vT0, ATT0)
    a(f"s_mov_b32 s{sFB}, 0")
    stamp(a, 21)
    a.label("a_norm")
    a(f"""
    v_mov_b32 v{vT0}, v{vO+12}
    v_mov_b32 v{vT0+1}, v{vO+12}
    s_nop 1
    v_permlane32_swap_b32 v{vT0}, v{vT0+1}
    s_nop 1
    v_rcp_f32 v{vT0}, v{vT0+1}
    v_mov_b32 v{vT0+2}, 0
    """)
    for i in range(16):
        a(f"v_mul_f32 v{vS[0]+i}, v{vO+i}, v{vT0}")
    for i in range(16):
        a(f"v_fma_f32 v{vT0+2}, v{vS[0]+i}, 0, v{vT0+2}")
    a(f"""
    s_mov_b32 s{sTMP}, {f32bits(2.0**-90):#x}
    v_cmp_nle_f32 vcc, s{sTMP}, v{vT0+1}
    s_mov_b32 s{sTMP}, {f32bits(2.0**100):#x}
    v_cmp_nge_f32 s[72:73], s{sTMP}, v{vT0+1}
    v_cmp_u_f32 s[74:75], v{vT0+2}, v{vT0+2}
    s_or_b64 vcc, vcc, s[72:73]
    s_or_b64 vcc, vcc, s[74:75]
    s_cmp_lg_u32 s{sFB}, 0
    s_cbranch_scc1 a_store
    s_cbranch_vccnz a_fallback
    """)
    a.label("a_store")
    for i in range(8):
        a(f"v_cvt_pk_bf16_f32 v{vP[0]+i}, v{vS[0]+2*i}, v{vS[0]+2*i+1}")
    a(f"""
    v_and_b32 v{vP[0]+6}, v{vP[0]+6}, v{vHHI}
    v_and_b32 v{vP[0]+7}, v{vP[0]+7}, v{vHHI}
    s_lshl_b32 s{sTMP3}, s{sQB}, 2
    s_add_u32 s{sTMP3}, s{sTMP3}, s{sWAVE}
    s_mul_i32 s{sTMP}, s{sTMP3}, 144
    s_lshl_b32 s{sTMP2}, s{sHEAD}, 1
    s_add_u32 s{sTMP}, s{sTMP}, s{sTMP2}
    s_lshl_b32 s{sTMP}, s{sTMP}, 10
    s_add_u32 s{sTMP}, s{sTMP}, {HF_OFF + 112*1024}
    buffer_store_dwordx4 {vr(vP[0],4)}, v{vL16}, {sr(sWS,4)}, s{sTMP} offen sc1
    buffer_store_dwordx4 {vr(vP[0]+4,4)}, v{vL16}, {sr(sWS,4)}, s{sTMP} offen offset:1024 sc1
    s_waitcnt vmcnt(0)
    """)
    stamp(a, 22)
    publish_flag(a, vT0+2, vFA+2, 2)
    dry_end(a)
    stamp_flush(a, 0, sWS, sW8, 20, wpw=8)
    a("s_endpgm")
    a.label("a_fallback")
    a(f"""
    v_and_b32 v{vQ+6}, v{vQ+6}, v{vHHI}
    v_mov_b32 v{vT0}, 0xff800000
    s_mov_b32 s{sWR}, s{sKV}
    s_mov_b32 s{sIT}, 0
    """)
    a.label("a_fb1")
    a(f"""
    buffer_load_dwordx4 {vr(vK[0],4)}, v{vL16}, {sr(sWS,4)}, s{sWR} offen sc1
    buffer_load_dwordx4 {vr(vK[0]+4,4)}, v{vL16}, {sr(sWS,4)}, s{sWR} offen offset:1024 sc1
    s_waitcnt vmcnt(0)
    v_mfma_f32_32x32x16_bf16 {vr(vS[0],16)}, {vr(vK[0],4)}, {vr(vQ,4)}, 0
    v_mfma_f32_32x32x16_bf16 {vr(vS[0],16)}, {vr(vK[0]+4,4)}, {vr(vQ+4,4)}, {vr(vS[0],16)}
    s_nop 15
    s_nop 3
    """)
    for i in range(0, 16, 2):
        a(f"v_max3_f32 v{vT0}, v{vT0}, v{vS[0]+i}, v{vS[0]+i+1}")
    a(f"""
    s_add_u32 s{sWR}, s{sWR}, 4096
    s_add_u32 s{sIT}, s{sIT}, 1
    s_cmp_lt_u32 s{sIT}, 64
    s_cbranch_scc1 a_fb1
    v_mov_b32 v{vT0+1}, v{vT0}
    s_nop 1
    v_permlane32_swap_b32 v{vT0}, v{vT0+1}
    s_nop 1
    v_max_f32 v{vT0}, v{vT0}, v{vT0+1}
    """)
    for i in range(16):
        a(f"v_sub_f32 v{vNM+i}, 0, v{vT0}")
        a(f"v_mov_b32 v{vO+i}, 0")
    a(f"""
    s_add_u32 m0, s{sLB}, 12288
    v_add_u32 v{vKA}, 12288, v{vKAb}
    v_add_u32 v{vVA}, 12288, v{vVAb}
    s_mov_b32 s{sWR}, s{sKV}
    s_mov_b32 s{sIT}, 0
    """)
    a.label("a_fb2")
    dma_tile()
    a("s_waitcnt vmcnt(0)")
    read_k(0, vKA)
    for x in read_v_ins(0, vVA): a(x)
    a(f"""
    s_waitcnt lgkmcnt(0)
    v_mfma_f32_32x32x16_bf16 {vr(vS[0],16)}, {vr(vK[0],4)}, {vr(vQ,4)}, {vr(vNM,16)}
    v_mfma_f32_32x32x16_bf16 {vr(vS[0],16)}, {vr(vK[0]+4,4)}, {vr(vQ+4,4)}, {vr(vS[0],16)}
    s_nop 15
    s_nop 3
    """)
    for i in range(16):
        a(f"v_exp_f32 v{vS[0]+i}, v{vS[0]+i}")
    a("s_nop 0")
    for i in range(8):
        a(f"v_cvt_pk_bf16_f32 v{vP[0]+i}, v{vS[0]+2*i}, v{vS[0]+2*i+1}")
    a(f"""
    s_nop 1
    v_mfma_f32_32x32x16_bf16 {vr(vO,16)}, {vr(vV[0],4)}, {vr(vP[0],4)}, {vr(vO,16)}
    v_mfma_f32_32x32x16_bf16 {vr(vO,16)}, {vr(vV[0]+4,4)}, {vr(vP[0]+4,4)}, {vr(vO,16)}
    s_add_u32 s{sWR}, s{sWR}, 4096
    s_add_u32 s{sIT}, s{sIT}, 1
    s_cmp_lt_u32 s{sIT}, 64
    s_cbranch_scc1 a_fb2
    s_nop 15
    s_nop 3
    s_mov_b32 s{sFB}, 1
    s_branch a_norm
    """)

def gen_gemm2(a):
    sMT, sNT, sHO, sWOFF, sGB, sWO3 = sR, sR+1, sR+2, sR+3, sR+4, sR+5
    vH0, vH1, vWD, vTR0, vTR1, vXA, vT0, vFA = 3, 4, 5, 6, 7, 8, 12, 15
    vXD = 18
    vWF = 224
    vACC = 80
    vHR = 144
    vWB = 16
    if env("STS", 0):
        stamp_flush(a, 0, sWS, sW8, 20, wpw=8)
        a("s_endpgm")
    a(f"""
    s_mul_i32 s{sTMP}, s{sSL}, 37
    s_lshr_b32 s{sTMP}, s{sTMP}, 8
    s_mul_i32 s{sTMP2}, s{sTMP}, 7
    s_sub_u32 s{sNT}, s{sSL}, s{sTMP2}
    s_lshl_b32 s{sMT}, s{sXCD}, 2
    s_add_u32 s{sMT}, s{sMT}, s{sTMP}
    s_lshl_b32 s{sMT}, s{sMT}, 1
    """)
    a(f"""
    v_and_b32 v{vFA}, 15, v{vLANE}
    s_mul_i32 s{sTMP}, s{sXCD}, 28
    s_add_u32 s{sTMP}, s{sTMP}, s{sSL}
    s_lshl_b32 s{sTMP}, s{sTMP}, 4
    v_add_u32 v{vFA}, s{sTMP}, v{vFA}
    v_lshlrev_b32 v{vFA}, 3, v{vFA}
    v_add_u32 v{vFA}, {F2_OFF}, v{vFA}
    s_and_b32 s{sTMP}, s{sWAVE}, 1
    s_add_u32 s{sMT}, s{sMT}, s{sTMP}
    s_mul_i32 s{sTMP}, s{sMT}, {144*1024}
    s_add_u32 s{sTMP}, s{sTMP}, {HF_OFF}
    v_add_u32 v{vH0}, s{sTMP}, v{vL16}
    s_xor_b32 s{sTMP}, s{sMT}, 1
    s_mul_i32 s{sTMP}, s{sTMP}, {144*1024}
    s_add_u32 s{sTMP}, s{sTMP}, {HF_OFF}
    v_add_u32 v{vH1}, s{sTMP}, v{vL16}
    s_mul_i32 s{sHO}, s{sWAVE}, {28*1024}
    s_lshl_b32 s{sGB}, s{sWAVE}, 14
    s_add_u32 s{sGB}, s{sGB}, {GR0}
    """)
    a(f"""
    v_lshrrev_b32 v{vT0}, 3, v{vLANE}
    v_bfe_u32 v{vT0+1}, v{vLANE}, 4, 1
    v_lshlrev_b32 v{vT0+1}, 2, v{vT0+1}
    v_and_b32 v{vT0+2}, 7, v{vLANE}
    v_xor_b32 v{vT0+2}, v{vT0+2}, v{vT0+1}
    v_lshlrev_b32 v{vT0+2}, 4, v{vT0+2}
    s_movk_i32 s{sTMP}, 896
    v_mad_u32_u24 v{vWD}, v{vT0}, s{sTMP}, v{vT0+2}
    s_mul_i32 s{sWOFF}, s{sWAVE}, {448*896}
    s_lshl_b32 s{sTMP}, s{sNT}, 7
    s_add_u32 s{sWOFF}, s{sWOFF}, s{sTMP}
    """)
    a(f"""
    v_lshrrev_b32 v{vT0}, 5, v{vLANE}
    v_bfe_u32 v{vT0+1}, v{vLANE}, 2, 2
    v_lshl_add_u32 v{vT0}, v{vT0}, 2, v{vT0+1}
    v_lshlrev_b32 v{vTR0}, 7, v{vT0}
    v_bfe_u32 v{vT0+1}, v{vLANE}, 3, 1
    s_lshr_b32 s{sTMP}, s{sWAVE}, 1
    v_xor_b32 v{vT0+1}, s{sTMP}, v{vT0+1}
    v_lshl_add_u32 v{vTR0}, v{vT0+1}, 6, v{vTR0}
    v_bfe_u32 v{vT0+1}, v{vLANE}, 4, 1
    v_lshl_add_u32 v{vTR0}, v{vT0+1}, 5, v{vTR0}
    v_and_b32 v{vT0+1}, 3, v{vLANE}
    v_lshl_add_u32 v{vTR0}, v{vT0+1}, 3, v{vTR0}
    v_xor_b32 v{vTR1}, 64, v{vTR0}
    v_add_u32 v{vTR0}, s{sGB}, v{vTR0}
    v_add_u32 v{vTR1}, s{sGB}, v{vTR1}
    s_lshl_b32 s{sNT}, s{sNT}, 1
    s_add_u32 s{sNT}, s{sNT}, s{sTMP}
    """)
    def loads(k):
        f = vHR + 8*k
        a(f"s_add_u32 m0, s{sGB}, {2048*k}")
        a(f"s_add_u32 s{sTMP}, s{sWOFF}, {8*896 - 1024}")
        a(f"buffer_load_dwordx4 v{vWD}, {sr(sB,4)}, s{sWOFF} offen lds")
        a(f"buffer_load_dwordx4 v{vWD}, {sr(sB,4)}, s{sTMP} offen offset:1024 lds")
        a(f"buffer_load_dwordx4 {vr(f,4)}, v{vH0}, {sr(sWS,4)}, s{sHO} offen sc1")
        a(f"buffer_load_dwordx4 {vr(f+4,4)}, v{vH1}, {sr(sWS,4)}, s{sHO} offen sc1")
        a(f"s_add_u32 s{sHO}, s{sHO}, 1024")
        a(f"s_add_u32 s{sWOFF}, s{sWOFF}, {16*896}")
    def rdw(k, dst):
        for t, ad in ((0, vTR0), (1, vTR1)):
            for p in range(2):
                a(f"ds_read_b64_tr_b16 {vr(dst+4*t+2*p,2)}, v{ad} offset:{2048*k + 1024*p}")
    def mfmas(w, h):
        for j in range(4):
            a(f"v_mfma_f32_32x32x16_bf16 {vr(vACC+16*j,16)}, {vr(w+4*(j>>1),4)}, {vr(h+4*(j&1),4)}, {vr(vACC+16*j,16)}")
    vFA3, vXD3, vOA = 208, 212, 220
    set_srd(a, sB, pWO, D*D*2)
    set_srd(a, sA, pX, S*D*2)
    set_srd(a, sCc, pOUT, S*D*2)
    a(f"""
    s_mul_i32 s{sWO3}, s{sWAVE}, {4*28*896}
    s_lshr_b32 s{sTMP}, s{sNT}, 1
    s_lshl_b32 s{sTMP}, s{sTMP}, 7
    s_add_u32 s{sWO3}, s{sWO3}, s{sTMP}
    """)
    for k in range(8):
        off = (28*(k >> 1) + 16*(k & 1)) * 896
        a(f"s_add_u32 m0, s{sGB}, {2048*k}")
        a(f"s_add_u32 s{sTMP}, s{sWO3}, {off}")
        a(f"buffer_load_dwordx4 v{vWD}, {sr(sB,4)}, s{sTMP} offen lds")
        a(f"s_add_u32 s{sTMP}, s{sWO3}, {off + 8*896 - 1024}")
        a(f"buffer_load_dwordx4 v{vWD}, {sr(sB,4)}, s{sTMP} offen offset:1024 lds")
    a(f"""
    v_add_u32 v{vFA3}, {F3_OFF - F2_OFF}, v{vFA}
    v_and_b32 v{vOA}, 31, v{vLANE}
    s_lshl_b32 s{sTMP}, s{sMT}, 5
    v_add_u32 v{vOA}, s{sTMP}, v{vOA}
    s_movk_i32 s{sTMP}, 896
    v_mul_lo_u32 v{vOA}, v{vOA}, s{sTMP}
    v_lshrrev_b32 v{vT0}, 5, v{vLANE}
    v_lshl_add_u32 v{vXA}, v{vT0}, 3, v{vOA}
    v_lshl_add_u32 v{vOA}, v{vT0}, 4, v{vOA}
    s_lshl_b32 s{sNT}, s{sNT}, 6
    """)
    for g in range(4):
        a(f"buffer_load_dwordx2 {vr(vXD3+2*g,2)}, v{vXA}, {sr(sA,4)}, s{sNT} offen offset:{16*g}")
    a(f"s_lshr_b32 s{sTMP3}, s{sMT32}, 2")
    mb23_addr(a, 16, sTMP3, sCOL, F2_OFF)
    a(f"""
    s_waitcnt vmcnt(20)
    """)
    publish_flag(a, vT0, 16, 1)
    a(f"""
    s_cmp_ge_u32 s{sSL}, 28
    s_cbranch_scc1 k_end
    """)
    stamp(a, 13)
    a("s_waitcnt vmcnt(0)")
    for k in range(8):
        rdw(k, vWB + 8*k)
        if k % 2 == 1: a("s_waitcnt lgkmcnt(0)")
    for g in range(4):
        for p in range(2):
            a(f"v_lshlrev_b32 v{vT0}, 16, v{vXD3+2*g+p}")
            a(f"v_and_b32 v{vT0+1}, 0xffff0000, v{vXD3+2*g+p}")
            a(f"v_add_f32 v{vACC+4*g+2*p}, v{vACC+4*g+2*p}, v{vT0}")
            a(f"v_add_f32 v{vACC+4*g+2*p+1}, v{vACC+4*g+2*p+1}, v{vT0+1}")
    set_srd(a, sB, pW2, DFF*D*2)
    a(f"s_setprio {env('GPRIO', 0)}")
    stamp(a, 20)
    poll_flags(a, vFA, vT0)
    stamp(a, 14)
    a.label("g_pre")
    for k in range(7):
        loads(k)
    a(f"s_mov_b32 s{sIT}, 0")
    dry_end(a)
    a.label("g_loop")
    a(f"""
    s_cmp_eq_u32 s{sIT}, 3
    s_cselect_b32 s{sHO}, {OOB:#x}, s{sHO}
    s_cselect_b32 s{sWOFF}, {OOB:#x}, s{sWOFF}
    """)
    for k in range(7):
        a("s_waitcnt vmcnt(24)")
        rdw(k, vWF)
        a("s_waitcnt lgkmcnt(0)")
        mfmas(vWF, vHR + 8*k)
        loads(k)
    dry_end(a)
    a(f"""
    s_add_u32 s{sIT}, s{sIT}, 1
    s_cmp_lt_u32 s{sIT}, 4
    s_cbranch_scc1 g_loop
    """)
    a.label("g_p3")
    a("s_setprio 2")
    a("s_waitcnt vmcnt(0)")
    stamp(a, 15)
    a(f"""
    s_lshl_b32 s{sHO}, s{sWAVE}, 13
    s_add_u32 s{sHO}, s{sHO}, {112*1024}
    s_add_u32 s{sTMP2}, s{sHO}, 4096
    """)
    stamp(a, 16)
    dry_end(a)
    a.label("g_tail")
    poll_flags(a, vFA3, vT0)
    stamp(a, 17)
    for k in range(8):
        f = vHR + 8*k
        so = sHO if k < 4 else sTMP2
        a(f"buffer_load_dwordx4 {vr(f,4)}, v{vH0}, {sr(sWS,4)}, s{so} offen offset:{1024*(k%4)} sc1")
        a(f"buffer_load_dwordx4 {vr(f+4,4)}, v{vH1}, {sr(sWS,4)}, s{so} offen offset:{1024*(k%4)} sc1")
    for k in range(8):
        a(f"s_waitcnt vmcnt({14 - 2*k})")
        mfmas(vWB + 8*k, vHR + 8*k)
    stamp(a, 18)
    a("s_nop 7")
    a("s_nop 3")
    reduce_write(a, vACC, vT0, sGB)
    a("s_waitcnt lgkmcnt(0)")
    prog_set(a, vT0, SP, 3)
    prog_wait(a, vT0, SP, 3, sleep=0)
    dry_end(a)
    a.label("g_tail2")
    reduce_read(a, vACC, vHR, vT0, GR0)
    stamp(a, 19)
    for i in range(8):
        a(f"v_cvt_pk_bf16_f32 v{vHR+i}, v{vACC+2*i}, v{vACC+2*i+1}")
    a("s_nop 1")
    for q in range(2):
        a(f"v_permlane32_swap_b32 v{vHR+4*q}, v{vHR+4*q+2}")
        a(f"v_permlane32_swap_b32 v{vHR+4*q+1}, v{vHR+4*q+3}")
    a("s_nop 1")
    for q in range(2):
        a(f"buffer_store_dwordx4 {vr(vHR+4*q,4)}, v{vOA}, {sr(sCc,4)}, s{sNT} offen offset:{32*q}")
    dry_end(a)
    stamp_flush(a, 0, sWS, sW8, 20, wpw=8)
```

```python
import sys, math, struct, os
from asmlib import *

NAME = "parallel_sum__mha_block__dense_activation_relu__prompt"
S, D, H, DH, DFF = 2048, 448, 16, 28, 1792
QF_OFF = 0
KF_OFF = 2 << 20
VF_OFF = 4 << 20
HF_OFF = 7 << 20
FL_OFF = 17 << 20
F1_OFF, F2_OFF, F3_OFF = FL_OFF, FL_OFF + 131072, FL_OFF + 131072 + 32768
WS_SIZE = 0x10000000
OOB = 0x40000000
BIAS = 80.0
SPIN_G = 1 << 14
SPIN_L = 1 << 20
def env(k, d): return int(os.environ.get(k, str(d)))
DRY = env("DRY", 0)

def f32bits(x): return struct.unpack("<I", struct.pack("<f", x))[0]
QSCALE = math.log2(math.e) / math.sqrt(DH)

class LgkmTracker:
    def __init__(self, a): self.a = a; self.q = []
    def issue(self, tag): self.q.append(tag)
    def need(self, tag):
        if tag in self.q:
            idx = len(self.q) - 1 - self.q[::-1].index(tag)
            n = min(len(self.q) - 1 - idx, 13)
            self.a(f"s_waitcnt lgkmcnt({n})")
            self.q = self.q[len(self.q) - n:] if n > 0 else []

SLOT = 28672
SL0 = 12288
WB = SL0 + SLOT
ATT0 = 0
GR0 = 90112
CTL = SL0 + 5*SLOT
CSA, CSB_, STA = CTL + 4096, CTL + 4608, CTL + 5120
LP, CP, AP, SP = CTL + 6144, CTL + 6160, CTL + 6176, CTL + 6192
LDS_TOTAL = 163840

pX, pWQ, pWO, pW1, pW2, pOUT, pDBG = 4, 6, 8, 12, 14, 16, 18
sWS, sA, sB, sCc = 20, 24, 28, 32
sXCD, sSL, sW8, sWAVE, sMT32, sCOL, sTMP, sTMP2, sTMP3, sIT = 36, 37, 38, 39, 40, 41, 42, 43, 44, 45
sR = 46
sTAG, sSPIN, sRET = 76, 78, 90
vLANE, vL16, vPW, vPR, vF0 = 1, 2, 9, 10, 0

def dry_end(a):
    if DRY: a("s_cbranch_execz dry_ret")
def dry_call(a, label):
    a(f"s_call_b64 s[{sRET}:{sRET+1}], {label}")
def dry_by_wave(a, plans, name):
    if not (DRY >> (int(name[-1]) - 1)) & 1: return
    a("s_mov_b64 exec, 0")
    for w in range(4):
        if w < 3:
            a(f"s_cmp_lg_u32 s{sWAVE}, {w}")
            a(f"s_cbranch_scc1 {name}_{w+1}")
        for lbl in plans[w]:
            dry_call(a, lbl)
        if w < 3:
            a(f"s_branch {name}_end")
            a.label(f"{name}_{w+1}")
    a.label(f"{name}_end")
    a("s_mov_b64 exec, -1")

def prog_wait(a, vD, base, target, sleep=1):
    lp = a.newlabel("lw"); dn = a.newlabel("lwd")
    a(f"s_mov_b32 s{sSPIN}, {SPIN_L}")
    a.label(lp)
    a(f"""
    ds_read_b32 v{vD}, v{vPR} offset:{base - CTL}
    s_waitcnt lgkmcnt(0)
    v_cmp_gt_u32 vcc, {target}, v{vD}
    s_cbranch_vccz {dn}
    s_sleep {sleep}
    s_sub_u32 s{sSPIN}, s{sSPIN}, 1
    s_cbranch_scc0 {lp}
    """)
    a.label(dn)
def prog_set(a, vD, base, val):
    a(f"v_mov_b32 v{vD}, {val}")
    a(f"ds_write_b32 v{vPW}, v{vD} offset:{base - CTL}")
def get_tag(a, vD):
    lp = a.newlabel("tg"); dn = a.newlabel("tgd")
    a(f"s_mov_b32 s{sSPIN}, {SPIN_G}")
    a.label(lp)
    a(f"""
    buffer_load_dwordx2 {vr(vD,2)}, v{vF0}, {sr(sCc,4)}, 0 offen sc1
    s_waitcnt vmcnt(0)
    v_readfirstlane_b32 s{sTAG}, v{vD}
    v_readfirstlane_b32 s{sTAG+1}, v{vD+1}
    s_cbranch_execz {dn}
    s_cmp_lg_u32 s{sTAG}, 0
    s_cbranch_scc1 {dn}
    s_sub_u32 s{sSPIN}, s{sSPIN}, 1
    s_cbranch_scc0 {lp}
    """)
    a.label(dn)
def poll_flags(a, vFA, vD):
    lp = a.newlabel("pf"); dn = a.newlabel("pfd")
    a(f"s_mov_b32 s{sSPIN}, {SPIN_G}")
    a.label(lp)
    a(f"""
    buffer_load_dwordx2 {vr(vD,2)}, v{vFA}, {sr(sWS,4)}, 0 offen sc1
    s_waitcnt vmcnt(0)
    v_cmp_ne_u64 vcc, {sr(sTAG,2)}, {vr(vD,2)}
    s_cbranch_vccz {dn}
    s_sleep {env('PSLEEP', 3)}
    s_sub_u32 s{sSPIN}, s{sSPIN}, 1
    s_cbranch_scc0 {lp}
    """)
    a.label(dn)
GC = CTL + 6208
def publish_flag(a, vD, vMB, gidx):
    sk = a.newlabel("pub")
    a(f"""
    s_lshl_b32 s{sSPIN}, s{sWAVE}, 2
    v_mov_b32 v{vD+1}, 1
    v_subrev_u32 v{vD}, s{sSPIN}, v{vPW}
    ds_add_rtn_u32 v{vD+1}, v{vD}, v{vD+1} offset:{GC + 4*gidx - CTL}
    v_mov_b32 v{vD}, s{sTAG}
    s_waitcnt lgkmcnt(0)
    v_readfirstlane_b32 s{sSPIN}, v{vD+1}
    v_mov_b32 v{vD+1}, s{sTAG+1}
    s_cmp_lg_u32 s{sSPIN}, 3
    s_cbranch_scc1 {sk}
    buffer_store_dwordx2 {vr(vD,2)}, v{vMB}, {sr(sWS,4)}, 0 offen sc1
    """)
    a.label(sk)
def mb23_addr(a, vMB, sBLK, sSLOT_, base):
    a(f"""
    s_mul_i32 s{sTMP}, s{sBLK}, {14*128}
    s_lshl_b32 s{sTMP2}, s{sSLOT_}, 3
    s_add_u32 s{sTMP}, s{sTMP}, s{sTMP2}
    s_add_u32 s{sTMP}, s{sTMP}, {base}
    v_lshlrev_b32 v{vMB}, 7, v{vLANE}
    v_add_u32 v{vMB}, s{sTMP}, v{vMB}
    v_cmp_lt_u32 vcc, 13, v{vLANE}
    v_mov_b32 v{vMB+1}, {OOB:#x}
    s_nop 0
    v_cndmask_b32 v{vMB}, v{vMB}, v{vMB+1}, vcc
    """)
def set_srd(a, srd, ptr, size):
    a(f"""
    s_mov_b32 s{srd}, s{ptr}
    s_mov_b32 s{srd+1}, s{ptr+1}
    s_mov_b32 s{srd+2}, {size}
    """)

def gen(a):
    KN = NAME + "_kernel"
    a.label(KN)
    a(f"""
    s_cmp_ge_u32 s2, 256
    s_cbranch_scc1 k_end
    """)
    stamp(a, 0)
    a(f"""
    s_load_dwordx4 s[4:7], s[0:1], 0
    s_load_dwordx2 s[8:9], s[0:1], 16
    s_load_dwordx8 s[12:19], s[0:1], 32
    s_load_dwordx2 s[{sWS}:{sWS+1}], s[0:1], 64
    v_lshlrev_b32 v7, 3, v0
    v_add_u32 v7, {CTL + 4096}, v7
    v_mov_b32 v4, 0
    v_mov_b32 v5, 0
    ds_write_b64 v7, v[4:5]
    v_and_b32 v{vLANE}, 63, v0
    v_lshrrev_b32 v7, 6, v0
    v_lshlrev_b32 v{vL16}, 4, v{vLANE}
    v_readfirstlane_b32 s{sW8}, v7
    s_and_b32 s{sXCD}, s2, 7
    s_lshr_b32 s{sSL}, s2, 3
    s_mov_b32 s{sWS+2}, {WS_SIZE:#x}
    s_mov_b32 s{sWS+3}, 0x00020000
    s_mov_b32 s{sA+3}, 0x00020000
    s_mov_b32 s{sB+3}, 0x00020000
    s_mov_b32 s{sCc+3}, 0x00020000
    s_and_b32 s{sWAVE}, s{sW8}, 3
    s_and_b32 s{sMT32}, s{sXCD}, 1
    s_lshl_b32 s{sMT32}, s{sMT32}, 3
    s_and_b32 s{sTMP}, s{sSL}, 7
    s_add_u32 s{sMT32}, s{sMT32}, s{sTMP}
    s_lshl_b32 s{sMT32}, s{sMT32}, 2
    s_add_u32 s{sMT32}, s{sMT32}, s{sWAVE}
    s_lshr_b32 s{sCOL}, s{sXCD}, 1
    s_lshl_b32 s{sCOL}, s{sCOL}, 2
    s_lshr_b32 s{sTMP}, s{sSL}, 3
    s_add_u32 s{sCOL}, s{sCOL}, s{sTMP}
    v_and_b32 v{vPR}, 3, v{vLANE}
    v_lshlrev_b32 v{vPR}, 2, v{vPR}
    v_add_u32 v{vPR}, {CTL}, v{vPR}
    s_lshl_b32 s{sTMP}, s{sWAVE}, 2
    s_add_u32 s{sTMP}, s{sTMP}, {CTL}
    v_min_u32 v{vF0}, 1, v{vLANE}
    v_lshlrev_b32 v{vPW}, 9, v{vF0}
    v_lshl_add_u32 v{vPW}, v{vLANE}, 2, v{vPW}
    v_add_u32 v{vPW}, s{sTMP}, v{vPW}
    v_lshlrev_b32 v{vF0}, 30, v{vF0}
    s_cmp_lt_u32 s{sW8}, 4
    s_cbranch_scc1 k_comp
    """)
    ROLE[0] = "Y"
    gen_loader(a)
    a("s_branch c_passb")
    a.label("k_comp")
    ROLE[0] = "X"
    gen_comp(a)
    gen_gemm2(a)
    a("s_endpgm")
    a.label("x_attn")
    ROLE[0] = "X"
    gen_attn(a)
    a.label("k_end")
    a("s_endpgm")
    if DRY:
        a.label("dry_ret")
        a(f"s_setpc_b64 s[{sRET}:{sRET+1}]")
    return dict(name=KN, grid=256, block=512, lds=LDS_TOTAL, nvgpr=256, accum=256)

def gen_loader(a):
    vXD, vXD2, vWQ, vB1, vT = 7, 8, 3, 13, 14
    vSX, vAX = 20, 22
    vRD = 40
    vXB = 144
    sXOFF, sQOFF, sSLW, sMX, sMQ, sBOFF, sIDX, sSLS, sMB = [sR + i for i in range(9)]
    a(f"""
    v_lshrrev_b32 v{vT}, 3, v{vLANE}
    v_lshrrev_b32 v{vT+1}, 4, v{vLANE}
    v_and_b32 v{vT+2}, 7, v{vLANE}
    v_xor_b32 v{vT+2}, v{vT+2}, v{vT+1}
    v_lshlrev_b32 v{vT+2}, 4, v{vT+2}
    s_movk_i32 s{sTMP}, 896
    v_mad_u32_u24 v{vXD}, v{vT}, s{sTMP}, v{vT+2}
    v_xor_b32 v{vXD2}, 64, v{vXD}
    s_mul_i32 s{sXOFF}, s{sMT32}, {32*896}
    s_lshl_b32 s{sMX}, s{sWAVE}, 12
    s_mul_i32 s{sMQ}, s{sWAVE}, 3072
    s_add_u32 s{sMQ}, s{sMQ}, 16384
    s_mul_i32 s{sQOFF}, s{sWAVE}, {16*2688}
    s_mul_i32 s{sTMP}, s{sCOL}, 168
    s_and_b32 s{sTMP}, s{sTMP}, -16
    s_add_u32 s{sQOFF}, s{sQOFF}, s{sTMP}
    s_movk_i32 s{sTMP}, 5462
    s_movk_i32 s{sTMP2}, 2688
    """)
    for i in range(3):
        a(f"""
        v_add_u32 v{vT}, {64*i}, v{vLANE}
        v_mul_u32_u24 v{vT+2}, s{sTMP}, v{vT}
        v_lshrrev_b32 v{vT+2}, 16, v{vT+2}
        v_mul_u32_u24 v{vT+3}, 12, v{vT+2}
        v_sub_u32 v{vT}, v{vT}, v{vT+3}
        v_lshlrev_b32 v{vT}, 4, v{vT}
        v_mad_u32_u24 v{vWQ+i}, v{vT+2}, s{sTMP2}, v{vT}
        """)
    a(f"""
    v_mov_b32 v{vB1}, 0
    s_mov_b32 s{sSLW}, {SL0 + 4*SLOT}
    s_mov_b32 s{sSLS}, {SL0 + 4*SLOT}
    s_mov_b32 s{sIT}, 0
    s_waitcnt lgkmcnt(0)
    s_barrier
    """)
    set_srd(a, sA, pX, S*D*2)
    set_srd(a, sB, pWQ, D*3*D*2)
    set_srd(a, sCc, pW1, D*DFF*2)
    stamp(a, 1)
    LDD = env("LDD", 1)
    a.label("ld_loop")
    a(f"""
    s_cmp_lt_u32 s{sIT}, 5
    s_cbranch_scc1 ld_isa
    s_sub_u32 s{sTMP3}, s{sIT}, 4
    """)
    BT = env("BTHROT", 10)
    if BT < 11:
        a(f"s_cmp_eq_u32 s{sIT}, {BT}")
        a(f"s_cselect_b32 s{sTMP3}, 9, s{sTMP3}")
    a(f"""
    s_waitcnt lgkmcnt(5)
    s_cmp_lt_u32 s{sIT}, {8 + LDD}
    s_cbranch_scc1 ld_chk
    s_waitcnt lgkmcnt(1)
    """)
    a.label("ld_chk")
    a(f"""
    v_cmp_gt_u32 vcc, s{sTMP3}, v{vT+4}
    s_cbranch_vccz ld_free
    """)
    prog_wait(a, vT+1, CP, f"s{sTMP3}")
    a.label("ld_free")
    a(f"""
    s_cmp_ge_u32 s{sIT}, 7
    s_cbranch_scc1 ld_isb
    """)
    a.label("ld_isa")
    a(f"s_add_u32 m0, s{sSLW}, s{sMX}")
    for i in range(4):
        a(f"s_add_u32 s{sTMP}, s{sXOFF}, {8*896*i}")
        a(f"buffer_load_dwordx4 v{vXD if i % 2 == 0 else vXD2}, {sr(sA,4)}, s{sTMP} offen lds")
        if i < 3: a("s_add_u32 m0, m0, 1024")
    a(f"s_add_u32 m0, s{sSLW}, s{sMQ}")
    a(f"s_add_u32 s{sXOFF}, s{sXOFF}, 128")
    for i in range(3):
        a(f"buffer_load_dwordx4 v{vWQ+i}, {sr(sB,4)}, s{sQOFF} offen lds")
        if i < 2:
            a("s_add_u32 m0, m0, 1024")
            a("s_nop 0")
    a(f"""
    s_add_u32 s{sQOFF}, s{sQOFF}, {64*2688}
    s_cmp_lg_u32 s{sIT}, 1
    s_cbranch_scc1 ld_post
    """)
    a(f"""
    v_lshrrev_b32 v{vT+1}, 4, v{vLANE}
    v_lshlrev_b32 v{vT+3}, 2, v{vT+1}
    v_and_b32 v{vT+2}, 15, v{vLANE}
    v_xor_b32 v{vT+2}, v{vT+2}, v{vT+3}
    v_lshlrev_b32 v{vT+3}, 4, v{vT+2}
    s_movk_i32 s{sTMP}, 3584
    v_mad_u32_u24 v{vB1}, v{vT+1}, s{sTMP}, v{vT+3}
    s_lshr_b32 s{sTMP}, s{sCOL}, 1
    s_mul_i32 s{sBOFF}, s{sTMP}, 448
    s_and_b32 s{sTMP}, s{sCOL}, 1
    s_mul_i32 s{sTMP}, s{sTMP}, 192
    s_add_u32 s{sBOFF}, s{sBOFF}, s{sTMP}
    s_mul_i32 s{sTMP}, s{sWAVE}, {28*3584}
    s_add_u32 s{sBOFF}, s{sBOFF}, s{sTMP}
    s_mul_i32 s{sMB}, s{sWAVE}, 7168
    v_and_b32 v{vT}, 31, v{vLANE}
    v_lshrrev_b32 v{vT+1}, 5, v{vLANE}
    v_bfe_u32 v{vT+2}, v{vLANE}, 1, 3
    v_xor_b32 v{vT+1}, v{vT+1}, v{vT+2}
    v_lshlrev_b32 v{vT+1}, 4, v{vT+1}
    v_lshl_add_u32 v{vSX}, v{vT}, 7, v{vT+1}
    v_add_u32 v{vSX}, s{sMX}, v{vSX}
    v_mov_b32 v{vT}, 0
    """)
    a("s_branch ld_post")
    a.label("ld_isb")
    a(f"""
    s_add_u32 m0, s{sSLW}, s{sMB}
    s_mov_b32 s{sTMP}, s{sBOFF}
    """)
    for i in range(7):
        a(f"buffer_load_dwordx4 v{vB1}, {sr(sCc,4)}, s{sTMP} offen lds")
        if i < 6:
            a("s_add_u32 m0, m0, 1024")
            a(f"s_add_u32 s{sTMP}, s{sTMP}, {4*3584}")
    a(f"s_add_u32 s{sBOFF}, s{sBOFF}, {112*3584}")
    a.label("ld_post")
    a(f"""
    s_add_u32 s{sSLW}, s{sSLW}, {SLOT}
    s_cmp_ge_u32 s{sSLW}, {CTL}
    s_cselect_b32 s{sSLW}, {SL0}, s{sSLW}
    s_cmp_lt_u32 s{sIT}, {LDD}
    s_cbranch_scc1 ld_next
    ds_read_b32 v{vT+4}, v{vPR} offset:{CP - CTL}
    s_sub_u32 s{sTMP}, s{sIT}, {LDD}
    s_add_u32 s{sTMP2}, s{sTMP}, 1
    v_mov_b32 v{vT}, s{sTMP2}
    v_add_u32 v{vAX}, s{sSLS}, v{vSX}
    v_xor_b32 v{vAX+1}, 32, v{vAX}
    v_xor_b32 v{vAX+2}, 64, v{vAX}
    v_xor_b32 v{vAX+3}, 96, v{vAX}
    s_add_u32 s{sSLS}, s{sSLS}, {SLOT}
    s_cmp_ge_u32 s{sSLS}, {CTL}
    s_cselect_b32 s{sSLS}, {SL0}, s{sSLS}
    """)
    for c in range(7):
        a(f"s_cmp_lg_u32 s{sTMP}, {c}")
        a(f"s_cbranch_scc1 ld_sv{c+1}")
        a(f"s_waitcnt vmcnt({7*LDD})")
        for i in range(4):
            a(f"ds_read_b128 {vr(vXB+16*c+4*i,4)}, v{vAX+i}")
        a("s_branch ld_sig")
        a.label(f"ld_sv{c+1}")
    a(f"s_waitcnt vmcnt({7*LDD})")
    a.label("ld_sig")
    a(f"ds_write_b32 v{vPW}, v{vT} offset:{LP - CTL}")
    a.label("ld_next")
    if env("STL", 0) & 1: stamp_dyn(a, 20, sIT)
    a(f"""
    s_add_u32 s{sIT}, s{sIT}, 1
    s_cmp_lt_u32 s{sIT}, 11
    s_cbranch_scc1 ld_loop
    """)
    stamp(a, 4)
    for k in range(LDD - 1, 0, -1):
        a(f"s_waitcnt vmcnt({7*k})")
        prog_set(a, vT, LP, 11 - k)

def gen_comp(a):
    vHH, vHHI, vMASK, vCONST, vXR, vXRC = 3, 4, 5, 6, 7, 8
    vNM, vRSTD, vA = 12, 13, 14
    vPG = 15
    vTB = 17
    vTG = 18
    vTN = 20
    vCP = 33
    vTC = 21
    vS0 = 25
    vCSR, vT1, vSEL = 35, 16, 28
    vZ = 36
    vFR = [40, 60]
    vACC = 80
    vXB = 144
    sDST, sSCL, sCSO = sR, sR+4, sR+8
    sRELU, sPASS, sSLOT, sONE, sIDX = sR+12, sR+13, sR+14, sR+15, sR+16
    if env("CPF", 0):
        a(f"""
        s_cmp_ge_u32 s{sSL}, {env("CPF", 0)}
        s_cbranch_scc1 cpf_skip
        s_getpc_b64 s[72:73]
        """)
        a.label("cpf_base")
        a(f"""
        s_sub_u32 s72, s72, cpf_base-{NAME}_kernel
        s_subb_u32 s73, s73, 0
        v_lshlrev_b32 v3, 7, v{vLANE}
        s_lshl_b32 s{sTMP}, s{sWAVE}, 13
        v_add_u32 v3, s{sTMP}, v3
        v_min_u32 v3, k_end-{NAME}_kernel, v3
        global_load_dword v79, v3, s[72:73]
        """)
        a.label("cpf_skip")
    a("""
    s_waitcnt lgkmcnt(0)
    s_barrier
    """)
    set_srd(a, sCc, pDBG, 256)
    set_srd(a, sA, pX, S*D*2)
    set_srd(a, sB, pW2, DFF*D*2)
    stamp(a, 1)
    a(f"""
    s_or_b32 s{sTMP}, s2, s{sWAVE}
    s_cmp_lg_u32 s{sTMP}, 0
    s_cbranch_scc1 c_notag
    s_memrealtime s[{sTAG}:{sTAG+1}]
    s_waitcnt lgkmcnt(0)
    s_or_b32 s{sTAG}, s{sTAG}, 1
    v_mov_b32 v{vTG}, s{sTAG}
    v_mov_b32 v{vTG+1}, s{sTAG+1}
    buffer_store_dwordx2 {vr(vTG,2)}, v{vF0}, {sr(sCc,4)}, 0 offen sc1
    """)
    a.label("c_notag")
    a(f"v_mov_b32 v{vTB}, {OOB:#x}")
    dry_by_wave(a, [["c_epi"], ["c_epi2", "c_posta"], ["c_loopa", "c_epi_end"], ["c_passb"]], "dw1")
    stamp(a, 2)
    a(f"""
    v_lshrrev_b32 v{vHH}, 5, v{vLANE}
    v_bfe_u32 v{vS0+1}, v{vLANE}, 2, 2
    v_bfe_u32 v{vS0+2}, v{vLANE}, 4, 1
    v_and_b32 v{vS0+3}, 3, v{vLANE}
    v_lshlrev_b32 v{vS0+2}, 5, v{vS0+2}
    v_lshl_add_u32 v{vS0+2}, v{vS0+3}, 3, v{vS0+2}
    v_lshl_add_u32 v{vS0+4}, v{vHH}, 3, v{vS0+1}
    s_movk_i32 s{sTMP}, 192
    v_mad_u32_u24 v{vTB}, v{vS0+4}, s{sTMP}, v{vS0+2}
    s_and_b32 s{sTMP}, s{sCOL}, 1
    s_lshl_b32 s{sTMP}, s{sTMP}, 3
    s_add_u32 s{sTMP}, s{sTMP}, 16384
    v_add_u32 v{vTB}, s{sTMP}, v{vTB}
    v_mov_b32 v{vZ}, 0
    v_mov_b32 v{vZ+1}, 0
    v_mov_b32 v{vZ+2}, 0
    v_mov_b32 v{vZ+3}, 0
    v_and_b32 v{vS0+5}, 31, v{vLANE}
    v_bfe_u32 v{vS0+6}, v{vLANE}, 1, 3
    v_xor_b32 v{vS0+6}, v{vS0+6}, v{vHH}
    v_lshlrev_b32 v{vS0+6}, 4, v{vS0+6}
    v_mfma_f32_32x32x16_bf16 {vr(vACC,16)}, {vr(vZ,4)}, {vr(vZ,4)}, 0
    v_lshl_add_u32 v{vXR}, v{vS0+5}, 7, v{vS0+6}
    s_lshl_b32 s{sTMP}, s{sWAVE}, 12
    v_add_u32 v{vXR}, s{sTMP}, v{vXR}
    v_lshlrev_b32 v{vCSR}, 4, v{vHH}
    v_add_u32 v{vCSR}, {CSA}, v{vCSR}
    v_lshlrev_b32 v{vT1}, 8, v{vS0+4}
    v_mfma_f32_32x32x16_bf16 {vr(vACC+16,16)}, {vr(vZ,4)}, {vr(vZ,4)}, 0
    v_add_u32 v{vT1}, v{vT1}, v{vS0+2}
    v_lshlrev_b32 v{vS0+7}, 6, v{vS0+1}
    v_or_b32 v{vT1}, v{vT1}, v{vS0+7}
    v_mfma_f32_32x32x16_bf16 {vr(vACC+32,16)}, {vr(vZ,4)}, {vr(vZ,4)}, 0
    v_sub_u32 v{vHHI}, v{vHH}, 1
    v_sub_u32 v{vHH}, 0, v{vHH}
    v_mov_b32 v{vMASK}, v{vHHI}
    v_and_b32 v{vCONST}, 0x3f80, v{vHH}
    s_mov_b32 s{sRELU}, 0x80008000
    s_mov_b32 s{sONE}, 0x3f803f80
    s_mov_b32 s{sIT}, 1
    s_mov_b32 s{sSLOT}, {SL0 + 4*SLOT}
    s_mov_b32 s{sIDX}, 0
    s_mul_i32 s{sTMP2}, s{sCOL}, 3
    s_cmp_eq_u32 s{sWAVE}, 3
    s_cselect_b32 s{sTMP3}, 0, s{sWAVE}
    v_mov_b32 v{vS0}, v{vTB}
    """)
    for j in range(3):
        a(f"""
        s_add_u32 s{sTMP}, s{sTMP2}, s{sTMP3}
        s_cmp_lt_u32 s{sTMP}, 16
        s_cselect_b32 s{sSCL+j}, {f32bits(QSCALE):#x}, 1.0
        s_cselect_b32 s{sIDX}, 11, 12
        s_cselect_b32 s{sSPIN}, 0, {KF_OFF}
        s_cmp_ge_u32 s{sTMP}, 32
        s_cselect_b32 s{sSPIN}, {KF_OFF + 2048}, s{sSPIN}
        s_and_b32 s{sTMP}, s{sTMP}, 15
        s_lshl_b32 s{sTMP}, s{sTMP}, 6
        s_add_u32 s{sTMP}, s{sTMP}, s{sMT32}
        s_lshl_b32 s{sTMP}, s{sTMP}, s{sIDX}
        s_add_u32 s{sDST+j}, s{sTMP}, s{sSPIN}
        s_lshl_b32 s{sCSO+j}, s{sTMP3}, 7
        s_mul_i32 s{sTMP}, s{sTMP3}, 56
        v_add_u32 v{vTB+j}, s{sTMP}, v{vS0}
        s_add_u32 s{sTMP3}, s{sTMP3}, 1
        s_cmp_eq_u32 s{sTMP3}, 3
        s_cselect_b32 s{sTMP3}, 0, s{sTMP3}
        v_add_u32 v{vTC+j}, s{sSLOT}, v{vTB+j}
        """)
    a(f"""
    s_mov_b32 s{sCSO+3}, 0
    s_mov_b32 s{sPASS}, 1
    v_add_u32 v{vXRC}, s{sSLOT}, v{vXR}
    v_mov_b32 v{vCP}, 0
    v_mov_b32 v{vCP+1}, 0
    v_and_b32 v{vS0}, 0x13, v{vLANE}
    v_cmp_ne_u32 vcc, 0x13, v{vS0}
    v_and_b32 v{vS0+1}, 7, v{vLANE}
    v_mul_u32_u24 v{vS0+1}, {4*192}, v{vS0+1}
    v_cndmask_b32 v{vSEL}, 0, 1, vcc
    v_lshrrev_b32 v{vS0+2}, 1, v{vLANE}
    v_and_b32 v{vS0+2}, 3, v{vS0+2}
    v_mul_u32_u24 v{vS0+2}, {8*192}, v{vS0+2}
    v_add_u32 v{vS0+1}, v{vS0+1}, v{vS0+2}
    v_mov_b32 v{vS0+5}, s{sONE}
    v_mov_b32 v{vS0+6}, s{sONE}
    ds_write_b64 v{vS0+1}, {vr(vS0+5,2)}
    v_mul_u32_u24 v{vTB+1}, v{vSEL}, v{vTB+1}
    v_mad_u32_u24 v{vTC+1}, v{vSEL}, s{sSLOT}, v{vTB+1}
    """)
    for i in range(4, 8):
        a(f"v_mov_b32 v{vS0+i}, 0")
    prog_wait(a, vPG, LP, env("AWAIT", 1))
    a(f"s_setprio {env('XPRIO', 3)}")
    stamp(a, 3)
    vCB = [128, 192]
    def reads(st):
        ops = []
        for q in range(4):
            f = vCB[st] + 16*q
            if q == 0:
                ops.append(f"ds_read_b128 {vr(f+12,4)}, v{vXRC}")
            else:
                ops.append(f"v_xor_b32 v{vTN}, {32*q}, v{vXRC}\nds_read_b128 {vr(f+12,4)}, v{vTN}")
            for j in range(3):
                for p in range(2):
                    ops.append(f"ds_read_b64_tr_b16 {vr(f+4*j+2*p,2)}, v{vTC+j} offset:{(16*q+4*p)*192}")
        return ops
    r0 = reads(0)
    for i, op in enumerate(r0):
        a(op)
        if i == 13: a("s_waitcnt lgkmcnt(0)")
    a.raw(".p2align 6")
    a.label("c_loopa")
    def half(st):
        a("s_waitcnt lgkmcnt(0)")
        if env("STL", 0) & 2: stamp_dyn(a, 22, sIT)
        a(f"""
        v_mov_b32 v{vTC+3}, s{sIT}
        s_add_u32 s{sSLOT}, s{sSLOT}, {SLOT}
        ds_write_b32 v{vPW}, v{vTC+3} offset:{CP - CTL}
        s_cmp_ge_u32 s{sSLOT}, {CTL}
        s_cselect_b32 s{sSLOT}, {SL0}, s{sSLOT}
        v_add_u32 v{vXRC}, s{sSLOT}, v{vXR}
        v_add_u32 v{vTC}, s{sSLOT}, v{vTB}
        v_mad_u32_u24 v{vTC+1}, v{vSEL}, s{sSLOT}, v{vTB+1}
        v_add_u32 v{vTC+2}, s{sSLOT}, v{vTB+2}
        ds_read_b32 v{vPG}, v{vPR} offset:{LP - CTL}
        """)
        for q in range(4):
            f = vCB[st] + 16*q
            for i in range(4):
                a(f"v_dot2c_f32_bf16 v{vCP+(i&1)}, s{sONE}, v{f+i}")
                a(f"v_dot2c_f32_bf16 v{vS0+4+i}, v{f+12+i}, v{f+12+i}")
        f0 = vCB[st]
        a(f"v_mfma_f32_32x32x16_bf16 {vr(vACC,16)}, {vr(f0,4)}, {vr(f0+12,4)}, {vr(vACC,16)}")
        a(f"""
        s_waitcnt lgkmcnt(0)
        v_cmp_ge_u32 vcc, s{sIT}, v{vPG}
        s_cbranch_vccnz c_la_slow{st}
        """)
        a.label(f"c_la_back{st}")
        nx = reads(1 - st)
        for _ in range(2): a(nx.pop(0))
        k = 0
        for q in range(4):
            f = vCB[st] + 16*q
            for j in range(3):
                if q == 0 and j == 0: continue
                a(f"v_mfma_f32_32x32x16_bf16 {vr(vACC+16*j,16)}, {vr(f+4*j,4)}, {vr(f+12,4)}, {vr(vACC+16*j,16)}")
                if k == 4 or k == 7: a("s_waitcnt lgkmcnt(5)")
                for _ in range(3):
                    if nx: a(nx.pop(0))
                k += 1
        assert not nx
        a(f"s_add_u32 s{sIT}, s{sIT}, 1")
    half(0)
    if DRY: a("s_cbranch_execz c_loopa2")
    a(f"""
    s_cmp_eq_u32 s{sIT}, 8
    s_cbranch_scc1 c_posta
    """)
    a.label("c_loopa2")
    half(1)
    dry_end(a)
    a("s_branch c_loopa")
    a.label("c_posta")
    stamp(a, 4)
    a(f"buffer_load_dwordx2 {vr(vTG,2)}, v{vF0}, {sr(sCc,4)}, 0 offen sc1")
    a(f"""
    v_add_f32 v{vCP}, v{vCP}, v{vCP+1}
    v_add_f32 v{vS0+4}, v{vS0+4}, v{vS0+5}
    v_add_f32 v{vS0+6}, v{vS0+6}, v{vS0+7}
    v_mov_b32 v{vCP+1}, v{vCP}
    v_and_b32 v{vS0+2}, 31, v{vLANE}
    v_lshlrev_b32 v{vS0+2}, 2, v{vS0+2}
    v_permlane32_swap_b32 v{vCP}, v{vCP+1}
    v_add_f32 v{vS0+4}, v{vS0+4}, v{vS0+6}
    v_add_u32 v{vS0+2}, s{sCSO}, v{vS0+2}
    v_add_f32 v{vCP}, v{vCP}, v{vCP+1}
    v_add_u32 v{vS0+2}, {CSA}, v{vS0+2}
    v_mov_b32 v{vS0+5}, v{vS0+4}
    ds_write_b32 v{vS0+2}, v{vCP}
    v_mov_b32 v{vS0+6}, 8
    ds_write_b32 v{vPW}, v{vS0+6} offset:{CP - CTL}
    v_mov_b32 v{vS0}, v{vACC+16+12}
    v_mov_b32 v{vS0+1}, v{vACC+16+12}
    v_permlane32_swap_b32 v{vS0+4}, v{vS0+5}
    s_nop 0
    v_permlane32_swap_b32 v{vS0}, v{vS0+1}
    v_add_f32 v{vS0+4}, v{vS0+4}, v{vS0+5}
    v_mul_f32 v{vS0+4}, {f32bits(1.0/D):#x}, v{vS0+4}
    v_mul_f32 v{vNM}, {f32bits(-1.0/D):#x}, v{vS0+1}
    v_fma_f32 v{vS0+4}, -v{vNM}, v{vNM}, v{vS0+4}
    v_max_f32 v{vS0+4}, 0, v{vS0+4}
    v_add_f32 v{vS0+4}, {f32bits(1e-5):#x}, v{vS0+4}
    v_rsq_f32 v{vRSTD}, v{vS0+4}
    s_lshl_b32 s{sTMP}, s{sWAVE}, 8
    s_add_u32 s{sTMP}, s{sTMP}, {STA}
    v_and_b32 v{vS0+2}, 31, v{vLANE}
    v_lshlrev_b32 v{vS0+2}, 3, v{vS0+2}
    v_add_u32 v{vS0+2}, s{sTMP}, v{vS0+2}
    ds_write_b64 v{vS0+2}, {vr(vNM,2)}
    """)
    prog_wait(a, vPG, CP, 8, sleep=0)
    dry_end(a)
    a.label("c_epi")
    vCS2 = [vFR[0], vFR[0] + 16]
    def cs_read(j):
        a(f"v_add_u32 v{vXRC}, s{sCSO+j}, v{vCSR}")
        for g in range(4):
            a(f"ds_read_b128 {vr(vCS2[j%2]+4*g,4)}, v{vXRC} offset:{32*g}")
    cs_read(0)
    for j in range(4):
        acc = vACC + 16*j
        cs = vCS2[j % 2]
        if j == 2:
            dry_end(a)
            a.label("c_epi2")
        if j < 3:
            cs_read(j + 1)
            a("s_waitcnt lgkmcnt(4)")
        else:
            a("s_waitcnt lgkmcnt(0)")
        if env("STL", 0) & 4 and j < 3: stamp(a, 10 + j)
        a(f"v_mul_f32 v{vA}, s{sSCL+j}, v{vRSTD}")
        for i in range(16):
            a(f"v_fmac_f32 v{acc+i}, v{cs+i}, v{vNM}")
        for i in range(16):
            a(f"v_mul_f32 v{acc+i}, v{vA}, v{acc+i}")
        for i in range(8):
            a(f"v_cvt_pk_bf16_f32 v{acc+i}, v{acc+2*i}, v{acc+2*i+1}")
        for i in range(8):
            a(f"v_pk_max_i16 v{acc+i}, v{acc+i}, s{sRELU}")
            if i == 5:
                a(f"buffer_store_dwordx4 {vr(acc,4)}, v{vL16}, {sr(sWS,4)}, s{sDST+j} offen sc1")
        a(f"v_and_or_b32 v{acc+6}, v{acc+6}, v{vMASK}, v{vCONST}")
        a(f"v_and_b32 v{acc+7}, v{acc+7}, v{vMASK}")
        a(f"buffer_store_dwordx4 {vr(acc+4,4)}, v{vL16}, {sr(sWS,4)}, s{sDST+j} offen offset:1024 sc1")
        if j == 2:
            if DRY: a("s_cbranch_execz c_epi3")
            a(f"s_cmp_eq_u32 s{sPASS}, 1")
            a("s_cbranch_scc1 c_epi_end")
            a.label("c_epi3")
    a("s_nop 1")
    for j in range(4):
        a(f"v_mfma_f32_32x32x16_bf16 {vr(vACC+16*j,16)}, {vr(vZ,4)}, {vr(vZ,4)}, 0")
    dry_end(a)
    a("s_branch c_done")
    a.label("c_epi_end")
    prog_set(a, vS0, CP, 9)
    stamp(a, 5)
    a(f"""
    s_mul_i32 s{sTMP}, s{sCOL}, 3
    s_lshr_b32 s{sTMP2}, s{sMT32}, 2
    v_lshrrev_b32 v{vS0+1}, 4, v{vLANE}
    v_add_u32 v{vS0+1}, s{sTMP}, v{vS0+1}
    v_and_b32 v{vS0+2}, 15, v{vS0+1}
    v_lshrrev_b32 v{vS0+1}, 4, v{vS0+1}
    v_and_b32 v{vS0+3}, 15, v{vLANE}
    v_lshl_add_u32 v{vS0+2}, v{vS0+2}, 4, v{vS0+3}
    v_lshlrev_b32 v{vS0+2}, 9, v{vS0+2}
    v_lshlrev_b32 v{vTB}, 4, v{vS0+1}
    v_add_u32 v{vTB}, s{sTMP2}, v{vTB}
    v_lshl_add_u32 v{vTB}, v{vTB}, 3, v{vS0+2}
    v_add_u32 v{vTB}, {F1_OFF}, v{vTB}
    v_cmp_eq_u32 vcc, 0, v{vS0+1}
    v_cmp_ne_u32 s[72:73], s{sTMP2}, v{vS0+3}
    s_and_b64 vcc, vcc, s[72:73]
    v_cmp_lt_u32 s[72:73], 47, v{vLANE}
    s_or_b64 vcc, vcc, s[72:73]
    v_mov_b32 v{vS0+1}, {OOB:#x}
    s_nop 0
    v_cndmask_b32 v{vTB}, v{vTB}, v{vS0+1}, vcc
    """)
    a("s_branch x_attn")
    ROLE[0] = "Y"
    a.label("c_passb")
    a(f"s_setprio {env('CPRIO', 2)}")
    set_srd(a, sCc, pDBG, 256)
    a(f"""
    s_waitcnt lgkmcnt(0)
    buffer_load_dwordx2 {vr(vTG,2)}, v{vF0}, {sr(sCc,4)}, 0 offen sc1
    v_lshrrev_b32 v{vHH}, 5, v{vLANE}
    v_bfe_u32 v{vS0+1}, v{vLANE}, 2, 2
    v_bfe_u32 v{vS0+2}, v{vLANE}, 4, 1
    v_and_b32 v{vS0+3}, 3, v{vLANE}
    v_lshlrev_b32 v{vS0+2}, 5, v{vS0+2}
    v_lshl_add_u32 v{vS0+2}, v{vS0+3}, 3, v{vS0+2}
    v_lshl_add_u32 v{vS0+4}, v{vHH}, 3, v{vS0+1}
    v_mov_b32 v{vZ}, 0
    v_mov_b32 v{vZ+1}, 0
    v_mov_b32 v{vZ+2}, 0
    v_mov_b32 v{vZ+3}, 0
    v_lshlrev_b32 v{vCSR}, 4, v{vHH}
    v_add_u32 v{vCSR}, {CSA}, v{vCSR}
    v_lshlrev_b32 v{vT1}, 8, v{vS0+4}
    v_add_u32 v{vT1}, v{vT1}, v{vS0+2}
    v_lshlrev_b32 v{vS0+7}, 6, v{vS0+1}
    v_or_b32 v{vT1}, v{vT1}, v{vS0+7}
    s_lshl_b32 s{sTMP}, s{sWAVE}, 6
    v_xor_b32 v{vT1}, s{sTMP}, v{vT1}
    s_mov_b32 s{sONE}, 0x3f803f80
    """)
    for b in range(4):
        a(f"v_mfma_f32_32x32x16_bf16 {vr(vACC+16*b,16)}, {vr(vZ,4)}, {vr(vZ,4)}, 0")
        a(f"v_mov_b32 v{vS0+4+b}, 0")
        a(f"v_xor_b32 v{vTC+b}, {b << 6}, v{vT1}")
        a(f"v_add_u32 v{vTC+b}, {WB}, v{vTC+b}")
    prog_wait(a, vPG, LP, 10)
    stamp(a, 7)
    def rdB(step, b):
        f = vFR[step % 2]
        for p in range(2):
            a(f"ds_read_b64_tr_b16 {vr(f+4*b+2*p,2)}, v{vTC+b} offset:{4096*step + 1024*p}")
    def fetchx(step, i0):
        f = vFR[step % 2]
        a(f"s_set_gpr_idx_on s{sIDX}, gpr_idx(SRC0)")
        for i in range(i0, i0 + 2):
            a(f"v_mov_b32 v{f+16+i}, v{vXB+4*(step%4)+i}")
        a("s_set_gpr_idx_off")
    a(f"""
    s_mov_b32 s{sIT}, 0
    s_mov_b32 s{sIDX}, 0
    """)
    for b in range(4): rdB(0, b)
    a("s_waitcnt lgkmcnt(4)")
    for b in range(4): rdB(1, b)
    fetchx(0, 0); fetchx(0, 2)
    a.raw(".p2align 6")
    a.label("c_loopb")
    a(f"""
    s_bitcmp1_b32 {(1<<2)|(1<<4):#x}, s{sIT}
    s_cbranch_scc1 c_lb_rare
    """)
    a.label("c_lb_go")
    for k in range(4):
        f = vFR[k % 2]
        for b in range(4):
            if b % 2 == 0:
                a("s_waitcnt lgkmcnt(11)")
            if b == 0:
                for i in range(4):
                    a(f"v_dot2c_f32_bf16 v{vS0+4+i}, s{sONE}, v{f+i}")
            a(f"v_mfma_f32_32x32x16_bf16 {vr(vACC+16*b,16)}, {vr(f+4*b,4)}, {vr(f+16,4)}, {vr(vACC+16*b,16)}")
            rdB(k + 2, b)
            if k == 2 and b == 3:
                a(f"s_add_u32 s{sIDX}, s{sIDX}, 16")
                a(f"s_min_u32 s{sIDX}, s{sIDX}, 96")
            if b == 0: fetchx(k + 1, 0)
            if b == 2: fetchx(k + 1, 2)
            if k == 3:
                a(f"v_add_u32 v{vTC+b}, 16384, v{vTC+b}")
    dry_end(a)
    a(f"""
    s_add_u32 s{sIT}, s{sIT}, 1
    s_cmp_lt_u32 s{sIT}, 7
    s_cbranch_scc1 c_loopb
    s_waitcnt lgkmcnt(0)
    """)
    stamp(a, 6)
    a(f"""
    v_add_f32 v{vS0+4}, v{vS0+4}, v{vS0+5}
    v_add_f32 v{vS0+6}, v{vS0+6}, v{vS0+7}
    v_and_b32 v{vS0+2}, 31, v{vLANE}
    v_add_f32 v{vS0+4}, v{vS0+4}, v{vS0+6}
    v_lshlrev_b32 v{vS0+2}, 2, v{vS0+2}
    v_mov_b32 v{vS0+5}, v{vS0+4}
    s_lshl_b32 s{sTMP}, s{sWAVE}, 7
    s_add_u32 s{sTMP}, s{sTMP}, {CSB_}
    v_permlane32_swap_b32 v{vS0+4}, v{vS0+5}
    v_add_u32 v{vS0+2}, s{sTMP}, v{vS0+2}
    s_nop 0
    v_add_f32 v{vS0+4}, v{vS0+4}, v{vS0+5}
    ds_write_b32 v{vS0+2}, v{vS0+4}
    """)
    prog_set(a, vS0, SP, 2)
    a(f"""
    s_lshr_b32 s{sTMP}, s{sCOL}, 1
    s_mul_i32 s{sTMP}, s{sTMP}, 7
    s_and_b32 s{sTMP2}, s{sCOL}, 1
    s_mul_i32 s{sTMP2}, s{sTMP2}, 3
    s_add_u32 s{sTMP}, s{sTMP}, s{sTMP2}
    s_mul_i32 s{sTMP2}, s{sMT32}, 72
    s_add_u32 s{sTMP}, s{sTMP}, s{sTMP2}
    s_lshl_b32 s{sTMP}, s{sTMP}, 11
    s_add_u32 s{sTMP}, s{sTMP}, {HF_OFF}
    s_mov_b32 s{sRELU}, 0
    v_mov_b32 v{vMASK}, -1
    v_mov_b32 v{vCONST}, 0
    s_mov_b32 s{sPASS}, 2
    """)
    for j in range(4):
        a(f"""
        s_mov_b32 s{sSCL+j}, 1.0
        s_xor_b32 s{sTMP2}, s{sWAVE}, {j}
        s_lshl_b32 s{sTMP3}, s{sTMP2}, 7
        s_add_u32 s{sCSO+j}, s{sTMP3}, 512
        s_lshl_b32 s{sTMP2}, s{sTMP2}, 11
        s_add_u32 s{sDST+j}, s{sTMP}, s{sTMP2}
        """)
    a(f"""
    v_readfirstlane_b32 s{sTAG}, v{vTG}
    v_readfirstlane_b32 s{sTAG+1}, v{vTG+1}
    s_cmp_lg_u32 s{sTAG}, 0
    s_cbranch_scc1 c_lb_tag2
    """)
    get_tag(a, vS0+1)
    a.label("c_lb_tag2")
    prog_wait(a, vPG, CP, 9)
    a(f"""
    s_lshl_b32 s{sTMP}, s{sWAVE}, 8
    s_add_u32 s{sTMP}, s{sTMP}, {STA}
    v_and_b32 v{vS0+2}, 31, v{vLANE}
    v_lshlrev_b32 v{vS0+2}, 3, v{vS0+2}
    v_add_u32 v{vS0+2}, s{sTMP}, v{vS0+2}
    ds_read_b64 {vr(vNM,2)}, v{vS0+2}
    """)
    prog_wait(a, vPG, SP, 2, sleep=0)
    stamp(a, 11)
    a("s_branch c_epi")
    for st in range(2):
        a.label(f"c_la_slow{st}")
        a(f"""
        s_cmp_eq_u32 s{sIT}, 7
        s_cbranch_scc1 c_la_back{st}
        s_add_u32 s{sTMP3}, s{sIT}, 1
        """)
        prog_wait(a, vPG, LP, f"s{sTMP3}", sleep=env("ASLEEP", 1))
        a(f"s_branch c_la_back{st}")
    a.label("c_lb_rare")
    a(f"""
    s_cmp_lg_u32 s{sIT}, 2
    s_cbranch_scc1 c_lb_r1
    """)
    prog_set(a, vS0, SP, 1)
    a("s_waitcnt vmcnt(0)")
    prog_set(a, vS0+1, LP, 11)
    a("s_waitcnt lgkmcnt(0)")
    a("s_branch c_lb_go")
    a.label("c_lb_r1")
    prog_wait(a, vPG, LP, 11)
    stamp(a, 10)
    a("s_branch c_lb_go")
    a.label("c_done")
    stamp(a, 12)

from mk2 import gen_attn, gen_gemm2

def build():
    hdr = open("cdna_kernels/" + NAME + ".s.ref").read().split("\n")
    out = [l for l in hdr if l.startswith(";") and "@launch" not in l]
    body = Asm()
    body.raw(".p2align 8")
    d = gen(body)
    out.append(f"; @launch grid=({d['grid']},1,1) block=({d['block']},1,1) lds={d['lds']}")
    out.append('.amdgcn_target "amdgcn-amd-amdhsa--gfx950"')
    out.append(".text")
    out.append(f".globl {d['name']}")
    out.append(f".type {d['name']},@function")
    txt = "\n".join(out) + "\n" + body.text()
    txt += '.section .rodata,"a"\n.p2align 6\n' + kernel_desc(d['name'], d['nvgpr'], d['accum'])
    return txt
```

```python
import os
from asmlib import *
from mk import *

def reduce_write(a, vACC, vWA, sBASE, js=4096):
    a(f"v_add_u32 v{vWA}, s{sBASE}, v{vL16}")
    for j in range(1, 4):
        for g in range(4):
            a(f"ds_write_b128 v{vWA}, {vr(vACC+16*j+4*g,4)} offset:{(j-1)*js+g*1024}")
def reduce_read(a, vACC, vT, vRA, region0, js=4096, wsh=14):
    for j in range(1, 4):
        a(f"""
        s_xor_b32 s{sTMP}, s{sWAVE}, {j}
        s_lshl_b32 s{sTMP}, s{sTMP}, {wsh}
        s_add_u32 s{sTMP}, s{sTMP}, {region0 + (j-1)*js}
        v_add_u32 v{vRA}, s{sTMP}, v{vL16}
        """)
        for g in range(4):
            a(f"ds_read_b128 {vr(vT+16*(j-1)+4*g,4)}, v{vRA} offset:{g*1024}")
    for j in range(3):
        for g in range(4):
            a(f"s_waitcnt lgkmcnt({11 - (4*j+g)})")
            for r in range(4):
                i = 4*g + r
                a(f"v_add_f32 v{vACC+i}, v{vACC+i}, v{vT+16*j+i}")

def gen_attn(a):
    sHEAD, sQB, sKV, sRD, sWR, sLB, sFB, sWV = sR, sR+1, sR+2, sR+3, sR+4, sR+5, sR+6, sR+7
    vKA, vVA, vKAb, vVAb, vHH, vHHI, vT0 = 3, 4, 5, 6, 7, 8, 12
    vQ = 16; vO = 48; vS = [112, 128]; vP = [144, 152]; vK = [160, 168]; vV = [176, 184]; vNM = 192
    vFA = 208
    a(f"""
    s_and_b32 s{sHEAD}, s{sSL}, 1
    s_lshl_b32 s{sTMP}, s{sXCD}, 1
    s_add_u32 s{sHEAD}, s{sHEAD}, s{sTMP}
    s_lshr_b32 s{sQB}, s{sSL}, 1
    s_lshl_b32 s{sKV}, s{sHEAD}, 18
    s_add_u32 s{sKV}, s{sKV}, {KF_OFF}
    s_lshl_b32 s{sLB}, s{sWAVE}, 12
    v_lshrrev_b32 v{vHH}, 5, v{vLANE}
    v_add_u32 v{vKAb}, s{sLB}, v{vL16}
    v_bfe_u32 v{vT0}, v{vLANE}, 4, 1
    v_lshlrev_b32 v{vVAb}, 10, v{vT0}
    v_and_b32 v{vT0}, 1, v{vLANE}
    v_lshl_add_u32 v{vVAb}, v{vT0}, 9, v{vVAb}
    v_bfe_u32 v{vT0}, v{vLANE}, 1, 1
    v_lshl_add_u32 v{vVAb}, v{vT0}, 3, v{vVAb}
    v_bfe_u32 v{vT0}, v{vLANE}, 2, 2
    v_lshl_add_u32 v{vT0}, v{vHH}, 2, v{vT0}
    v_lshl_add_u32 v{vVAb}, v{vT0}, 4, v{vVAb}
    v_add_u32 v{vVAb}, s{sLB}, v{vVAb}
    v_add_u32 v{vVAb}, 2048, v{vVAb}
    v_sub_u32 v{vHHI}, v{vHH}, 1
    v_sub_u32 v{vHH}, 0, v{vHH}
    """)
    a(f"""
    s_lshl_b32 s{sTMP}, s{sHEAD}, 4
    s_add_u32 s{sTMP}, s{sTMP}, s{sQB}
    s_lshl_b32 s{sTMP}, s{sTMP}, 9
    s_add_u32 s{sTMP}, s{sTMP}, {F1_OFF}
    s_lshl_b32 s{sTMP2}, s{sQB}, 3
    s_add_u32 s{sTMP2}, s{sTMP2}, s{sTMP}
    v_and_b32 v{vFA}, 1, v{vLANE}
    v_lshlrev_b32 v{vFA}, 7, v{vFA}
    v_add_u32 v{vFA}, s{sTMP2}, v{vFA}
    s_lshl_b32 s{sTMP2}, s{sWAVE}, 5
    s_add_u32 s{sTMP2}, s{sTMP2}, s{sTMP}
    s_add_u32 s{sTMP2}, s{sTMP2}, 128
    v_bfe_u32 v{vFA+1}, v{vLANE}, 2, 1
    v_lshlrev_b32 v{vFA+1}, 7, v{vFA+1}
    v_and_b32 v{vT0}, 3, v{vLANE}
    v_lshl_add_u32 v{vFA+1}, v{vT0}, 3, v{vFA+1}
    s_mov_b64 exec, 0xff
    v_add_u32 v{vFA}, s{sTMP2}, v{vFA+1}
    s_mov_b64 exec, -1
    """)
    mb23_addr(a, vFA+2, sQB, sHEAD, F3_OFF)
    a(f"v_mov_b32 v{vKA}, v{vKAb}")
    a(f"v_mov_b32 v{vVA}, v{vVAb}")
    a("s_waitcnt lgkmcnt(0)")
    for i in range(8):
        a(f"v_mov_b32 v{vP[1]+i}, 0")
        a(f"v_mov_b32 v{vV[1]+i}, 0")
    stamp(a, 8)
    a(f"""
    s_lshl_b32 s{sTMP}, s{sWAVE}, 16
    s_add_u32 s{sWR}, s{sKV}, s{sTMP}
    s_waitcnt vmcnt(0)
    v_readfirstlane_b32 s{sTAG}, v18
    v_readfirstlane_b32 s{sTAG+1}, v19
    s_cmp_lg_u32 s{sTAG}, 0
    s_cbranch_scc1 a_tagok
    """)
    get_tag(a, vT0+2)
    a.label("a_tagok")
    publish_flag(a, vT0+2, 17, 0)
    stamp(a, 9)
    prog_wait(a, vT0, LP, 7)
    if env("PFW", 0):
        set_srd(a, sA, pW2, DFF*D*2)
        set_srd(a, sB, pWO, D*D*2)
        a(f"""
        s_lshl_b32 s{sTMP}, s{sSL}, 2
        s_add_u32 s{sTMP}, s{sTMP}, s{sWAVE}
        v_lshlrev_b32 v{vT0}, 7, v{vLANE}
        s_lshl_b32 s{sTMP2}, s{sTMP}, 14
        buffer_load_dword v{vNM}, v{vT0}, {sr(sA,4)}, s{sTMP2} offen sc1
        s_add_u32 s{sTMP2}, s{sTMP2}, 8192
        buffer_load_dword v{vNM+1}, v{vT0}, {sr(sA,4)}, s{sTMP2} offen sc1
        s_lshl_b32 s{sTMP2}, s{sTMP}, 13
        buffer_load_dword v{vNM+2}, v{vT0}, {sr(sB,4)}, s{sTMP2} offen sc1
        """)
    stamp(a, 15)
    poll_flags(a, vFA, vT0+2)
    a.label("a_pro")
    stamp(a, 16)
    a(f"""
    s_lshl_b32 s{sTMP}, s{sQB}, 14
    s_add_u32 s{sTMP}, s{sTMP}, s{sKV}
    buffer_load_dwordx4 {vr(vK[1],4)}, v{vL16}, {sr(sWS,4)}, s{sTMP} offen sc1
    buffer_load_dwordx4 {vr(vK[1]+4,4)}, v{vL16}, {sr(sWS,4)}, s{sTMP} offen offset:1024 sc1
    s_lshl_b32 s{sTMP2}, s{sQB}, 2
    s_lshl_b32 s{sTMP3}, s{sHEAD}, 6
    s_add_u32 s{sTMP2}, s{sTMP2}, s{sTMP3}
    """)
    for j in range(4):
        a(f"""
        s_xor_b32 s{sTMP}, s{sWAVE}, {j}
        s_add_u32 s{sTMP}, s{sTMP}, s{sTMP2}
        s_lshl_b32 s{sTMP}, s{sTMP}, 11
        buffer_load_dwordx4 {vr(vQ+8*j,4)}, v{vL16}, {sr(sWS,4)}, s{sTMP} offen sc1
        buffer_load_dwordx4 {vr(vQ+8*j+4,4)}, v{vL16}, {sr(sWS,4)}, s{sTMP} offen offset:1024 sc1
        """)
    stamp(a, 17)
    a(f"""
    s_mov_b32 m0, s{sLB}
    s_nop 0
    """)
    def dma_tile():
        for i in range(4):
            a(f"buffer_load_dwordx4 v{vL16}, {sr(sWS,4)}, s{sWR} offen offset:{1024*i} sc1 lds")
    for t in range(2):
        dma_tile()
        a(f"s_add_u32 s{sWR}, s{sWR}, 4096")
        a(f"s_add_u32 m0, m0, 16384")
        a("s_nop 0")
    for t in range(4):
        a(f"s_waitcnt vmcnt({8 + 2*(3-t)})")
        a(f"v_mfma_f32_32x32x16_bf16 {vr(vO+16*t,16)}, {vr(vK[1],4)}, {vr(vQ+8*t,4)}, 0")
        a(f"v_mfma_f32_32x32x16_bf16 {vr(vO+16*t,16)}, {vr(vK[1]+4,4)}, {vr(vQ+8*t+4,4)}, {vr(vO+16*t,16)}")
    a("s_nop 3")
    stamp(a, 18)
    def read_k(st, addr, off=0):
        a(f"ds_read_b128 {vr(vK[st],4)}, v{addr} offset:{off}")
        a(f"ds_read_b128 {vr(vK[st]+4,4)}, v{addr} offset:{off+1024}")
    def read_v_ins(st, addr, off=0):
        return [f"ds_read_b64_tr_b16 {vr(vV[st]+4*s_+2*p,2)}, v{addr} offset:{off+(16*s_+8*p)*16}" for s_ in range(2) for p in range(2)]
    for j in range(4):
        o = vO + 16*j
        if j == 2:
            prog_wait(a, vT0, SP, 1)
            for t in range(2):
                dma_tile()
                a(f"s_add_u32 s{sWR}, s{sWR}, 4096")
                if t == 0:
                    a(f"s_add_u32 m0, m0, 16384")
                    a("s_nop 0")
        if j == 3:
            a("s_waitcnt vmcnt(12)")
            read_k(0, vKAb)
            for x in read_v_ins(0, vVAb): a(x)
        t = vT0 + (j & 1) * 2
        a(f"v_max3_f32 v{t}, v{o}, v{o+1}, v{o+2}")
        for i in range(3, 15, 2):
            a(f"v_max3_f32 v{t}, v{t}, v{o+i}, v{o+i+1}")
        a(f"v_max_f32 v{t}, v{t}, v{o+15}")
        a(f"v_mov_b32 v{t+1}, v{t}")
        a(f"v_mfma_f32_32x32x16_bf16 {vr(o,16)}, {vr(vP[1],4)}, {vr(vP[1],4)}, 0")
        a("s_nop 0")
        a(f"v_permlane32_swap_b32 v{t}, v{t+1}")
        a("s_nop 1")
        a(f"v_max_f32 v{t}, v{t}, v{t+1}")
        a(f"v_add_f32 v{t}, {f32bits(BIAS - 1.0):#x}, v{t}")
        a(f"v_cvt_pk_bf16_f32 v{t}, -v{t}, 0")
        a(f"v_and_b32 v{t}, v{t}, v{vHH}")
        a(f"v_and_or_b32 v{vQ+8*j+6}, v{vQ+8*j+6}, v{vHHI}, v{t}")
    a(f"""
    s_mov_b32 s{sRD}, 0
    s_mov_b32 s{sIT}, 0
    s_waitcnt lgkmcnt(0)
    """)
    a(f"v_mfma_f32_32x32x16_bf16 {vr(vS[0],16)}, {vr(vK[0],4)}, {vr(vQ,4)}, 0")
    a(f"v_mfma_f32_32x32x16_bf16 {vr(vS[0],16)}, {vr(vK[0]+4,4)}, {vr(vQ+4,4)}, {vr(vS[0],16)}")
    a("s_nop 7")
    a("s_nop 3")
    def body(sl):
        st = sl % 2
        for j in range(4):
            sc = vS[j % 2]; sn = vS[(j + 1) % 2]
            pc = vP[j % 2]; pp = vP[(j + 1) % 2]
            kn = vK[st] if j < 3 else vK[1 - st]
            qn = vQ + 8 * ((j + 1) % 4)
            vv = vV[st] if j > 0 else vV[1 - st]
            op = vO + 16 * ((j + 3) % 4)
            mf = [
                f"v_mfma_f32_32x32x16_bf16 {vr(sn,16)}, {vr(kn,4)}, {vr(qn,4)}, 0",
                f"v_mfma_f32_32x32x16_bf16 {vr(sn,16)}, {vr(kn+4,4)}, {vr(qn+4,4)}, {vr(sn,16)}",
                f"v_mfma_f32_32x32x16_bf16 {vr(op,16)}, {vr(vv,4)}, {vr(pp,4)}, {vr(op,16)}",
                f"v_mfma_f32_32x32x16_bf16 {vr(op,16)}, {vr(vv+4,4)}, {vr(pp+4,4)}, {vr(op,16)}",
            ]
            if j == 3:
                a("s_waitcnt lgkmcnt(0)")
            plan = [[("e", 0), ("e", 1), ("e", 2)], [("e", 3), ("e", 4), ("e", 5)], [("e", 6), ("e", 7), ("e", 8)],
                    [("e", i) for i in range(9, 16)] + [("c", i) for i in range(8)]]
            for g in range(4):
                a(mf[g])
                if j == 0 and g == 2:
                    a(f"s_add_u32 m0, s{sLB}, {16384*sl}")
                if j == 0 and g == 3:
                    dma_tile()
                    a(f"s_add_u32 s{sWR}, s{sWR}, 4096")
                if j == 1 and g == 3:
                    a("s_waitcnt vmcnt(12)")
                    read_k(1 - st, vKAb, 16384*((sl+1) % 4))
                    for x in read_v_ins(1 - st, vVAb, 16384*((sl+1) % 4)): a(x)
                for kind, i in plan[g]:
                    if kind == "e":
                        a(f"v_exp_f32 v{sc+i}, v{sc+i}")
                    else:
                        a(f"v_cvt_pk_bf16_f32 v{pc+i}, v{sc+2*i}, v{sc+2*i+1}")
    a("s_setprio 1")
    stamp(a, 19)
    dry_end(a)
    a.raw(".p2align 6")
    a.label("a_loop")
    body(0)
    body(1)
    dry_end(a)
    a.label("a_loop2")
    body(2)
    body(3)
    dry_end(a)
    a(f"""
    s_add_u32 s{sIT}, s{sIT}, 1
    s_cmp_eq_u32 s{sIT}, 3
    s_cselect_b32 s{sWR}, {OOB:#x}, s{sWR}
    s_cmp_lt_u32 s{sIT}, 4
    s_cbranch_scc1 a_loop
    """)
    a.label("a_tail")
    stamp(a, 20)
    a("s_setprio 3")
    a("s_nop 1")
    a(f"v_mfma_f32_32x32x16_bf16 {vr(vO+48,16)}, {vr(vV[1],4)}, {vr(vP[1],4)}, {vr(vO+48,16)}")
    a(f"v_mfma_f32_32x32x16_bf16 {vr(vO+48,16)}, {vr(vV[1]+4,4)}, {vr(vP[1]+4,4)}, {vr(vO+48,16)}")
    a("s_waitcnt vmcnt(0)")
    a("s_nop 3")
    reduce_write(a, vO, vT0, sLB, js=16384)
    a("s_waitcnt lgkmcnt(0)")
    prog_set(a, vT0, AP, 1)
    prog_wait(a, vT0, AP, 1, sleep=0)
    reduce_read(a, vO, vS[0], vT0, ATT0, js=16384, wsh=12)
    a(f"s_mov_b32 s{sFB}, 0")
    stamp(a, 21)
    a.label("a_norm")
    a(f"""
    v_mov_b32 v{vT0}, v{vO+12}
    v_mov_b32 v{vT0+1}, v{vO+12}
    s_nop 1
    v_permlane32_swap_b32 v{vT0}, v{vT0+1}
    s_nop 1
    v_rcp_f32 v{vT0}, v{vT0+1}
    v_mov_b32 v{vT0+2}, 0
    """)
    for i in range(16):
        a(f"v_mul_f32 v{vS[0]+i}, v{vO+i}, v{vT0}")
    for i in range(16):
        a(f"v_fma_f32 v{vT0+2}, v{vS[0]+i}, 0, v{vT0+2}")
    a(f"""
    s_mov_b32 s{sTMP}, {f32bits(2.0**-90):#x}
    v_cmp_nle_f32 vcc, s{sTMP}, v{vT0+1}
    s_mov_b32 s{sTMP}, {f32bits(2.0**100):#x}
    v_cmp_nge_f32 s[72:73], s{sTMP}, v{vT0+1}
    v_cmp_u_f32 s[74:75], v{vT0+2}, v{vT0+2}
    s_or_b64 vcc, vcc, s[72:73]
    s_or_b64 vcc, vcc, s[74:75]
    s_cmp_lg_u32 s{sFB}, 0
    s_cbranch_scc1 a_store
    s_cbranch_vccnz a_fallback
    """)
    a.label("a_store")
    for i in range(8):
        a(f"v_cvt_pk_bf16_f32 v{vP[0]+i}, v{vS[0]+2*i}, v{vS[0]+2*i+1}")
    a(f"""
    v_and_b32 v{vP[0]+6}, v{vP[0]+6}, v{vHHI}
    v_and_b32 v{vP[0]+7}, v{vP[0]+7}, v{vHHI}
    s_lshl_b32 s{sTMP3}, s{sQB}, 2
    s_add_u32 s{sTMP3}, s{sTMP3}, s{sWAVE}
    s_mul_i32 s{sTMP}, s{sTMP3}, 144
    s_lshl_b32 s{sTMP2}, s{sHEAD}, 1
    s_add_u32 s{sTMP}, s{sTMP}, s{sTMP2}
    s_lshl_b32 s{sTMP}, s{sTMP}, 10
    s_add_u32 s{sTMP}, s{sTMP}, {HF_OFF + 112*1024}
    buffer_store_dwordx4 {vr(vP[0],4)}, v{vL16}, {sr(sWS,4)}, s{sTMP} offen sc1
    buffer_store_dwordx4 {vr(vP[0]+4,4)}, v{vL16}, {sr(sWS,4)}, s{sTMP} offen offset:1024 sc1
    s_waitcnt vmcnt(0)
    """)
    stamp(a, 22)
    publish_flag(a, vT0+2, vFA+2, 2)
    dry_end(a)
    stamp_flush(a, 0, sWS, sW8, 20, wpw=8)
    a("s_endpgm")
    a.label("a_fallback")
    a(f"""
    v_and_b32 v{vQ+6}, v{vQ+6}, v{vHHI}
    v_mov_b32 v{vT0}, 0xff800000
    s_mov_b32 s{sWR}, s{sKV}
    s_mov_b32 s{sIT}, 0
    """)
    a.label("a_fb1")
    a(f"""
    buffer_load_dwordx4 {vr(vK[0],4)}, v{vL16}, {sr(sWS,4)}, s{sWR} offen sc1
    buffer_load_dwordx4 {vr(vK[0]+4,4)}, v{vL16}, {sr(sWS,4)}, s{sWR} offen offset:1024 sc1
    s_waitcnt vmcnt(0)
    v_mfma_f32_32x32x16_bf16 {vr(vS[0],16)}, {vr(vK[0],4)}, {vr(vQ,4)}, 0
    v_mfma_f32_32x32x16_bf16 {vr(vS[0],16)}, {vr(vK[0]+4,4)}, {vr(vQ+4,4)}, {vr(vS[0],16)}
    s_nop 15
    s_nop 3
    """)
    for i in range(0, 16, 2):
        a(f"v_max3_f32 v{vT0}, v{vT0}, v{vS[0]+i}, v{vS[0]+i+1}")
    a(f"""
    s_add_u32 s{sWR}, s{sWR}, 4096
    s_add_u32 s{sIT}, s{sIT}, 1
    s_cmp_lt_u32 s{sIT}, 64
    s_cbranch_scc1 a_fb1
    v_mov_b32 v{vT0+1}, v{vT0}
    s_nop 1
    v_permlane32_swap_b32 v{vT0}, v{vT0+1}
    s_nop 1
    v_max_f32 v{vT0}, v{vT0}, v{vT0+1}
    """)
    for i in range(16):
        a(f"v_sub_f32 v{vNM+i}, 0, v{vT0}")
        a(f"v_mov_b32 v{vO+i}, 0")
    a(f"""
    s_add_u32 m0, s{sLB}, 49152
    v_add_u32 v{vKA}, 49152, v{vKAb}
    v_add_u32 v{vVA}, 49152, v{vVAb}
    s_mov_b32 s{sWR}, s{sKV}
    s_mov_b32 s{sIT}, 0
    """)
    a.label("a_fb2")
    dma_tile()
    a("s_waitcnt vmcnt(0)")
    read_k(0, vKA)
    for x in read_v_ins(0, vVA): a(x)
    a(f"""
    s_waitcnt lgkmcnt(0)
    v_mfma_f32_32x32x16_bf16 {vr(vS[0],16)}, {vr(vK[0],4)}, {vr(vQ,4)}, {vr(vNM,16)}
    v_mfma_f32_32x32x16_bf16 {vr(vS[0],16)}, {vr(vK[0]+4,4)}, {vr(vQ+4,4)}, {vr(vS[0],16)}
    s_nop 15
    s_nop 3
    """)
    for i in range(16):
        a(f"v_exp_f32 v{vS[0]+i}, v{vS[0]+i}")
    a("s_nop 0")
    for i in range(8):
        a(f"v_cvt_pk_bf16_f32 v{vP[0]+i}, v{vS[0]+2*i}, v{vS[0]+2*i+1}")
    a(f"""
    s_nop 1
    v_mfma_f32_32x32x16_bf16 {vr(vO,16)}, {vr(vV[0],4)}, {vr(vP[0],4)}, {vr(vO,16)}
    v_mfma_f32_32x32x16_bf16 {vr(vO,16)}, {vr(vV[0]+4,4)}, {vr(vP[0]+4,4)}, {vr(vO,16)}
    s_add_u32 s{sWR}, s{sWR}, 4096
    s_add_u32 s{sIT}, s{sIT}, 1
    s_cmp_lt_u32 s{sIT}, 64
    s_cbranch_scc1 a_fb2
    s_nop 15
    s_nop 3
    s_mov_b32 s{sFB}, 1
    s_branch a_norm
    """)

def gen_gemm2(a):
    sMT, sNT, sHO, sWOFF, sGB, sWO3 = sR, sR+1, sR+2, sR+3, sR+4, sR+5
    vH0, vH1, vWD, vTR0, vTR1, vXA, vT0, vFA = 3, 4, 5, 6, 7, 8, 12, 15
    vXD = 18
    vWF = 224
    vACC = 80
    vHR = 144
    vWB = 16
    if env("STS", 0):
        stamp_flush(a, 0, sWS, sW8, 20, wpw=8)
        a("s_endpgm")
    a(f"""
    s_mul_i32 s{sTMP}, s{sSL}, 37
    s_lshr_b32 s{sTMP}, s{sTMP}, 8
    s_mul_i32 s{sTMP2}, s{sTMP}, 7
    s_sub_u32 s{sNT}, s{sSL}, s{sTMP2}
    s_lshl_b32 s{sMT}, s{sXCD}, 2
    s_add_u32 s{sMT}, s{sMT}, s{sTMP}
    s_lshl_b32 s{sMT}, s{sMT}, 1
    """)
    a(f"""
    v_and_b32 v{vFA}, 15, v{vLANE}
    s_mul_i32 s{sTMP}, s{sXCD}, 28
    s_add_u32 s{sTMP}, s{sTMP}, s{sSL}
    s_lshl_b32 s{sTMP}, s{sTMP}, 4
    v_add_u32 v{vFA}, s{sTMP}, v{vFA}
    v_lshlrev_b32 v{vFA}, 3, v{vFA}
    v_add_u32 v{vFA}, {F2_OFF}, v{vFA}
    s_and_b32 s{sTMP}, s{sWAVE}, 1
    s_add_u32 s{sMT}, s{sMT}, s{sTMP}
    s_mul_i32 s{sTMP}, s{sMT}, {144*1024}
    s_add_u32 s{sTMP}, s{sTMP}, {HF_OFF}
    v_add_u32 v{vH0}, s{sTMP}, v{vL16}
    s_xor_b32 s{sTMP}, s{sMT}, 1
    s_mul_i32 s{sTMP}, s{sTMP}, {144*1024}
    s_add_u32 s{sTMP}, s{sTMP}, {HF_OFF}
    v_add_u32 v{vH1}, s{sTMP}, v{vL16}
    s_mul_i32 s{sHO}, s{sWAVE}, {28*1024}
    s_lshl_b32 s{sGB}, s{sWAVE}, 14
    s_add_u32 s{sGB}, s{sGB}, {GR0}
    """)
    a(f"""
    v_lshrrev_b32 v{vT0}, 3, v{vLANE}
    v_bfe_u32 v{vT0+1}, v{vLANE}, 4, 1
    v_lshlrev_b32 v{vT0+1}, 2, v{vT0+1}
    v_and_b32 v{vT0+2}, 7, v{vLANE}
    v_xor_b32 v{vT0+2}, v{vT0+2}, v{vT0+1}
    v_lshlrev_b32 v{vT0+2}, 4, v{vT0+2}
    s_movk_i32 s{sTMP}, 896
    v_mad_u32_u24 v{vWD}, v{vT0}, s{sTMP}, v{vT0+2}
    s_mul_i32 s{sWOFF}, s{sWAVE}, {448*896}
    s_lshl_b32 s{sTMP}, s{sNT}, 7
    s_add_u32 s{sWOFF}, s{sWOFF}, s{sTMP}
    """)
    a(f"""
    v_lshrrev_b32 v{vT0}, 5, v{vLANE}
    v_bfe_u32 v{vT0+1}, v{vLANE}, 2, 2
    v_lshl_add_u32 v{vT0}, v{vT0}, 2, v{vT0+1}
    v_lshlrev_b32 v{vTR0}, 7, v{vT0}
    v_bfe_u32 v{vT0+1}, v{vLANE}, 3, 1
    s_lshr_b32 s{sTMP}, s{sWAVE}, 1
    v_xor_b32 v{vT0+1}, s{sTMP}, v{vT0+1}
    v_lshl_add_u32 v{vTR0}, v{vT0+1}, 6, v{vTR0}
    v_bfe_u32 v{vT0+1}, v{vLANE}, 4, 1
    v_lshl_add_u32 v{vTR0}, v{vT0+1}, 5, v{vTR0}
    v_and_b32 v{vT0+1}, 3, v{vLANE}
    v_lshl_add_u32 v{vTR0}, v{vT0+1}, 3, v{vTR0}
    v_xor_b32 v{vTR1}, 64, v{vTR0}
    v_add_u32 v{vTR0}, s{sGB}, v{vTR0}
    v_add_u32 v{vTR1}, s{sGB}, v{vTR1}
    s_lshl_b32 s{sNT}, s{sNT}, 1
    s_add_u32 s{sNT}, s{sNT}, s{sTMP}
    """)
    def loadw(k):
        a(f"s_add_u32 m0, s{sGB}, {2048*k}")
        a(f"s_add_u32 s{sTMP}, s{sWOFF}, {8*896 - 1024}")
        a(f"buffer_load_dwordx4 v{vWD}, {sr(sB,4)}, s{sWOFF} offen lds")
        a(f"buffer_load_dwordx4 v{vWD}, {sr(sB,4)}, s{sTMP} offen offset:1024 lds")
        a(f"s_add_u32 s{sWOFF}, s{sWOFF}, {16*896}")
    def loadh(k):
        f = vHR + 8*k
        a(f"buffer_load_dwordx4 {vr(f,4)}, v{vH0}, {sr(sWS,4)}, s{sHO} offen sc1")
        a(f"buffer_load_dwordx4 {vr(f+4,4)}, v{vH1}, {sr(sWS,4)}, s{sHO} offen sc1")
        a(f"s_add_u32 s{sHO}, s{sHO}, 1024")
    def loads(k):
        loadw(k); loadh(k)
    def rdw(k, dst):
        for t, ad in ((0, vTR0), (1, vTR1)):
            for p in range(2):
                a(f"ds_read_b64_tr_b16 {vr(dst+4*t+2*p,2)}, v{ad} offset:{2048*k + 1024*p}")
    def mfmas(w, h):
        for j in range(4):
            a(f"v_mfma_f32_32x32x16_bf16 {vr(vACC+16*j,16)}, {vr(w+4*(j>>1),4)}, {vr(h+4*(j&1),4)}, {vr(vACC+16*j,16)}")
    vFA3, vXD3, vOA = 208, 212, 220
    set_srd(a, sB, pWO, D*D*2)
    set_srd(a, sA, pX, S*D*2)
    set_srd(a, sCc, pOUT, S*D*2)
    a(f"""
    s_mul_i32 s{sWO3}, s{sWAVE}, {4*28*896}
    s_lshr_b32 s{sTMP}, s{sNT}, 1
    s_lshl_b32 s{sTMP}, s{sTMP}, 7
    s_add_u32 s{sWO3}, s{sWO3}, s{sTMP}
    """)
    for k in range(8):
        off = (28*(k >> 1) + 16*(k & 1)) * 896
        a(f"s_add_u32 m0, s{sGB}, {2048*k}")
        a(f"s_add_u32 s{sTMP}, s{sWO3}, {off}")
        a(f"buffer_load_dwordx4 v{vWD}, {sr(sB,4)}, s{sTMP} offen lds")
        a(f"s_add_u32 s{sTMP}, s{sWO3}, {off + 8*896 - 1024}")
        a(f"buffer_load_dwordx4 v{vWD}, {sr(sB,4)}, s{sTMP} offen offset:1024 lds")
    a(f"""
    v_add_u32 v{vFA3}, {F3_OFF - F2_OFF}, v{vFA}
    v_and_b32 v{vOA}, 31, v{vLANE}
    s_lshl_b32 s{sTMP}, s{sMT}, 5
    v_add_u32 v{vOA}, s{sTMP}, v{vOA}
    s_movk_i32 s{sTMP}, 896
    v_mul_lo_u32 v{vOA}, v{vOA}, s{sTMP}
    v_lshrrev_b32 v{vT0}, 5, v{vLANE}
    v_lshl_add_u32 v{vXA}, v{vT0}, 3, v{vOA}
    v_lshl_add_u32 v{vOA}, v{vT0}, 4, v{vOA}
    s_lshl_b32 s{sNT}, s{sNT}, 6
    """)
    for g in range(4):
        a(f"buffer_load_dwordx2 {vr(vXD3+2*g,2)}, v{vXA}, {sr(sA,4)}, s{sNT} offen offset:{16*g}")
    a(f"s_lshr_b32 s{sTMP3}, s{sMT32}, 2")
    mb23_addr(a, 16, sTMP3, sCOL, F2_OFF)
    a(f"""
    s_waitcnt vmcnt(20)
    """)
    publish_flag(a, vT0, 16, 1)
    a(f"""
    s_cmp_ge_u32 s{sSL}, 28
    s_cbranch_scc1 k_end
    """)
    stamp(a, 13)
    a("s_waitcnt vmcnt(0)")
    for k in range(8):
        rdw(k, vWB + 8*k)
        if k % 2 == 1: a("s_waitcnt lgkmcnt(0)")
    for g in range(4):
        for p in range(2):
            a(f"v_lshlrev_b32 v{vT0}, 16, v{vXD3+2*g+p}")
            a(f"v_and_b32 v{vT0+1}, 0xffff0000, v{vXD3+2*g+p}")
            a(f"v_add_f32 v{vACC+4*g+2*p}, v{vACC+4*g+2*p}, v{vT0}")
            a(f"v_add_f32 v{vACC+4*g+2*p+1}, v{vACC+4*g+2*p+1}, v{vT0+1}")
    set_srd(a, sB, pW2, DFF*D*2)
    a(f"s_setprio {env('GPRIO', 0)}")
    WPRE = env("WPRE", 1)
    if WPRE:
        for k in range(7): loadw(k)
        a(f"s_mov_b32 s{sTMP2}, {OOB:#x}")
    stamp(a, 20)
    poll_flags(a, vFA, vT0)
    stamp(a, 14)
    a.label("g_pre")
    for k in range(7):
        if WPRE:
            if k > 0:
                a(f"buffer_load_dword v{vT0}, v{vL16}, {sr(sWS,4)}, s{sTMP2} offen")
                a(f"buffer_load_dword v{vT0}, v{vL16}, {sr(sWS,4)}, s{sTMP2} offen")
            loadh(k)
        else:
            loads(k)
    a(f"s_mov_b32 s{sIT}, 0")
    dry_end(a)
    a.label("g_loop")
    a(f"""
    s_cmp_eq_u32 s{sIT}, 3
    s_cselect_b32 s{sHO}, {OOB:#x}, s{sHO}
    s_cselect_b32 s{sWOFF}, {OOB:#x}, s{sWOFF}
    """)
    for k in range(7):
        a("s_waitcnt vmcnt(24)")
        rdw(k, vWF)
        a("s_waitcnt lgkmcnt(0)")
        mfmas(vWF, vHR + 8*k)
        loads(k)
    dry_end(a)
    a(f"""
    s_add_u32 s{sIT}, s{sIT}, 1
    s_cmp_lt_u32 s{sIT}, 4
    s_cbranch_scc1 g_loop
    """)
    a.label("g_p3")
    a("s_setprio 2")
    a("s_waitcnt vmcnt(0)")
    stamp(a, 15)
    a(f"""
    s_lshl_b32 s{sHO}, s{sWAVE}, 13
    s_add_u32 s{sHO}, s{sHO}, {112*1024}
    s_add_u32 s{sTMP2}, s{sHO}, 4096
    """)
    stamp(a, 16)
    dry_end(a)
    a.label("g_tail")
    poll_flags(a, vFA3, vT0)
    stamp(a, 17)
    for k in range(8):
        f = vHR + 8*k
        so = sHO if k < 4 else sTMP2
        a(f"buffer_load_dwordx4 {vr(f,4)}, v{vH0}, {sr(sWS,4)}, s{so} offen offset:{1024*(k%4)} sc1")
        a(f"buffer_load_dwordx4 {vr(f+4,4)}, v{vH1}, {sr(sWS,4)}, s{so} offen offset:{1024*(k%4)} sc1")
    for k in range(8):
        a(f"s_waitcnt vmcnt({14 - 2*k})")
        mfmas(vWB + 8*k, vHR + 8*k)
    stamp(a, 18)
    a("s_nop 7")
    a("s_nop 3")
    reduce_write(a, vACC, vT0, sGB)
    a("s_waitcnt lgkmcnt(0)")
    prog_set(a, vT0, SP, 3)
    prog_wait(a, vT0, SP, 3, sleep=0)
    dry_end(a)
    a.label("g_tail2")
    reduce_read(a, vACC, vHR, vT0, GR0)
    stamp(a, 19)
    for i in range(8):
        a(f"v_cvt_pk_bf16_f32 v{vHR+i}, v{vACC+2*i}, v{vACC+2*i+1}")
    a("s_nop 1")
    for q in range(2):
        a(f"v_permlane32_swap_b32 v{vHR+4*q}, v{vHR+4*q+2}")
        a(f"v_permlane32_swap_b32 v{vHR+4*q+1}, v{vHR+4*q+3}")
    a("s_nop 1")
    for q in range(2):
        a(f"buffer_store_dwordx4 {vr(vHR+4*q,4)}, v{vOA}, {sr(sCc,4)}, s{sNT} offen offset:{32*q}")
    dry_end(a)
    stamp_flush(a, 0, sWS, sW8, 20, wpw=8)
```

```python
import sys, math, struct, os
from asmlib import *

NAME = "parallel_sum__mha_block__dense_activation_relu__prompt"
S, D, H, DH, DFF = 2048, 448, 16, 28, 1792
QF_OFF = 0
KF_OFF = 2 << 20
VF_OFF = 4 << 20
HF_OFF = 7 << 20
FL_OFF = 17 << 20
F1_OFF, F2_OFF, F3_OFF = FL_OFF, FL_OFF + 131072, FL_OFF + 131072 + 32768
WS_SIZE = 0x10000000
OOB = 0x40000000
BIAS = 80.0
SPIN_G = 1 << 19
SPIN_L = 1 << 22
def env(k, d): return int(os.environ.get(k, str(d)))
DRY = env("DRY", 0)

def f32bits(x): return struct.unpack("<I", struct.pack("<f", x))[0]
QSCALE = math.log2(math.e) / math.sqrt(DH)

class LgkmTracker:
    def __init__(self, a): self.a = a; self.q = []
    def issue(self, tag): self.q.append(tag)
    def need(self, tag):
        if tag in self.q:
            idx = len(self.q) - 1 - self.q[::-1].index(tag)
            n = min(len(self.q) - 1 - idx, 13)
            self.a(f"s_waitcnt lgkmcnt({n})")
            self.q = self.q[len(self.q) - n:] if n > 0 else []

SLOT = 28672
SL0 = 12288
WB = SL0 + SLOT
ATT0 = 0
GR0 = 90112
CTL = SL0 + 5*SLOT
CSA, CSB_, STA = CTL + 4096, CTL + 4608, CTL + 5120
LP, CP, AP, SP = CTL + 6144, CTL + 6160, CTL + 6176, CTL + 6192
LDS_TOTAL = 163840

pX, pWQ, pWO, pW1, pW2, pOUT, pDBG = 4, 6, 8, 12, 14, 16, 18
sWS, sA, sB, sCc = 20, 24, 28, 32
sXCD, sSL, sW8, sWAVE, sMT32, sCOL, sTMP, sTMP2, sTMP3, sIT = 36, 37, 38, 39, 40, 41, 42, 43, 44, 45
sR = 46
sTAG, sSPIN, sRET = 76, 78, 90
vLANE, vL16, vPW, vPR, vF0 = 1, 2, 9, 10, 0

def dry_end(a):
    if DRY: a("s_cbranch_execz dry_ret")
def dry_call(a, label):
    a(f"s_call_b64 s[{sRET}:{sRET+1}], {label}")
def dry_by_wave(a, plans, name):
    if not (DRY >> (int(name[-1]) - 1)) & 1: return
    a("s_mov_b64 exec, 0")
    for w in range(4):
        if w < 3:
            a(f"s_cmp_lg_u32 s{sWAVE}, {w}")
            a(f"s_cbranch_scc1 {name}_{w+1}")
        for lbl in plans[w]:
            dry_call(a, lbl)
        if w < 3:
            a(f"s_branch {name}_end")
            a.label(f"{name}_{w+1}")
    a.label(f"{name}_end")
    a("s_mov_b64 exec, -1")

def prog_wait(a, vD, base, target, sleep=1):
    lp = a.newlabel("lw"); dn = a.newlabel("lwd")
    a(f"s_mov_b32 s{sSPIN}, {SPIN_L}")
    a.label(lp)
    a(f"""
    ds_read_b32 v{vD}, v{vPR} offset:{base - CTL}
    s_waitcnt lgkmcnt(0)
    v_cmp_gt_u32 vcc, {target}, v{vD}
    s_cbranch_vccz {dn}
    s_sleep {sleep}
    s_sub_u32 s{sSPIN}, s{sSPIN}, 1
    s_cbranch_scc0 {lp}
    """)
    a.label(dn)
def prog_set(a, vD, base, val):
    a(f"v_mov_b32 v{vD}, {val}")
    a(f"ds_write_b32 v{vPW}, v{vD} offset:{base - CTL}")
def get_tag(a, vD):
    lp = a.newlabel("tg"); dn = a.newlabel("tgd")
    a(f"s_mov_b32 s{sSPIN}, {SPIN_G}")
    a.label(lp)
    a(f"""
    buffer_load_dwordx2 {vr(vD,2)}, v{vF0}, {sr(sCc,4)}, 0 offen sc1
    s_waitcnt vmcnt(0)
    v_readfirstlane_b32 s{sTAG}, v{vD}
    v_readfirstlane_b32 s{sTAG+1}, v{vD+1}
    s_cbranch_execz {dn}
    s_min_u32 s{sTMP}, s{sTAG}, s{sTAG+1}
    s_cmp_lg_u32 s{sTMP}, 0
    s_cbranch_scc1 {dn}
    s_sub_u32 s{sSPIN}, s{sSPIN}, 1
    s_cbranch_scc0 {lp}
    """)
    a.label(dn)
def poll_flags(a, vFA, vD):
    lp = a.newlabel("pf"); dn = a.newlabel("pfd")
    a(f"s_mov_b32 s{sSPIN}, {SPIN_G}")
    a.label(lp)
    a(f"""
    buffer_load_dwordx2 {vr(vD,2)}, v{vFA}, {sr(sWS,4)}, 0 offen sc1
    s_waitcnt vmcnt(0)
    v_cmp_ne_u64 vcc, {sr(sTAG,2)}, {vr(vD,2)}
    s_cbranch_vccz {dn}
    s_sleep {env('PSLEEP', 3)}
    s_sub_u32 s{sSPIN}, s{sSPIN}, 1
    s_cbranch_scc0 {lp}
    """)
    a.label(dn)
GC = CTL + 6208
def publish_flag(a, vD, vMB, gidx):
    sk = a.newlabel("pub")
    a(f"""
    s_lshl_b32 s{sSPIN}, s{sWAVE}, 2
    v_mov_b32 v{vD+1}, 1
    v_subrev_u32 v{vD}, s{sSPIN}, v{vPW}
    ds_add_rtn_u32 v{vD+1}, v{vD}, v{vD+1} offset:{GC + 4*gidx - CTL}
    v_mov_b32 v{vD}, s{sTAG}
    s_waitcnt lgkmcnt(0)
    v_readfirstlane_b32 s{sSPIN}, v{vD+1}
    v_mov_b32 v{vD+1}, s{sTAG+1}
    s_cmp_lg_u32 s{sSPIN}, 3
    s_cbranch_scc1 {sk}
    buffer_store_dwordx2 {vr(vD,2)}, v{vMB}, {sr(sWS,4)}, 0 offen sc1
    """)
    a.label(sk)
def mb23_addr(a, vMB, sBLK, sSLOT_, base):
    a(f"""
    s_mul_i32 s{sTMP}, s{sBLK}, {14*128}
    s_lshl_b32 s{sTMP2}, s{sSLOT_}, 3
    s_add_u32 s{sTMP}, s{sTMP}, s{sTMP2}
    s_add_u32 s{sTMP}, s{sTMP}, {base}
    v_lshlrev_b32 v{vMB}, 7, v{vLANE}
    v_add_u32 v{vMB}, s{sTMP}, v{vMB}
    v_cmp_lt_u32 vcc, 13, v{vLANE}
    v_mov_b32 v{vMB+1}, {OOB:#x}
    s_nop 0
    v_cndmask_b32 v{vMB}, v{vMB}, v{vMB+1}, vcc
    """)
def set_srd(a, srd, ptr, size):
    a(f"""
    s_mov_b32 s{srd}, s{ptr}
    s_mov_b32 s{srd+1}, s{ptr+1}
    s_mov_b32 s{srd+2}, {size}
    """)

def gen(a):
    KN = NAME + "_kernel"
    a.label(KN)
    a(f"""
    s_cmp_ge_u32 s2, 256
    s_cbranch_scc1 k_end
    """)
    stamp(a, 0)
    a(f"""
    s_load_dwordx4 s[4:7], s[0:1], 0
    s_load_dwordx2 s[8:9], s[0:1], 16
    s_load_dwordx8 s[12:19], s[0:1], 32
    s_load_dwordx2 s[{sWS}:{sWS+1}], s[0:1], 64
    v_lshlrev_b32 v7, 3, v0
    v_add_u32 v7, {CTL + 4096}, v7
    v_mov_b32 v4, 0
    v_mov_b32 v5, 0
    ds_write_b64 v7, v[4:5]
    v_and_b32 v{vLANE}, 63, v0
    v_lshrrev_b32 v7, 6, v0
    v_lshlrev_b32 v{vL16}, 4, v{vLANE}
    v_readfirstlane_b32 s{sW8}, v7
    s_and_b32 s{sXCD}, s2, 7
    s_lshr_b32 s{sSL}, s2, 3
    s_mov_b32 s{sWS+2}, {WS_SIZE:#x}
    s_mov_b32 s{sWS+3}, 0x00020000
    s_mov_b32 s{sA+3}, 0x00020000
    s_mov_b32 s{sB+3}, 0x00020000
    s_mov_b32 s{sCc+3}, 0x00020000
    s_and_b32 s{sWAVE}, s{sW8}, 3
    s_and_b32 s{sMT32}, s{sXCD}, 1
    s_lshl_b32 s{sMT32}, s{sMT32}, 3
    s_and_b32 s{sTMP}, s{sSL}, 7
    s_add_u32 s{sMT32}, s{sMT32}, s{sTMP}
    s_lshl_b32 s{sMT32}, s{sMT32}, 2
    s_add_u32 s{sMT32}, s{sMT32}, s{sWAVE}
    s_lshr_b32 s{sCOL}, s{sXCD}, 1
    s_lshl_b32 s{sCOL}, s{sCOL}, 2
    s_lshr_b32 s{sTMP}, s{sSL}, 3
    s_add_u32 s{sCOL}, s{sCOL}, s{sTMP}
    v_and_b32 v{vPR}, 3, v{vLANE}
    v_lshlrev_b32 v{vPR}, 2, v{vPR}
    v_add_u32 v{vPR}, {CTL}, v{vPR}
    s_lshl_b32 s{sTMP}, s{sWAVE}, 2
    s_add_u32 s{sTMP}, s{sTMP}, {CTL}
    v_min_u32 v{vF0}, 1, v{vLANE}
    v_lshlrev_b32 v{vPW}, 9, v{vF0}
    v_lshl_add_u32 v{vPW}, v{vLANE}, 2, v{vPW}
    v_add_u32 v{vPW}, s{sTMP}, v{vPW}
    v_lshlrev_b32 v{vF0}, 30, v{vF0}
    s_cmp_lt_u32 s{sW8}, 4
    s_cbranch_scc1 k_comp
    """)
    ROLE[0] = "Y"
    gen_loader(a)
    a("s_branch c_passb")
    a.label("k_comp")
    ROLE[0] = "X"
    gen_comp(a)
    gen_gemm2(a)
    a("s_endpgm")
    a.label("x_attn")
    ROLE[0] = "X"
    gen_attn(a)
    a.label("k_end")
    a("s_endpgm")
    if DRY:
        a.label("dry_ret")
        a(f"s_setpc_b64 s[{sRET}:{sRET+1}]")
    return dict(name=KN, grid=256, block=512, lds=LDS_TOTAL, nvgpr=256, accum=256)

def gen_loader(a):
    vXD, vXD2, vWQ, vB1, vT = 7, 8, 3, 13, 14
    vSX, vAX = 20, 22
    vRD = 40
    vXB = 144
    sXOFF, sQOFF, sSLW, sMX, sMQ, sBOFF, sROT, sSLS, sMB, sCK, sBR = [sR + i for i in range(11)]
    a(f"""
    v_lshrrev_b32 v{vT}, 3, v{vLANE}
    v_lshrrev_b32 v{vT+1}, 4, v{vLANE}
    v_and_b32 v{vT+2}, 7, v{vLANE}
    v_xor_b32 v{vT+2}, v{vT+2}, v{vT+1}
    v_lshlrev_b32 v{vT+2}, 4, v{vT+2}
    s_movk_i32 s{sTMP}, 896
    v_mad_u32_u24 v{vXD}, v{vT}, s{sTMP}, v{vT+2}
    v_xor_b32 v{vXD2}, 64, v{vXD}
    s_mul_i32 s{sXOFF}, s{sMT32}, {32*896}
    s_lshl_b32 s{sMX}, s{sWAVE}, 12
    s_mul_i32 s{sMQ}, s{sWAVE}, 3072
    s_add_u32 s{sMQ}, s{sMQ}, 16384
    s_mul_i32 s{sQOFF}, s{sWAVE}, {16*2688}
    s_mul_i32 s{sTMP}, s{sCOL}, 168
    s_and_b32 s{sTMP}, s{sTMP}, -16
    s_add_u32 s{sQOFF}, s{sQOFF}, s{sTMP}
    s_lshr_b32 s{sTMP}, s{sSL}, 3
    s_lshl_b32 s{sTMP}, s{sTMP}, 1
    s_and_b32 s{sROT}, s{sSL}, 7
    s_add_u32 s{sROT}, s{sROT}, s{sTMP}
    s_mul_i32 s{sROT}, s{sROT}, {env("ROT", 0)}
    s_cmp_ge_u32 s{sROT}, 7
    s_cselect_b32 s{sTMP}, 7, 0
    s_sub_u32 s{sROT}, s{sROT}, s{sTMP}
    s_mov_b32 s{sCK}, s{sROT}
    s_lshl_b32 s{sTMP}, s{sROT}, 7
    s_add_u32 s{sXOFF}, s{sXOFF}, s{sTMP}
    s_mul_i32 s{sTMP}, s{sROT}, {64*2688}
    s_add_u32 s{sQOFF}, s{sQOFF}, s{sTMP}
    s_movk_i32 s{sTMP}, 5462
    s_movk_i32 s{sTMP2}, 2688
    """)
    for i in range(3):
        a(f"""
        v_add_u32 v{vT}, {64*i}, v{vLANE}
        v_mul_u32_u24 v{vT+2}, s{sTMP}, v{vT}
        v_lshrrev_b32 v{vT+2}, 16, v{vT+2}
        v_mul_u32_u24 v{vT+3}, 12, v{vT+2}
        v_sub_u32 v{vT}, v{vT}, v{vT+3}
        v_lshlrev_b32 v{vT}, 4, v{vT}
        v_mad_u32_u24 v{vWQ+i}, v{vT+2}, s{sTMP2}, v{vT}
        """)
    a(f"""
    v_mov_b32 v{vB1}, 0
    s_mov_b32 s{sSLW}, {SL0 + 4*SLOT}
    s_mov_b32 s{sSLS}, {SL0 + 4*SLOT}
    s_mov_b32 s{sIT}, 0
    s_waitcnt lgkmcnt(0)
    s_barrier
    """)
    set_srd(a, sA, pX, S*D*2)
    set_srd(a, sB, pWQ, D*3*D*2)
    set_srd(a, sCc, pW1, D*DFF*2)
    stamp(a, 1)
    LDD = env("LDD", 1)
    a.label("ld_loop")
    a(f"""
    s_cmp_lt_u32 s{sIT}, 5
    s_cbranch_scc1 ld_isa
    s_sub_u32 s{sTMP3}, s{sIT}, 4
    """)
    BT = env("BTHROT", 99)
    if BT < 11:
        a(f"s_cmp_eq_u32 s{sIT}, {BT}")
        a(f"s_cselect_b32 s{sTMP3}, 9, s{sTMP3}")
    a(f"""
    s_waitcnt lgkmcnt(5)
    s_cmp_lt_u32 s{sIT}, {8 + LDD}
    s_cbranch_scc1 ld_chk
    s_waitcnt lgkmcnt(1)
    """)
    a.label("ld_chk")
    a(f"""
    v_cmp_gt_u32 vcc, s{sTMP3}, v{vT+4}
    s_cbranch_vccz ld_free
    """)
    prog_wait(a, vT+1, CP, f"s{sTMP3}")
    a.label("ld_free")
    a(f"""
    s_cmp_ge_u32 s{sIT}, 7
    s_cbranch_scc1 ld_isb
    """)
    a.label("ld_isa")
    a(f"s_add_u32 m0, s{sSLW}, s{sMX}")
    for i in range(4):
        a(f"s_add_u32 s{sTMP}, s{sXOFF}, {8*896*i}")
        a(f"buffer_load_dwordx4 v{vXD if i % 2 == 0 else vXD2}, {sr(sA,4)}, s{sTMP} offen lds")
        if i < 3: a("s_add_u32 m0, m0, 1024")
    a(f"s_add_u32 m0, s{sSLW}, s{sMQ}")
    a(f"s_add_u32 s{sXOFF}, s{sXOFF}, 128")
    for i in range(3):
        a(f"buffer_load_dwordx4 v{vWQ+i}, {sr(sB,4)}, s{sQOFF} offen lds")
        if i < 2:
            a("s_add_u32 m0, m0, 1024")
            a("s_nop 0")
    a(f"""
    s_add_u32 s{sQOFF}, s{sQOFF}, {64*2688}
    s_add_u32 s{sCK}, s{sCK}, 1
    s_cmp_eq_u32 s{sCK}, 7
    s_cselect_b32 s{sTMP}, 896, 0
    s_cselect_b32 s{sTMP2}, {448*2688}, 0
    s_sub_u32 s{sXOFF}, s{sXOFF}, s{sTMP}
    s_sub_u32 s{sQOFF}, s{sQOFF}, s{sTMP2}
    s_cmp_lg_u32 s{sIT}, 1
    s_cbranch_scc1 ld_post
    """)
    a(f"""
    v_lshrrev_b32 v{vT+1}, 4, v{vLANE}
    v_lshlrev_b32 v{vT+3}, 2, v{vT+1}
    v_and_b32 v{vT+2}, 15, v{vLANE}
    v_xor_b32 v{vT+2}, v{vT+2}, v{vT+3}
    v_lshlrev_b32 v{vT+3}, 4, v{vT+2}
    s_movk_i32 s{sTMP}, 3584
    v_mad_u32_u24 v{vB1}, v{vT+1}, s{sTMP}, v{vT+3}
    s_lshr_b32 s{sTMP}, s{sCOL}, 1
    s_mul_i32 s{sBOFF}, s{sTMP}, 448
    s_and_b32 s{sTMP}, s{sCOL}, 1
    s_mul_i32 s{sTMP}, s{sTMP}, 192
    s_add_u32 s{sBOFF}, s{sBOFF}, s{sTMP}
    s_mul_i32 s{sBR}, s{sWAVE}, 28
    s_lshl_b32 s{sTMP}, s{sROT}, 6
    s_add_u32 s{sBR}, s{sBR}, s{sTMP}
    s_mul_i32 s{sMB}, s{sWAVE}, 7168
    v_and_b32 v{vT}, 31, v{vLANE}
    v_lshrrev_b32 v{vT+1}, 5, v{vLANE}
    v_bfe_u32 v{vT+2}, v{vLANE}, 1, 3
    v_xor_b32 v{vT+1}, v{vT+1}, v{vT+2}
    v_lshlrev_b32 v{vT+1}, 4, v{vT+1}
    v_lshl_add_u32 v{vSX}, v{vT}, 7, v{vT+1}
    v_add_u32 v{vSX}, s{sMX}, v{vSX}
    v_mov_b32 v{vT}, 0
    """)
    a("s_branch ld_post")
    a.label("ld_isb")
    a(f"s_add_u32 m0, s{sSLW}, s{sMB}")
    for i in range(7):
        a(f"""
        s_cmp_ge_u32 s{sBR}, 448
        s_cselect_b32 s{sTMP}, 448, 0
        s_sub_u32 s{sBR}, s{sBR}, s{sTMP}
        s_mul_i32 s{sTMP}, s{sBR}, 3584
        s_add_u32 s{sTMP}, s{sTMP}, s{sBOFF}
        buffer_load_dwordx4 v{vB1}, {sr(sCc,4)}, s{sTMP} offen lds
        s_add_u32 s{sBR}, s{sBR}, {4 if i < 6 else 88}
        """)
        if i < 6: a("s_add_u32 m0, m0, 1024")
    a.label("ld_post")
    a(f"""
    s_add_u32 s{sSLW}, s{sSLW}, {SLOT}
    s_cmp_ge_u32 s{sSLW}, {CTL}
    s_cselect_b32 s{sSLW}, {SL0}, s{sSLW}
    s_cmp_lt_u32 s{sIT}, {LDD}
    s_cbranch_scc1 ld_next
    ds_read_b32 v{vT+4}, v{vPR} offset:{CP - CTL}
    s_sub_u32 s{sTMP}, s{sIT}, {LDD}
    s_add_u32 s{sTMP2}, s{sTMP}, 1
    v_mov_b32 v{vT}, s{sTMP2}
    v_add_u32 v{vAX}, s{sSLS}, v{vSX}
    v_xor_b32 v{vAX+1}, 32, v{vAX}
    v_xor_b32 v{vAX+2}, 64, v{vAX}
    v_xor_b32 v{vAX+3}, 96, v{vAX}
    s_add_u32 s{sSLS}, s{sSLS}, {SLOT}
    s_cmp_ge_u32 s{sSLS}, {CTL}
    s_cselect_b32 s{sSLS}, {SL0}, s{sSLS}
    """)
    for c in range(7):
        a(f"s_cmp_lg_u32 s{sTMP}, {c}")
        a(f"s_cbranch_scc1 ld_sv{c+1}")
        a(f"s_waitcnt vmcnt({7*LDD})")
        for i in range(4):
            a(f"ds_read_b128 {vr(vXB+16*c+4*i,4)}, v{vAX+i}")
        a("s_branch ld_sig")
        a.label(f"ld_sv{c+1}")
    a(f"s_waitcnt vmcnt({7*LDD})")
    a.label("ld_sig")
    a(f"ds_write_b32 v{vPW}, v{vT} offset:{LP - CTL}")
    a.label("ld_next")
    if env("STL", 0) & 1: stamp_dyn(a, 20, sIT)
    a(f"""
    s_add_u32 s{sIT}, s{sIT}, 1
    s_cmp_lt_u32 s{sIT}, 11
    s_cbranch_scc1 ld_loop
    """)
    stamp(a, 4)
    for k in range(LDD - 1, 0, -1):
        a(f"s_waitcnt vmcnt({7*k})")
        prog_set(a, vT, LP, 11 - k)

def gen_comp(a):
    vHH, vHHI, vMASK, vCONST, vXR, vXRC = 3, 4, 5, 6, 7, 8
    vNM, vRSTD, vA = 12, 13, 14
    vPG = 15
    vTB = 17
    vTG = 18
    vTN = 20
    vCP = 33
    vTC = 21
    vS0 = 25
    vCSR, vT1, vSEL = 35, 16, 28
    vZ = 36
    vFR = [40, 60]
    vACC = 80
    vXB = 144
    sDST, sSCL, sCSO = sR, sR+4, sR+8
    sRELU, sPASS, sSLOT, sONE, sIDX = sR+12, sR+13, sR+14, sR+15, sR+16
    if env("CPF", 0):
        a(f"""
        s_cmp_ge_u32 s{sSL}, {env("CPF", 0)}
        s_cbranch_scc1 cpf_skip
        s_getpc_b64 s[72:73]
        """)
        a.label("cpf_base")
        a(f"""
        s_sub_u32 s72, s72, cpf_base-{NAME}_kernel
        s_subb_u32 s73, s73, 0
        v_lshlrev_b32 v3, 7, v{vLANE}
        s_lshl_b32 s{sTMP}, s{sWAVE}, 13
        v_add_u32 v3, s{sTMP}, v3
        v_min_u32 v3, k_end-{NAME}_kernel, v3
        global_load_dword v79, v3, s[72:73]
        """)
        a.label("cpf_skip")
    a("""
    s_waitcnt lgkmcnt(0)
    s_barrier
    """)
    set_srd(a, sCc, pDBG, 256)
    set_srd(a, sA, pX, S*D*2)
    set_srd(a, sB, pW2, DFF*D*2)
    stamp(a, 1)
    a(f"""
    s_or_b32 s{sTMP}, s2, s{sWAVE}
    s_cmp_lg_u32 s{sTMP}, 0
    s_cbranch_scc1 c_notag
    s_memrealtime s[{sTAG}:{sTAG+1}]
    s_waitcnt lgkmcnt(0)
    s_or_b32 s{sTAG}, s{sTAG}, 1
    s_or_b32 s{sTAG+1}, s{sTAG+1}, 0x40000000
    v_mov_b32 v{vTG}, s{sTAG}
    v_mov_b32 v{vTG+1}, s{sTAG+1}
    buffer_store_dwordx2 {vr(vTG,2)}, v{vF0}, {sr(sCc,4)}, 0 offen sc1
    """)
    a.label("c_notag")
    a(f"v_mov_b32 v{vTB}, {OOB:#x}")
    dry_by_wave(a, [["c_epi"], ["c_epi2"], ["c_posta", "c_epi_end"], ["c_passb"]], "dw1")
    stamp(a, 2)
    a(f"""
    v_lshrrev_b32 v{vHH}, 5, v{vLANE}
    v_bfe_u32 v{vS0+1}, v{vLANE}, 2, 2
    v_bfe_u32 v{vS0+2}, v{vLANE}, 4, 1
    v_and_b32 v{vS0+3}, 3, v{vLANE}
    v_lshlrev_b32 v{vS0+2}, 5, v{vS0+2}
    v_lshl_add_u32 v{vS0+2}, v{vS0+3}, 3, v{vS0+2}
    v_lshl_add_u32 v{vS0+4}, v{vHH}, 3, v{vS0+1}
    s_movk_i32 s{sTMP}, 192
    v_mad_u32_u24 v{vTB}, v{vS0+4}, s{sTMP}, v{vS0+2}
    s_and_b32 s{sTMP}, s{sCOL}, 1
    s_lshl_b32 s{sTMP}, s{sTMP}, 3
    s_add_u32 s{sTMP}, s{sTMP}, 16384
    v_add_u32 v{vTB}, s{sTMP}, v{vTB}
    v_mov_b32 v{vZ}, 0
    v_mov_b32 v{vZ+1}, 0
    v_mov_b32 v{vZ+2}, 0
    v_mov_b32 v{vZ+3}, 0
    v_and_b32 v{vS0+5}, 31, v{vLANE}
    v_bfe_u32 v{vS0+6}, v{vLANE}, 1, 3
    v_xor_b32 v{vS0+6}, v{vS0+6}, v{vHH}
    v_lshlrev_b32 v{vS0+6}, 4, v{vS0+6}
    v_mfma_f32_32x32x16_bf16 {vr(vACC,16)}, {vr(vZ,4)}, {vr(vZ,4)}, 0
    v_lshl_add_u32 v{vXR}, v{vS0+5}, 7, v{vS0+6}
    s_lshl_b32 s{sTMP}, s{sWAVE}, 12
    v_add_u32 v{vXR}, s{sTMP}, v{vXR}
    v_lshlrev_b32 v{vCSR}, 4, v{vHH}
    v_add_u32 v{vCSR}, {CSA}, v{vCSR}
    v_lshlrev_b32 v{vT1}, 8, v{vS0+4}
    v_mfma_f32_32x32x16_bf16 {vr(vACC+16,16)}, {vr(vZ,4)}, {vr(vZ,4)}, 0
    v_add_u32 v{vT1}, v{vT1}, v{vS0+2}
    v_lshlrev_b32 v{vS0+7}, 6, v{vS0+1}
    v_or_b32 v{vT1}, v{vT1}, v{vS0+7}
    v_mfma_f32_32x32x16_bf16 {vr(vACC+32,16)}, {vr(vZ,4)}, {vr(vZ,4)}, 0
    v_sub_u32 v{vHHI}, v{vHH}, 1
    v_sub_u32 v{vHH}, 0, v{vHH}
    v_mov_b32 v{vMASK}, v{vHHI}
    v_and_b32 v{vCONST}, 0x3f80, v{vHH}
    s_mov_b32 s{sRELU}, 0x80008000
    s_mov_b32 s{sONE}, 0x3f803f80
    s_mov_b32 s{sIT}, 1
    s_mov_b32 s{sSLOT}, {SL0 + 4*SLOT}
    s_mov_b32 s{sIDX}, 0
    s_mul_i32 s{sTMP2}, s{sCOL}, 3
    s_cmp_eq_u32 s{sWAVE}, 3
    s_cselect_b32 s{sTMP3}, 0, s{sWAVE}
    v_mov_b32 v{vS0}, v{vTB}
    """)
    for j in range(3):
        a(f"""
        s_add_u32 s{sTMP}, s{sTMP2}, s{sTMP3}
        s_cmp_lt_u32 s{sTMP}, 16
        s_cselect_b32 s{sSCL+j}, {f32bits(QSCALE):#x}, 1.0
        s_cselect_b32 s{sIDX}, 11, 12
        s_cselect_b32 s{sSPIN}, 0, {KF_OFF}
        s_cmp_ge_u32 s{sTMP}, 32
        s_cselect_b32 s{sSPIN}, {KF_OFF + 2048}, s{sSPIN}
        s_and_b32 s{sTMP}, s{sTMP}, 15
        s_lshl_b32 s{sTMP}, s{sTMP}, 6
        s_add_u32 s{sTMP}, s{sTMP}, s{sMT32}
        s_lshl_b32 s{sTMP}, s{sTMP}, s{sIDX}
        s_add_u32 s{sDST+j}, s{sTMP}, s{sSPIN}
        s_lshl_b32 s{sCSO+j}, s{sTMP3}, 7
        s_mul_i32 s{sTMP}, s{sTMP3}, 56
        v_add_u32 v{vTB+j}, s{sTMP}, v{vS0}
        s_add_u32 s{sTMP3}, s{sTMP3}, 1
        s_cmp_eq_u32 s{sTMP3}, 3
        s_cselect_b32 s{sTMP3}, 0, s{sTMP3}
        v_add_u32 v{vTC+j}, s{sSLOT}, v{vTB+j}
        """)
    a(f"""
    s_mov_b32 s{sCSO+3}, 0
    s_mov_b32 s{sPASS}, 1
    v_add_u32 v{vXRC}, s{sSLOT}, v{vXR}
    v_mov_b32 v{vCP}, 0
    v_mov_b32 v{vCP+1}, 0
    v_and_b32 v{vS0}, 0x13, v{vLANE}
    v_cmp_ne_u32 vcc, 0x13, v{vS0}
    v_and_b32 v{vS0+1}, 7, v{vLANE}
    v_mul_u32_u24 v{vS0+1}, {4*192}, v{vS0+1}
    v_cndmask_b32 v{vSEL}, 0, 1, vcc
    v_lshrrev_b32 v{vS0+2}, 1, v{vLANE}
    v_and_b32 v{vS0+2}, 3, v{vS0+2}
    v_mul_u32_u24 v{vS0+2}, {8*192}, v{vS0+2}
    v_add_u32 v{vS0+1}, v{vS0+1}, v{vS0+2}
    v_mov_b32 v{vS0+5}, s{sONE}
    v_mov_b32 v{vS0+6}, s{sONE}
    ds_write_b64 v{vS0+1}, {vr(vS0+5,2)}
    v_mul_u32_u24 v{vTB+1}, v{vSEL}, v{vTB+1}
    v_mad_u32_u24 v{vTC+1}, v{vSEL}, s{sSLOT}, v{vTB+1}
    """)
    for i in range(4, 8):
        a(f"v_mov_b32 v{vS0+i}, 0")
    prog_wait(a, vPG, LP, env("AWAIT", 1))
    a(f"s_setprio {env('XPRIO', 3)}")
    stamp(a, 3)
    vCB = [128, 192]
    def reads(st):
        ops = []
        for q in range(4):
            f = vCB[st] + 16*q
            if q == 0:
                ops.append(f"ds_read_b128 {vr(f+12,4)}, v{vXRC}")
            else:
                ops.append(f"v_xor_b32 v{vTN}, {32*q}, v{vXRC}\nds_read_b128 {vr(f+12,4)}, v{vTN}")
            for j in range(3):
                for p in range(2):
                    ops.append(f"ds_read_b64_tr_b16 {vr(f+4*j+2*p,2)}, v{vTC+j} offset:{(16*q+4*p)*192}")
        return ops
    r0 = reads(0)
    for i, op in enumerate(r0):
        a(op)
        if i == 13: a("s_waitcnt lgkmcnt(0)")
    a.raw(".p2align 6")
    a.label("c_loopa")
    def half(st):
        a("s_waitcnt lgkmcnt(0)")
        if env("STL", 0) & 2: stamp_dyn(a, 22, sIT)
        a(f"""
        v_mov_b32 v{vTC+3}, s{sIT}
        s_add_u32 s{sSLOT}, s{sSLOT}, {SLOT}
        ds_write_b32 v{vPW}, v{vTC+3} offset:{CP - CTL}
        s_cmp_ge_u32 s{sSLOT}, {CTL}
        s_cselect_b32 s{sSLOT}, {SL0}, s{sSLOT}
        v_add_u32 v{vXRC}, s{sSLOT}, v{vXR}
        v_add_u32 v{vTC}, s{sSLOT}, v{vTB}
        v_mad_u32_u24 v{vTC+1}, v{vSEL}, s{sSLOT}, v{vTB+1}
        v_add_u32 v{vTC+2}, s{sSLOT}, v{vTB+2}
        ds_read_b32 v{vPG}, v{vPR} offset:{LP - CTL}
        """)
        for q in range(4):
            f = vCB[st] + 16*q
            for i in range(4):
                a(f"v_dot2c_f32_bf16 v{vCP+(i&1)}, s{sONE}, v{f+i}")
                a(f"v_dot2c_f32_bf16 v{vS0+4+i}, v{f+12+i}, v{f+12+i}")
        f0 = vCB[st]
        a(f"v_mfma_f32_32x32x16_bf16 {vr(vACC,16)}, {vr(f0,4)}, {vr(f0+12,4)}, {vr(vACC,16)}")
        a(f"""
        s_waitcnt lgkmcnt(0)
        v_cmp_ge_u32 vcc, s{sIT}, v{vPG}
        s_cbranch_vccnz c_la_slow{st}
        """)
        a.label(f"c_la_back{st}")
        nx = reads(1 - st)
        for _ in range(2): a(nx.pop(0))
        k = 0
        for q in range(4):
            f = vCB[st] + 16*q
            for j in range(3):
                if q == 0 and j == 0: continue
                a(f"v_mfma_f32_32x32x16_bf16 {vr(vACC+16*j,16)}, {vr(f+4*j,4)}, {vr(f+12,4)}, {vr(vACC+16*j,16)}")
                if k == 4 or k == 7: a("s_waitcnt lgkmcnt(5)")
                for _ in range(3):
                    if nx: a(nx.pop(0))
                k += 1
        assert not nx
        a(f"s_add_u32 s{sIT}, s{sIT}, 1")
    half(0)
    if DRY: a("s_cbranch_execz c_loopa2")
    a(f"""
    s_cmp_eq_u32 s{sIT}, 8
    s_cbranch_scc1 c_posta
    """)
    a.label("c_loopa2")
    half(1)
    dry_end(a)
    a("s_branch c_loopa")
    a.label("c_posta")
    stamp(a, 4)
    a(f"buffer_load_dwordx2 {vr(vTG,2)}, v{vF0}, {sr(sCc,4)}, 0 offen sc1")
    a(f"""
    v_add_f32 v{vCP}, v{vCP}, v{vCP+1}
    v_add_f32 v{vS0+4}, v{vS0+4}, v{vS0+5}
    v_add_f32 v{vS0+6}, v{vS0+6}, v{vS0+7}
    v_mov_b32 v{vCP+1}, v{vCP}
    v_and_b32 v{vS0+2}, 31, v{vLANE}
    v_lshlrev_b32 v{vS0+2}, 2, v{vS0+2}
    v_permlane32_swap_b32 v{vCP}, v{vCP+1}
    v_add_f32 v{vS0+4}, v{vS0+4}, v{vS0+6}
    v_add_u32 v{vS0+2}, s{sCSO}, v{vS0+2}
    v_add_f32 v{vCP}, v{vCP}, v{vCP+1}
    v_add_u32 v{vS0+2}, {CSA}, v{vS0+2}
    v_mov_b32 v{vS0+5}, v{vS0+4}
    ds_write_b32 v{vS0+2}, v{vCP}
    v_mov_b32 v{vS0+6}, 8
    ds_write_b32 v{vPW}, v{vS0+6} offset:{CP - CTL}
    v_mov_b32 v{vS0}, v{vACC+16+12}
    v_mov_b32 v{vS0+1}, v{vACC+16+12}
    v_permlane32_swap_b32 v{vS0+4}, v{vS0+5}
    s_nop 0
    v_permlane32_swap_b32 v{vS0}, v{vS0+1}
    v_add_f32 v{vS0+4}, v{vS0+4}, v{vS0+5}
    v_mul_f32 v{vS0+4}, {f32bits(1.0/D):#x}, v{vS0+4}
    v_mul_f32 v{vNM}, {f32bits(-1.0/D):#x}, v{vS0+1}
    v_fma_f32 v{vS0+4}, -v{vNM}, v{vNM}, v{vS0+4}
    v_max_f32 v{vS0+4}, 0, v{vS0+4}
    v_add_f32 v{vS0+4}, {f32bits(1e-5):#x}, v{vS0+4}
    v_rsq_f32 v{vRSTD}, v{vS0+4}
    s_lshl_b32 s{sTMP}, s{sWAVE}, 8
    s_add_u32 s{sTMP}, s{sTMP}, {STA}
    v_and_b32 v{vS0+2}, 31, v{vLANE}
    v_lshlrev_b32 v{vS0+2}, 3, v{vS0+2}
    v_add_u32 v{vS0+2}, s{sTMP}, v{vS0+2}
    ds_write_b64 v{vS0+2}, {vr(vNM,2)}
    """)
    prog_wait(a, vPG, CP, 8, sleep=0)
    dry_end(a)
    a.label("c_epi")
    vCS2 = [vFR[0], vFR[0] + 16]
    def cs_read(j):
        a(f"v_add_u32 v{vXRC}, s{sCSO+j}, v{vCSR}")
        for g in range(4):
            a(f"ds_read_b128 {vr(vCS2[j%2]+4*g,4)}, v{vXRC} offset:{32*g}")
    cs_read(0)
    for j in range(4):
        acc = vACC + 16*j
        cs = vCS2[j % 2]
        if j == 2:
            dry_end(a)
            a.label("c_epi2")
        if j < 3:
            cs_read(j + 1)
            a("s_waitcnt lgkmcnt(4)")
        else:
            a("s_waitcnt lgkmcnt(0)")
        if env("STL", 0) & 4 and j < 3: stamp(a, 10 + j)
        a(f"v_mul_f32 v{vA}, s{sSCL+j}, v{vRSTD}")
        for i in range(16):
            a(f"v_fmac_f32 v{acc+i}, v{cs+i}, v{vNM}")
        for i in range(16):
            a(f"v_mul_f32 v{acc+i}, v{vA}, v{acc+i}")
        for i in range(8):
            a(f"v_cvt_pk_bf16_f32 v{acc+i}, v{acc+2*i}, v{acc+2*i+1}")
        for i in range(8):
            a(f"v_pk_max_i16 v{acc+i}, v{acc+i}, s{sRELU}")
            if i == 5:
                a(f"buffer_store_dwordx4 {vr(acc,4)}, v{vL16}, {sr(sWS,4)}, s{sDST+j} offen sc1")
        a(f"v_and_or_b32 v{acc+6}, v{acc+6}, v{vMASK}, v{vCONST}")
        a(f"v_and_b32 v{acc+7}, v{acc+7}, v{vMASK}")
        a(f"buffer_store_dwordx4 {vr(acc+4,4)}, v{vL16}, {sr(sWS,4)}, s{sDST+j} offen offset:1024 sc1")
        if j == 2:
            if DRY: a("s_cbranch_execz c_epi3")
            a(f"s_cmp_eq_u32 s{sPASS}, 1")
            a("s_cbranch_scc1 c_epi_end")
            a.label("c_epi3")
    a("s_nop 1")
    for j in range(4):
        a(f"v_mfma_f32_32x32x16_bf16 {vr(vACC+16*j,16)}, {vr(vZ,4)}, {vr(vZ,4)}, 0")
    dry_end(a)
    a("s_branch c_done")
    a.label("c_epi_end")
    prog_set(a, vS0, CP, 9)
    stamp(a, 5)
    a(f"""
    s_mul_i32 s{sTMP}, s{sCOL}, 3
    s_lshr_b32 s{sTMP2}, s{sMT32}, 2
    v_lshrrev_b32 v{vS0+1}, 4, v{vLANE}
    v_add_u32 v{vS0+1}, s{sTMP}, v{vS0+1}
    v_and_b32 v{vS0+2}, 15, v{vS0+1}
    v_lshrrev_b32 v{vS0+1}, 4, v{vS0+1}
    v_and_b32 v{vS0+3}, 15, v{vLANE}
    v_lshl_add_u32 v{vS0+2}, v{vS0+2}, 4, v{vS0+3}
    v_lshlrev_b32 v{vS0+2}, 9, v{vS0+2}
    v_lshlrev_b32 v{vTB}, 4, v{vS0+1}
    v_add_u32 v{vTB}, s{sTMP2}, v{vTB}
    v_lshl_add_u32 v{vTB}, v{vTB}, 3, v{vS0+2}
    v_add_u32 v{vTB}, {F1_OFF}, v{vTB}
    v_cmp_eq_u32 vcc, 0, v{vS0+1}
    v_cmp_ne_u32 s[72:73], s{sTMP2}, v{vS0+3}
    s_and_b64 vcc, vcc, s[72:73]
    v_cmp_lt_u32 s[72:73], 47, v{vLANE}
    s_or_b64 vcc, vcc, s[72:73]
    v_mov_b32 v{vS0+1}, {OOB:#x}
    s_nop 0
    v_cndmask_b32 v{vTB}, v{vTB}, v{vS0+1}, vcc
    """)
    dry_end(a)
    a("s_branch x_attn")
    ROLE[0] = "Y"
    a.label("c_passb")
    a(f"s_setprio {env('CPRIO', 2)}")
    set_srd(a, sCc, pDBG, 256)
    a(f"""
    s_waitcnt lgkmcnt(0)
    buffer_load_dwordx2 {vr(vTG,2)}, v{vF0}, {sr(sCc,4)}, 0 offen sc1
    v_lshrrev_b32 v{vHH}, 5, v{vLANE}
    v_bfe_u32 v{vS0+1}, v{vLANE}, 2, 2
    v_bfe_u32 v{vS0+2}, v{vLANE}, 4, 1
    v_and_b32 v{vS0+3}, 3, v{vLANE}
    v_lshlrev_b32 v{vS0+2}, 5, v{vS0+2}
    v_lshl_add_u32 v{vS0+2}, v{vS0+3}, 3, v{vS0+2}
    v_lshl_add_u32 v{vS0+4}, v{vHH}, 3, v{vS0+1}
    v_mov_b32 v{vZ}, 0
    v_mov_b32 v{vZ+1}, 0
    v_mov_b32 v{vZ+2}, 0
    v_mov_b32 v{vZ+3}, 0
    v_lshlrev_b32 v{vCSR}, 4, v{vHH}
    v_add_u32 v{vCSR}, {CSA}, v{vCSR}
    v_lshlrev_b32 v{vT1}, 8, v{vS0+4}
    v_add_u32 v{vT1}, v{vT1}, v{vS0+2}
    v_lshlrev_b32 v{vS0+7}, 6, v{vS0+1}
    v_or_b32 v{vT1}, v{vT1}, v{vS0+7}
    s_lshl_b32 s{sTMP}, s{sWAVE}, 6
    v_xor_b32 v{vT1}, s{sTMP}, v{vT1}
    s_mov_b32 s{sONE}, 0x3f803f80
    """)
    for b in range(4):
        a(f"v_mfma_f32_32x32x16_bf16 {vr(vACC+16*b,16)}, {vr(vZ,4)}, {vr(vZ,4)}, 0")
        a(f"v_mov_b32 v{vS0+4+b}, 0")
        a(f"v_xor_b32 v{vTC+b}, {b << 6}, v{vT1}")
        a(f"v_add_u32 v{vTC+b}, {WB}, v{vTC+b}")
    prog_wait(a, vPG, LP, 10)
    stamp(a, 7)
    def rdB(step, b):
        f = vFR[step % 2]
        for p in range(2):
            a(f"ds_read_b64_tr_b16 {vr(f+4*b+2*p,2)}, v{vTC+b} offset:{4096*step + 1024*p}")
    def fetchx(step, i0):
        f = vFR[step % 2]
        a(f"s_set_gpr_idx_on s{sIDX}, gpr_idx(SRC0)")
        for i in range(i0, i0 + 2):
            a(f"v_mov_b32 v{f+16+i}, v{vXB+4*(step%4)+i}")
        a("s_set_gpr_idx_off")
    a(f"""
    s_mov_b32 s{sIT}, 0
    s_mov_b32 s{sIDX}, 0
    """)
    for b in range(4): rdB(0, b)
    a("s_waitcnt lgkmcnt(4)")
    for b in range(4): rdB(1, b)
    fetchx(0, 0); fetchx(0, 2)
    a.raw(".p2align 6")
    a.label("c_loopb")
    a(f"""
    s_bitcmp1_b32 {(1<<2)|(1<<4):#x}, s{sIT}
    s_cbranch_scc1 c_lb_rare
    """)
    a.label("c_lb_go")
    for k in range(4):
        f = vFR[k % 2]
        for b in range(4):
            if b % 2 == 0:
                a("s_waitcnt lgkmcnt(11)")
            if b == 0:
                for i in range(4):
                    a(f"v_dot2c_f32_bf16 v{vS0+4+i}, s{sONE}, v{f+i}")
            a(f"v_mfma_f32_32x32x16_bf16 {vr(vACC+16*b,16)}, {vr(f+4*b,4)}, {vr(f+16,4)}, {vr(vACC+16*b,16)}")
            rdB(k + 2, b)
            if k == 2 and b == 3:
                a(f"s_add_u32 s{sIDX}, s{sIDX}, 16")
                a(f"s_min_u32 s{sIDX}, s{sIDX}, 96")
            if b == 0: fetchx(k + 1, 0)
            if b == 2: fetchx(k + 1, 2)
            if k == 3:
                a(f"v_add_u32 v{vTC+b}, 16384, v{vTC+b}")
    dry_end(a)
    a(f"""
    s_add_u32 s{sIT}, s{sIT}, 1
    s_cmp_lt_u32 s{sIT}, 7
    s_cbranch_scc1 c_loopb
    s_waitcnt lgkmcnt(0)
    """)
    stamp(a, 6)
    a(f"""
    v_add_f32 v{vS0+4}, v{vS0+4}, v{vS0+5}
    v_add_f32 v{vS0+6}, v{vS0+6}, v{vS0+7}
    v_and_b32 v{vS0+2}, 31, v{vLANE}
    v_add_f32 v{vS0+4}, v{vS0+4}, v{vS0+6}
    v_lshlrev_b32 v{vS0+2}, 2, v{vS0+2}
    v_mov_b32 v{vS0+5}, v{vS0+4}
    s_lshl_b32 s{sTMP}, s{sWAVE}, 7
    s_add_u32 s{sTMP}, s{sTMP}, {CSB_}
    v_permlane32_swap_b32 v{vS0+4}, v{vS0+5}
    v_add_u32 v{vS0+2}, s{sTMP}, v{vS0+2}
    s_nop 0
    v_add_f32 v{vS0+4}, v{vS0+4}, v{vS0+5}
    ds_write_b32 v{vS0+2}, v{vS0+4}
    """)
    prog_set(a, vS0, SP, 2)
    a(f"""
    s_lshr_b32 s{sTMP}, s{sCOL}, 1
    s_mul_i32 s{sTMP}, s{sTMP}, 7
    s_and_b32 s{sTMP2}, s{sCOL}, 1
    s_mul_i32 s{sTMP2}, s{sTMP2}, 3
    s_add_u32 s{sTMP}, s{sTMP}, s{sTMP2}
    s_mul_i32 s{sTMP2}, s{sMT32}, 72
    s_add_u32 s{sTMP}, s{sTMP}, s{sTMP2}
    s_lshl_b32 s{sTMP}, s{sTMP}, 11
    s_add_u32 s{sTMP}, s{sTMP}, {HF_OFF}
    s_mov_b32 s{sRELU}, 0
    v_mov_b32 v{vMASK}, -1
    v_mov_b32 v{vCONST}, 0
    s_mov_b32 s{sPASS}, 2
    """)
    for j in range(4):
        a(f"""
        s_mov_b32 s{sSCL+j}, 1.0
        s_xor_b32 s{sTMP2}, s{sWAVE}, {j}
        s_lshl_b32 s{sTMP3}, s{sTMP2}, 7
        s_add_u32 s{sCSO+j}, s{sTMP3}, 512
        s_lshl_b32 s{sTMP2}, s{sTMP2}, 11
        s_add_u32 s{sDST+j}, s{sTMP}, s{sTMP2}
        """)
    a(f"""
    v_readfirstlane_b32 s{sTAG}, v{vTG}
    v_readfirstlane_b32 s{sTAG+1}, v{vTG+1}
    s_min_u32 s{sTMP}, s{sTAG}, s{sTAG+1}
    s_cmp_lg_u32 s{sTMP}, 0
    s_cbranch_scc1 c_lb_tag2
    """)
    get_tag(a, vS0+1)
    a.label("c_lb_tag2")
    prog_wait(a, vPG, CP, 9)
    a(f"""
    s_lshl_b32 s{sTMP}, s{sWAVE}, 8
    s_add_u32 s{sTMP}, s{sTMP}, {STA}
    v_and_b32 v{vS0+2}, 31, v{vLANE}
    v_lshlrev_b32 v{vS0+2}, 3, v{vS0+2}
    v_add_u32 v{vS0+2}, s{sTMP}, v{vS0+2}
    ds_read_b64 {vr(vNM,2)}, v{vS0+2}
    """)
    prog_wait(a, vPG, SP, 2, sleep=0)
    stamp(a, 11)
    a("s_branch c_epi")
    for st in range(2):
        a.label(f"c_la_slow{st}")
        a(f"""
        s_cmp_eq_u32 s{sIT}, 7
        s_cbranch_scc1 c_la_back{st}
        s_add_u32 s{sTMP3}, s{sIT}, 1
        """)
        prog_wait(a, vPG, LP, f"s{sTMP3}", sleep=env("ASLEEP", 1))
        a(f"s_branch c_la_back{st}")
    a.label("c_lb_rare")
    a(f"""
    s_cmp_lg_u32 s{sIT}, 2
    s_cbranch_scc1 c_lb_r1
    """)
    prog_set(a, vS0, SP, 1)
    a("s_waitcnt vmcnt(0)")
    prog_set(a, vS0+1, LP, 11)
    a("s_waitcnt lgkmcnt(0)")
    a("s_branch c_lb_go")
    a.label("c_lb_r1")
    prog_wait(a, vPG, LP, 11)
    stamp(a, 10)
    a("s_branch c_lb_go")
    a.label("c_done")
    stamp(a, 12)

from mk2 import gen_attn, gen_gemm2

def build():
    hdr = open("cdna_kernels/" + NAME + ".s.ref").read().split("\n")
    out = [l for l in hdr if l.startswith(";") and "@launch" not in l]
    body = Asm()
    body.raw(".p2align 8")
    d = gen(body)
    out.append(f"; @launch grid=({d['grid']},1,1) block=({d['block']},1,1) lds={d['lds']}")
    out.append('.amdgcn_target "amdgcn-amd-amdhsa--gfx950"')
    out.append("""; One persistent kernel, 256 workgroups x 8 waves (generated by a python script, hand-scheduled).
;  per-consumer mailboxes in d_ws; consumers poll and read the data with sc1 loads.""")
    out.append(".text")
    out.append(f".globl {d['name']}")
    out.append(f".type {d['name']},@function")
    txt = "\n".join(out) + "\n" + body.text()
    txt += '.section .rodata,"a"\n.p2align 6\n' + kernel_desc(d['name'], d['nvgpr'], d['accum'])
    return txt
```

```python
import os
from asmlib import *
from mk import *

def reduce_write(a, vACC, vWA, sBASE, js=4096):
    a(f"v_add_u32 v{vWA}, s{sBASE}, v{vL16}")
    for j in range(1, 4):
        for g in range(4):
            a(f"ds_write_b128 v{vWA}, {vr(vACC+16*j+4*g,4)} offset:{(j-1)*js+g*1024}")
def reduce_read(a, vACC, vT, vRA, region0, js=4096, wsh=14):
    for j in range(1, 4):
        a(f"""
        s_xor_b32 s{sTMP}, s{sWAVE}, {j}
        s_lshl_b32 s{sTMP}, s{sTMP}, {wsh}
        s_add_u32 s{sTMP}, s{sTMP}, {region0 + (j-1)*js}
        v_add_u32 v{vRA}, s{sTMP}, v{vL16}
        """)
        for g in range(4):
            a(f"ds_read_b128 {vr(vT+16*(j-1)+4*g,4)}, v{vRA} offset:{g*1024}")
    for j in range(3):
        for g in range(4):
            a(f"s_waitcnt lgkmcnt({11 - (4*j+g)})")
            for r in range(4):
                i = 4*g + r
                a(f"v_add_f32 v{vACC+i}, v{vACC+i}, v{vT+16*j+i}")

def gen_attn(a):
    sHEAD, sQB, sKV, sRD, sWR, sLB, sFB, sMK = sR, sR+1, sR+2, sR+3, sR+4, sR+5, sR+6, sR+7
    vKB = 212
    vKA, vVA, vKAb, vVAb, vHH, vHHI, vT0 = 3, 4, 5, 6, 7, 8, 12
    vQ = 16; vO = 48; vS = [112, 128]; vP = [144, 152]; vK = [160, 168]; vV = [176, 184]; vNM = 192
    vFA = 208
    a(f"""
    s_and_b32 s{sHEAD}, s{sSL}, 1
    s_lshl_b32 s{sTMP}, s{sXCD}, 1
    s_add_u32 s{sHEAD}, s{sHEAD}, s{sTMP}
    s_lshr_b32 s{sQB}, s{sSL}, 1
    s_lshl_b32 s{sKV}, s{sHEAD}, 18
    s_add_u32 s{sKV}, s{sKV}, {KF_OFF}
    s_lshl_b32 s{sLB}, s{sWAVE}, 12
    v_lshrrev_b32 v{vHH}, 5, v{vLANE}
    v_add_u32 v{vKAb}, s{sLB}, v{vL16}
    v_bfe_u32 v{vT0}, v{vLANE}, 4, 1
    v_lshlrev_b32 v{vVAb}, 10, v{vT0}
    v_and_b32 v{vT0}, 1, v{vLANE}
    v_lshl_add_u32 v{vVAb}, v{vT0}, 9, v{vVAb}
    v_bfe_u32 v{vT0}, v{vLANE}, 1, 1
    v_lshl_add_u32 v{vVAb}, v{vT0}, 3, v{vVAb}
    v_bfe_u32 v{vT0}, v{vLANE}, 2, 2
    v_lshl_add_u32 v{vT0}, v{vHH}, 2, v{vT0}
    v_lshl_add_u32 v{vVAb}, v{vT0}, 4, v{vVAb}
    v_add_u32 v{vVAb}, s{sLB}, v{vVAb}
    v_add_u32 v{vVAb}, 2048, v{vVAb}
    v_sub_u32 v{vHHI}, v{vHH}, 1
    v_sub_u32 v{vHH}, 0, v{vHH}
    """)
    a(f"""
    s_lshl_b32 s{sTMP}, s{sHEAD}, 4
    s_add_u32 s{sTMP}, s{sTMP}, s{sQB}
    s_lshl_b32 s{sTMP}, s{sTMP}, 9
    s_add_u32 s{sTMP}, s{sTMP}, {F1_OFF}
    s_lshl_b32 s{sTMP2}, s{sQB}, 3
    s_add_u32 s{sTMP2}, s{sTMP2}, s{sTMP}
    v_and_b32 v{vFA}, 1, v{vLANE}
    v_lshlrev_b32 v{vFA}, 7, v{vFA}
    v_add_u32 v{vFA}, s{sTMP2}, v{vFA}
    s_lshl_b32 s{sTMP2}, s{sWAVE}, 5
    s_add_u32 s{sTMP2}, s{sTMP2}, s{sTMP}
    s_add_u32 s{sTMP2}, s{sTMP2}, 128
    v_bfe_u32 v{vFA+1}, v{vLANE}, 2, 1
    v_lshlrev_b32 v{vFA+1}, 7, v{vFA+1}
    v_and_b32 v{vT0}, 3, v{vLANE}
    v_lshl_add_u32 v{vFA+1}, v{vT0}, 3, v{vFA+1}
    s_mov_b64 exec, 0xff
    v_add_u32 v{vFA}, s{sTMP2}, v{vFA+1}
    s_mov_b64 exec, -1
    """)
    mb23_addr(a, vFA+2, sQB, sHEAD, F3_OFF)
    a(f"v_mov_b32 v{vKA}, v{vKAb}")
    a(f"v_mov_b32 v{vVA}, v{vVAb}")
    a("s_waitcnt lgkmcnt(0)")
    for i in range(8):
        a(f"v_mov_b32 v{vP[1]+i}, 0")
        a(f"v_mov_b32 v{vV[1]+i}, 0")
    stamp(a, 8)
    a(f"""
    s_lshl_b32 s{sTMP}, s{sWAVE}, 16
    s_add_u32 s{sTMP}, s{sKV}, s{sTMP}
    v_add_u32 v{vKB}, s{sTMP}, v{vL16}
    s_mul_i32 s{sWR}, s{sQB}, {4096*env("ROTA", 1)}
    s_mov_b32 s{sMK}, 0xffff
    s_waitcnt vmcnt(0)
    v_readfirstlane_b32 s{sTAG}, v18
    v_readfirstlane_b32 s{sTAG+1}, v19
    s_min_u32 s{sTMP}, s{sTAG}, s{sTAG+1}
    s_cmp_lg_u32 s{sTMP}, 0
    s_cbranch_scc1 a_tagok
    """)
    get_tag(a, vT0+2)
    a.label("a_tagok")
    publish_flag(a, vT0+2, 17, 0)
    stamp(a, 9)
    a(f"s_setprio {env('APRIO', 1)}")
    prog_wait(a, vT0, LP, 7)
    if env("PFW", 0):
        set_srd(a, sA, pW2, DFF*D*2)
        set_srd(a, sB, pWO, D*D*2)
        a(f"""
        s_lshl_b32 s{sTMP}, s{sSL}, 2
        s_add_u32 s{sTMP}, s{sTMP}, s{sWAVE}
        v_lshlrev_b32 v{vT0}, 7, v{vLANE}
        s_lshl_b32 s{sTMP2}, s{sTMP}, 14
        buffer_load_dword v{vNM}, v{vT0}, {sr(sA,4)}, s{sTMP2} offen sc1
        s_add_u32 s{sTMP2}, s{sTMP2}, 8192
        buffer_load_dword v{vNM+1}, v{vT0}, {sr(sA,4)}, s{sTMP2} offen sc1
        s_lshl_b32 s{sTMP2}, s{sTMP}, 13
        buffer_load_dword v{vNM+2}, v{vT0}, {sr(sB,4)}, s{sTMP2} offen sc1
        """)
    stamp(a, 15)
    if env("F1SLEEP", 0): a(f"s_sleep {env('F1SLEEP', 0)}")
    poll_flags(a, vFA, vT0+2)
    a.label("a_pro")
    stamp(a, 16)
    a(f"""
    s_lshl_b32 s{sTMP}, s{sQB}, 14
    s_add_u32 s{sTMP}, s{sTMP}, s{sKV}
    buffer_load_dwordx4 {vr(vK[1],4)}, v{vL16}, {sr(sWS,4)}, s{sTMP} offen sc1
    buffer_load_dwordx4 {vr(vK[1]+4,4)}, v{vL16}, {sr(sWS,4)}, s{sTMP} offen offset:1024 sc1
    s_lshl_b32 s{sTMP2}, s{sQB}, 2
    s_lshl_b32 s{sTMP3}, s{sHEAD}, 6
    s_add_u32 s{sTMP2}, s{sTMP2}, s{sTMP3}
    """)
    for j in range(4):
        a(f"""
        s_xor_b32 s{sTMP}, s{sWAVE}, {j}
        s_add_u32 s{sTMP}, s{sTMP}, s{sTMP2}
        s_lshl_b32 s{sTMP}, s{sTMP}, 11
        buffer_load_dwordx4 {vr(vQ+8*j,4)}, v{vL16}, {sr(sWS,4)}, s{sTMP} offen sc1
        buffer_load_dwordx4 {vr(vQ+8*j+4,4)}, v{vL16}, {sr(sWS,4)}, s{sTMP} offen offset:1024 sc1
        """)
    stamp(a, 17)
    a(f"""
    s_mov_b32 m0, s{sLB}
    s_nop 0
    """)
    def dma_tile(va=None):
        for i in range(4):
            a(f"buffer_load_dwordx4 v{vKB if va is None else va}, {sr(sWS,4)}, s{sWR} offen offset:{1024*i} sc1 lds")
    def adv():
        a(f"s_add_u32 s{sWR}, s{sWR}, 4096")
        a(f"s_and_b32 s{sWR}, s{sWR}, s{sMK}")
    for t in range(2):
        dma_tile()
        a(f"s_add_u32 m0, m0, 16384")
        adv()
    for t in range(4):
        a(f"s_waitcnt vmcnt({8 + 2*(3-t)})")
        a(f"v_mfma_f32_32x32x16_bf16 {vr(vO+16*t,16)}, {vr(vK[1],4)}, {vr(vQ+8*t,4)}, 0")
        a(f"v_mfma_f32_32x32x16_bf16 {vr(vO+16*t,16)}, {vr(vK[1]+4,4)}, {vr(vQ+8*t+4,4)}, {vr(vO+16*t,16)}")
    a("s_nop 3")
    stamp(a, 18)
    def read_k(st, addr, off=0):
        a(f"ds_read_b128 {vr(vK[st],4)}, v{addr} offset:{off}")
        a(f"ds_read_b128 {vr(vK[st]+4,4)}, v{addr} offset:{off+1024}")
    def read_v_ins(st, addr, off=0):
        return [f"ds_read_b64_tr_b16 {vr(vV[st]+4*s_+2*p,2)}, v{addr} offset:{off+(16*s_+8*p)*16}" for s_ in range(2) for p in range(2)]
    for j in range(4):
        o = vO + 16*j
        if j == 2:
            prog_wait(a, vT0, SP, 1)
            for t in range(2):
                dma_tile()
                if t == 0:
                    a(f"s_add_u32 m0, m0, 16384")
                adv()
        if j == 3:
            a("s_waitcnt vmcnt(12)")
            read_k(0, vKAb)
            for x in read_v_ins(0, vVAb): a(x)
        t = vT0 + (j & 1) * 2
        a(f"v_max3_f32 v{t}, v{o}, v{o+1}, v{o+2}")
        for i in range(3, 15, 2):
            a(f"v_max3_f32 v{t}, v{t}, v{o+i}, v{o+i+1}")
        a(f"v_max_f32 v{t}, v{t}, v{o+15}")
        a(f"v_mov_b32 v{t+1}, v{t}")
        a(f"v_mfma_f32_32x32x16_bf16 {vr(o,16)}, {vr(vP[1],4)}, {vr(vP[1],4)}, 0")
        a("s_nop 0")
        a(f"v_permlane32_swap_b32 v{t}, v{t+1}")
        a("s_nop 1")
        a(f"v_max_f32 v{t}, v{t}, v{t+1}")
        a(f"v_add_f32 v{t}, {f32bits(BIAS - 1.0):#x}, v{t}")
        a(f"v_cvt_pk_bf16_f32 v{t}, -v{t}, 0")
        a(f"v_and_b32 v{t}, v{t}, v{vHH}")
        a(f"v_and_or_b32 v{vQ+8*j+6}, v{vQ+8*j+6}, v{vHHI}, v{t}")
    a(f"""
    s_mov_b32 s{sRD}, 0
    s_mov_b32 s{sIT}, 0
    s_waitcnt lgkmcnt(0)
    """)
    a(f"v_mfma_f32_32x32x16_bf16 {vr(vS[0],16)}, {vr(vK[0],4)}, {vr(vQ,4)}, 0")
    a(f"v_mfma_f32_32x32x16_bf16 {vr(vS[0],16)}, {vr(vK[0]+4,4)}, {vr(vQ+4,4)}, {vr(vS[0],16)}")
    a("s_nop 7")
    a("s_nop 3")
    def body(sl):
        st = sl % 2
        for j in range(4):
            sc = vS[j % 2]; sn = vS[(j + 1) % 2]
            pc = vP[j % 2]; pp = vP[(j + 1) % 2]
            kn = vK[st] if j < 3 else vK[1 - st]
            qn = vQ + 8 * ((j + 1) % 4)
            vv = vV[st] if j > 0 else vV[1 - st]
            op = vO + 16 * ((j + 3) % 4)
            mf = [
                f"v_mfma_f32_32x32x16_bf16 {vr(sn,16)}, {vr(kn,4)}, {vr(qn,4)}, 0",
                f"v_mfma_f32_32x32x16_bf16 {vr(sn,16)}, {vr(kn+4,4)}, {vr(qn+4,4)}, {vr(sn,16)}",
                f"v_mfma_f32_32x32x16_bf16 {vr(op,16)}, {vr(vv,4)}, {vr(pp,4)}, {vr(op,16)}",
                f"v_mfma_f32_32x32x16_bf16 {vr(op,16)}, {vr(vv+4,4)}, {vr(pp+4,4)}, {vr(op,16)}",
            ]
            if j == 3:
                a("s_waitcnt lgkmcnt(0)")
            plan = [[("e", 0), ("e", 1), ("e", 2)], [("e", 3), ("e", 4), ("e", 5)], [("e", 6), ("e", 7), ("e", 8)],
                    [("e", i) for i in range(9, 16)] + [("c", i) for i in range(8)]]
            for g in range(4):
                a(mf[g])
                if j == 0 and g == 2:
                    a(f"s_add_u32 m0, s{sLB}, {16384*sl}")
                if j == 0 and g == 3:
                    dma_tile()
                    adv()
                if j == 1 and g == 3:
                    a("s_waitcnt vmcnt(12)")
                    read_k(1 - st, vKAb, 16384*((sl+1) % 4))
                    for x in read_v_ins(1 - st, vVAb, 16384*((sl+1) % 4)): a(x)
                for kind, i in plan[g]:
                    if kind == "e":
                        a(f"v_exp_f32 v{sc+i}, v{sc+i}")
                    else:
                        a(f"v_cvt_pk_bf16_f32 v{pc+i}, v{sc+2*i}, v{sc+2*i+1}")
    a("s_setprio 1")
    stamp(a, 19)
    dry_end(a)
    a.raw(".p2align 6")
    a.label("a_loop")
    body(0)
    body(1)
    dry_end(a)
    a.label("a_loop2")
    body(2)
    body(3)
    dry_end(a)
    a(f"""
    s_add_u32 s{sIT}, s{sIT}, 1
    s_cmp_eq_u32 s{sIT}, 3
    s_cselect_b32 s{sWR}, {OOB:#x}, s{sWR}
    s_cselect_b32 s{sMK}, -1, s{sMK}
    s_cmp_lt_u32 s{sIT}, 4
    s_cbranch_scc1 a_loop
    """)
    a.label("a_tail")
    stamp(a, 20)
    a("s_setprio 3")
    a("s_nop 1")
    a(f"v_mfma_f32_32x32x16_bf16 {vr(vO+48,16)}, {vr(vV[1],4)}, {vr(vP[1],4)}, {vr(vO+48,16)}")
    a(f"v_mfma_f32_32x32x16_bf16 {vr(vO+48,16)}, {vr(vV[1]+4,4)}, {vr(vP[1]+4,4)}, {vr(vO+48,16)}")
    a("s_waitcnt vmcnt(0)")
    a("s_nop 3")
    reduce_write(a, vO, vT0, sLB, js=16384)
    a("s_waitcnt lgkmcnt(0)")
    prog_set(a, vT0, AP, 1)
    prog_wait(a, vT0, AP, 1, sleep=0)
    reduce_read(a, vO, vS[0], vT0, ATT0, js=16384, wsh=12)
    a(f"s_mov_b32 s{sFB}, 0")
    stamp(a, 21)
    a.label("a_norm")
    a(f"""
    v_mov_b32 v{vT0}, v{vO+12}
    v_mov_b32 v{vT0+1}, v{vO+12}
    s_nop 1
    v_permlane32_swap_b32 v{vT0}, v{vT0+1}
    s_nop 1
    v_rcp_f32 v{vT0}, v{vT0+1}
    v_mov_b32 v{vT0+2}, 0
    """)
    for i in range(16):
        a(f"v_mul_f32 v{vS[0]+i}, v{vO+i}, v{vT0}")
    for i in range(16):
        a(f"v_fma_f32 v{vT0+2}, v{vS[0]+i}, 0, v{vT0+2}")
    a(f"""
    s_mov_b32 s{sTMP}, {f32bits(2.0**-90):#x}
    v_cmp_nle_f32 vcc, s{sTMP}, v{vT0+1}
    s_mov_b32 s{sTMP}, {f32bits(2.0**100):#x}
    v_cmp_nge_f32 s[72:73], s{sTMP}, v{vT0+1}
    v_cmp_u_f32 s[74:75], v{vT0+2}, v{vT0+2}
    s_or_b64 vcc, vcc, s[72:73]
    s_or_b64 vcc, vcc, s[74:75]
    s_cmp_lg_u32 s{sFB}, 0
    s_cbranch_scc1 a_store
    s_cbranch_vccnz a_fallback
    """)
    a.label("a_store")
    for i in range(8):
        a(f"v_cvt_pk_bf16_f32 v{vP[0]+i}, v{vS[0]+2*i}, v{vS[0]+2*i+1}")
    a(f"""
    v_and_b32 v{vP[0]+6}, v{vP[0]+6}, v{vHHI}
    v_and_b32 v{vP[0]+7}, v{vP[0]+7}, v{vHHI}
    s_lshl_b32 s{sTMP3}, s{sQB}, 2
    s_add_u32 s{sTMP3}, s{sTMP3}, s{sWAVE}
    s_mul_i32 s{sTMP}, s{sTMP3}, 144
    s_lshl_b32 s{sTMP2}, s{sHEAD}, 1
    s_add_u32 s{sTMP}, s{sTMP}, s{sTMP2}
    s_lshl_b32 s{sTMP}, s{sTMP}, 10
    s_add_u32 s{sTMP}, s{sTMP}, {HF_OFF + 112*1024}
    buffer_store_dwordx4 {vr(vP[0],4)}, v{vL16}, {sr(sWS,4)}, s{sTMP} offen sc1
    buffer_store_dwordx4 {vr(vP[0]+4,4)}, v{vL16}, {sr(sWS,4)}, s{sTMP} offen offset:1024 sc1
    s_waitcnt vmcnt(0)
    """)
    stamp(a, 22)
    publish_flag(a, vT0+2, vFA+2, 2)
    dry_end(a)
    stamp_flush(a, 0, sWS, sW8, 20, wpw=8)
    a("s_endpgm")
    a.label("a_fallback")
    a(f"""
    v_and_b32 v{vQ+6}, v{vQ+6}, v{vHHI}
    v_mov_b32 v{vT0}, 0xff800000
    s_mov_b32 s{sWR}, s{sKV}
    s_mov_b32 s{sIT}, 0
    """)
    a.label("a_fb1")
    a(f"""
    buffer_load_dwordx4 {vr(vK[0],4)}, v{vL16}, {sr(sWS,4)}, s{sWR} offen sc1
    buffer_load_dwordx4 {vr(vK[0]+4,4)}, v{vL16}, {sr(sWS,4)}, s{sWR} offen offset:1024 sc1
    s_waitcnt vmcnt(0)
    v_mfma_f32_32x32x16_bf16 {vr(vS[0],16)}, {vr(vK[0],4)}, {vr(vQ,4)}, 0
    v_mfma_f32_32x32x16_bf16 {vr(vS[0],16)}, {vr(vK[0]+4,4)}, {vr(vQ+4,4)}, {vr(vS[0],16)}
    s_nop 15
    s_nop 3
    """)
    for i in range(0, 16, 2):
        a(f"v_max3_f32 v{vT0}, v{vT0}, v{vS[0]+i}, v{vS[0]+i+1}")
    a(f"""
    s_add_u32 s{sWR}, s{sWR}, 4096
    s_add_u32 s{sIT}, s{sIT}, 1
    s_cmp_lt_u32 s{sIT}, 64
    s_cbranch_scc1 a_fb1
    v_mov_b32 v{vT0+1}, v{vT0}
    s_nop 1
    v_permlane32_swap_b32 v{vT0}, v{vT0+1}
    s_nop 1
    v_max_f32 v{vT0}, v{vT0}, v{vT0+1}
    """)
    for i in range(16):
        a(f"v_sub_f32 v{vNM+i}, 0, v{vT0}")
        a(f"v_mov_b32 v{vO+i}, 0")
    a(f"""
    s_add_u32 m0, s{sLB}, 49152
    v_add_u32 v{vKA}, 49152, v{vKAb}
    v_add_u32 v{vVA}, 49152, v{vVAb}
    s_mov_b32 s{sWR}, s{sKV}
    s_mov_b32 s{sIT}, 0
    """)
    a.label("a_fb2")
    dma_tile(vL16)
    a("s_waitcnt vmcnt(0)")
    read_k(0, vKA)
    for x in read_v_ins(0, vVA): a(x)
    a(f"""
    s_waitcnt lgkmcnt(0)
    v_mfma_f32_32x32x16_bf16 {vr(vS[0],16)}, {vr(vK[0],4)}, {vr(vQ,4)}, {vr(vNM,16)}
    v_mfma_f32_32x32x16_bf16 {vr(vS[0],16)}, {vr(vK[0]+4,4)}, {vr(vQ+4,4)}, {vr(vS[0],16)}
    s_nop 15
    s_nop 3
    """)
    for i in range(16):
        a(f"v_exp_f32 v{vS[0]+i}, v{vS[0]+i}")
    a("s_nop 0")
    for i in range(8):
        a(f"v_cvt_pk_bf16_f32 v{vP[0]+i}, v{vS[0]+2*i}, v{vS[0]+2*i+1}")
    a(f"""
    s_nop 1
    v_mfma_f32_32x32x16_bf16 {vr(vO,16)}, {vr(vV[0],4)}, {vr(vP[0],4)}, {vr(vO,16)}
    v_mfma_f32_32x32x16_bf16 {vr(vO,16)}, {vr(vV[0]+4,4)}, {vr(vP[0]+4,4)}, {vr(vO,16)}
    s_add_u32 s{sWR}, s{sWR}, 4096
    s_add_u32 s{sIT}, s{sIT}, 1
    s_cmp_lt_u32 s{sIT}, 64
    s_cbranch_scc1 a_fb2
    s_nop 15
    s_nop 3
    s_mov_b32 s{sFB}, 1
    s_branch a_norm
    """)

def gen_gemm2(a):
    sMT, sNT, sHO, sWOFF, sGB, sWO3, sBLK = sR, sR+1, sR+2, sR+3, sR+4, sR+5, sR+6
    vH0, vH1, vWD, vTR0, vTR1, vXA, vT0, vFA = 3, 4, 5, 6, 7, 8, 12, 15
    vXD = 18
    vWF = 224
    vACC = 80
    vHR = 144
    vWB = 16
    if env("STS", 0):
        stamp_flush(a, 0, sWS, sW8, 20, wpw=8)
        a("s_endpgm")
    a(f"""
    s_mul_i32 s{sTMP}, s{sSL}, 37
    s_lshr_b32 s{sTMP}, s{sTMP}, 8
    s_mul_i32 s{sTMP2}, s{sTMP}, 7
    s_sub_u32 s{sNT}, s{sSL}, s{sTMP2}
    s_lshl_b32 s{sMT}, s{sXCD}, 2
    s_add_u32 s{sMT}, s{sMT}, s{sTMP}
    s_lshl_b32 s{sMT}, s{sMT}, 1
    """)
    a(f"""
    v_and_b32 v{vFA}, 3, v{vLANE}
    s_mul_i32 s{sTMP}, s{sXCD}, 28
    s_add_u32 s{sTMP}, s{sTMP}, s{sSL}
    s_lshl_b32 s{sTMP}, s{sTMP}, 2
    s_add_u32 s{sTMP}, s{sTMP}, s{sWAVE}
    s_lshl_b32 s{sTMP}, s{sTMP}, 2
    v_add_u32 v{vFA}, s{sTMP}, v{vFA}
    v_lshlrev_b32 v{vFA}, 3, v{vFA}
    v_add_u32 v{vFA}, {F2_OFF}, v{vFA}
    s_and_b32 s{sTMP}, s{sWAVE}, 1
    s_add_u32 s{sMT}, s{sMT}, s{sTMP}
    s_mul_i32 s{sTMP}, s{sMT}, {144*1024}
    s_add_u32 s{sTMP}, s{sTMP}, {HF_OFF}
    v_add_u32 v{vH0}, s{sTMP}, v{vL16}
    s_xor_b32 s{sTMP}, s{sMT}, 1
    s_mul_i32 s{sTMP}, s{sTMP}, {144*1024}
    s_add_u32 s{sTMP}, s{sTMP}, {HF_OFF}
    v_add_u32 v{vH1}, s{sTMP}, v{vL16}
    s_mul_i32 s{sHO}, s{sWAVE}, {28*1024}
    s_lshl_b32 s{sGB}, s{sWAVE}, 14
    s_add_u32 s{sGB}, s{sGB}, {GR0}
    """)
    a(f"""
    v_lshrrev_b32 v{vT0}, 3, v{vLANE}
    v_bfe_u32 v{vT0+1}, v{vLANE}, 4, 1
    v_lshlrev_b32 v{vT0+1}, 2, v{vT0+1}
    v_and_b32 v{vT0+2}, 7, v{vLANE}
    v_xor_b32 v{vT0+2}, v{vT0+2}, v{vT0+1}
    v_lshlrev_b32 v{vT0+2}, 4, v{vT0+2}
    s_movk_i32 s{sTMP}, 896
    v_mad_u32_u24 v{vWD}, v{vT0}, s{sTMP}, v{vT0+2}
    s_mul_i32 s{sWOFF}, s{sWAVE}, {448*896}
    s_lshl_b32 s{sTMP}, s{sNT}, 7
    s_add_u32 s{sWOFF}, s{sWOFF}, s{sTMP}
    """)
    a(f"""
    v_lshrrev_b32 v{vT0}, 5, v{vLANE}
    v_bfe_u32 v{vT0+1}, v{vLANE}, 2, 2
    v_lshl_add_u32 v{vT0}, v{vT0}, 2, v{vT0+1}
    v_lshlrev_b32 v{vTR0}, 7, v{vT0}
    v_bfe_u32 v{vT0+1}, v{vLANE}, 3, 1
    s_lshr_b32 s{sTMP}, s{sWAVE}, 1
    v_xor_b32 v{vT0+1}, s{sTMP}, v{vT0+1}
    v_lshl_add_u32 v{vTR0}, v{vT0+1}, 6, v{vTR0}
    v_bfe_u32 v{vT0+1}, v{vLANE}, 4, 1
    v_lshl_add_u32 v{vTR0}, v{vT0+1}, 5, v{vTR0}
    v_and_b32 v{vT0+1}, 3, v{vLANE}
    v_lshl_add_u32 v{vTR0}, v{vT0+1}, 3, v{vTR0}
    v_xor_b32 v{vTR1}, 64, v{vTR0}
    v_add_u32 v{vTR0}, s{sGB}, v{vTR0}
    v_add_u32 v{vTR1}, s{sGB}, v{vTR1}
    s_lshl_b32 s{sNT}, s{sNT}, 1
    s_add_u32 s{sNT}, s{sNT}, s{sTMP}
    """)
    def loadw(k):
        a(f"s_add_u32 m0, s{sGB}, {2048*k}")
        a(f"s_add_u32 s{sTMP}, s{sWOFF}, {8*896 - 1024}")
        a(f"buffer_load_dwordx4 v{vWD}, {sr(sB,4)}, s{sWOFF} offen lds")
        a(f"buffer_load_dwordx4 v{vWD}, {sr(sB,4)}, s{sTMP} offen offset:1024 lds")
        a(f"s_add_u32 s{sWOFF}, s{sWOFF}, {16*896}")
    def loadh(k):
        f = vHR + 8*k
        a(f"buffer_load_dwordx4 {vr(f,4)}, v{vH0}, {sr(sWS,4)}, s{sHO} offen sc1")
        a(f"buffer_load_dwordx4 {vr(f+4,4)}, v{vH1}, {sr(sWS,4)}, s{sHO} offen sc1")
        a(f"s_add_u32 s{sHO}, s{sHO}, 1024")
    def loads(k):
        loadw(k); loadh(k)
    def rdw(k, dst):
        for t, ad in ((0, vTR0), (1, vTR1)):
            for p in range(2):
                a(f"ds_read_b64_tr_b16 {vr(dst+4*t+2*p,2)}, v{ad} offset:{2048*k + 1024*p}")
    def mfmas(w, h):
        for j in range(4):
            a(f"v_mfma_f32_32x32x16_bf16 {vr(vACC+16*j,16)}, {vr(w+4*(j>>1),4)}, {vr(h+4*(j&1),4)}, {vr(vACC+16*j,16)}")
    vFA3, vXD3, vOA = 208, 212, 220
    set_srd(a, sB, pWO, D*D*2)
    set_srd(a, sA, pX, S*D*2)
    set_srd(a, sCc, pOUT, S*D*2)
    a(f"""
    s_mul_i32 s{sWO3}, s{sWAVE}, {4*28*896}
    s_lshr_b32 s{sTMP}, s{sNT}, 1
    s_lshl_b32 s{sTMP}, s{sTMP}, 7
    s_add_u32 s{sWO3}, s{sWO3}, s{sTMP}
    """)
    for k in range(8):
        off = (28*(k >> 1) + 16*(k & 1)) * 896
        a(f"s_add_u32 m0, s{sGB}, {2048*k}")
        a(f"s_add_u32 s{sTMP}, s{sWO3}, {off}")
        a(f"buffer_load_dwordx4 v{vWD}, {sr(sB,4)}, s{sTMP} offen lds")
        a(f"s_add_u32 s{sTMP}, s{sWO3}, {off + 8*896 - 1024}")
        a(f"buffer_load_dwordx4 v{vWD}, {sr(sB,4)}, s{sTMP} offen offset:1024 lds")
    a(f"""
    v_add_u32 v{vFA3}, {F3_OFF - F2_OFF}, v{vFA}
    v_and_b32 v{vOA}, 31, v{vLANE}
    s_lshl_b32 s{sTMP}, s{sMT}, 5
    v_add_u32 v{vOA}, s{sTMP}, v{vOA}
    s_movk_i32 s{sTMP}, 896
    v_mul_lo_u32 v{vOA}, v{vOA}, s{sTMP}
    v_lshrrev_b32 v{vT0}, 5, v{vLANE}
    v_lshl_add_u32 v{vXA}, v{vT0}, 3, v{vOA}
    v_lshl_add_u32 v{vOA}, v{vT0}, 4, v{vOA}
    s_lshl_b32 s{sNT}, s{sNT}, 6
    """)
    for g in range(4):
        a(f"buffer_load_dwordx2 {vr(vXD3+2*g,2)}, v{vXA}, {sr(sA,4)}, s{sNT} offen offset:{16*g}")
    a(f"s_lshr_b32 s{sTMP3}, s{sMT32}, 2")
    mb23_addr(a, 16, sTMP3, sCOL, F2_OFF)
    a(f"""
    s_waitcnt vmcnt(20)
    """)
    publish_flag(a, vT0, 16, 1)
    a(f"""
    s_cmp_ge_u32 s{sSL}, 28
    s_cbranch_scc1 k_end
    """)
    stamp(a, 13)
    a("s_waitcnt vmcnt(0)")
    for k in range(8):
        rdw(k, vWB + 8*k)
        if k % 2 == 1: a("s_waitcnt lgkmcnt(0)")
    for g in range(4):
        for p in range(2):
            a(f"v_lshlrev_b32 v{vT0}, 16, v{vXD3+2*g+p}")
            a(f"v_and_b32 v{vT0+1}, 0xffff0000, v{vXD3+2*g+p}")
            a(f"v_add_f32 v{vACC+4*g+2*p}, v{vACC+4*g+2*p}, v{vT0}")
            a(f"v_add_f32 v{vACC+4*g+2*p+1}, v{vACC+4*g+2*p+1}, v{vT0+1}")
    set_srd(a, sB, pW2, DFF*D*2)
    WPRE = env("WPRE", 1)
    a(f"""
    s_mul_i32 s{sBLK}, s{sSL}, {env("ROTG", 1)}
    s_and_b32 s{sBLK}, s{sBLK}, 3
    s_mul_i32 s{sTMP}, s{sBLK}, {7*1024}
    s_add_u32 s{sHO}, s{sHO}, s{sTMP}
    s_mul_i32 s{sTMP}, s{sBLK}, {7*16*896}
    s_add_u32 s{sWOFF}, s{sWOFF}, s{sTMP}
    """)
    if WPRE:
        for k in range(7): loadw(k)
        a(f"s_mov_b32 s{sTMP2}, {OOB:#x}")
    stamp(a, 20)
    poll_flags(a, vFA, vT0)
    stamp(a, 14)
    a.label("g_pre")
    for k in range(7):
        if WPRE:
            if k > 0:
                a(f"buffer_load_dword v{vT0}, v{vL16}, {sr(sWS,4)}, s{sTMP2} offen")
                a(f"buffer_load_dword v{vT0}, v{vL16}, {sr(sWS,4)}, s{sTMP2} offen")
            loadh(k)
        else:
            loads(k)
    a(f"s_mov_b32 s{sIT}, 0")
    a(f"s_setprio {env('GPRIO', 0)}")
    dry_end(a)
    a.label("g_loop")
    a(f"""
    s_add_u32 s{sBLK}, s{sBLK}, 1
    s_cmp_eq_u32 s{sBLK}, 4
    s_cselect_b32 s{sTMP}, {28*1024}, 0
    s_cselect_b32 s{sTMP2}, {28*16*896}, 0
    s_sub_u32 s{sHO}, s{sHO}, s{sTMP}
    s_sub_u32 s{sWOFF}, s{sWOFF}, s{sTMP2}
    s_cmp_eq_u32 s{sIT}, 3
    s_cselect_b32 s{sHO}, {OOB:#x}, s{sHO}
    s_cselect_b32 s{sWOFF}, {OOB:#x}, s{sWOFF}
    """)
    for k in range(7):
        a("s_waitcnt vmcnt(24)")
        rdw(k, vWF)
        a("s_waitcnt lgkmcnt(0)")
        mfmas(vWF, vHR + 8*k)
        loads(k)
    dry_end(a)
    a(f"""
    s_add_u32 s{sIT}, s{sIT}, 1
    s_cmp_lt_u32 s{sIT}, 4
    s_cbranch_scc1 g_loop
    """)
    a.label("g_p3")
    a("s_setprio 2")
    a("s_waitcnt vmcnt(0)")
    stamp(a, 15)
    a(f"""
    s_lshl_b32 s{sHO}, s{sWAVE}, 13
    s_add_u32 s{sHO}, s{sHO}, {112*1024}
    s_add_u32 s{sTMP2}, s{sHO}, 4096
    """)
    stamp(a, 16)
    dry_end(a)
    a.label("g_tail")
    poll_flags(a, vFA3, vT0)
    stamp(a, 17)
    for k in range(8):
        f = vHR + 8*k
        so = sHO if k < 4 else sTMP2
        a(f"buffer_load_dwordx4 {vr(f,4)}, v{vH0}, {sr(sWS,4)}, s{so} offen offset:{1024*(k%4)} sc1")
        a(f"buffer_load_dwordx4 {vr(f+4,4)}, v{vH1}, {sr(sWS,4)}, s{so} offen offset:{1024*(k%4)} sc1")
    for k in range(8):
        a(f"s_waitcnt vmcnt({14 - 2*k})")
        mfmas(vWB + 8*k, vHR + 8*k)
    stamp(a, 18)
    a("s_nop 7")
    a("s_nop 3")
    reduce_write(a, vACC, vT0, sGB)
    a("s_waitcnt lgkmcnt(0)")
    prog_set(a, vT0, SP, 3)
    prog_wait(a, vT0, SP, 3, sleep=0)
    dry_end(a)
    a.label("g_tail2")
    reduce_read(a, vACC, vHR, vT0, GR0)
    stamp(a, 19)
    for i in range(8):
        a(f"v_cvt_pk_bf16_f32 v{vHR+i}, v{vACC+2*i}, v{vACC+2*i+1}")
    a("s_nop 1")
    for q in range(2):
        a(f"v_permlane32_swap_b32 v{vHR+4*q}, v{vHR+4*q+2}")
        a(f"v_permlane32_swap_b32 v{vHR+4*q+1}, v{vHR+4*q+3}")
    a("s_nop 1")
    for q in range(2):
        a(f"buffer_store_dwordx4 {vr(vHR+4*q,4)}, v{vOA}, {sr(sCc,4)}, s{sNT} offen offset:{32*q}")
    dry_end(a)
    stamp_flush(a, 0, sWS, sW8, 20, wpw=8)
```

```python
import os
from asmlib import *
from mk import *

def reduce_write(a, vACC, vWA, sBASE, js=4096):
    a(f"v_add_u32 v{vWA}, s{sBASE}, v{vL16}")
    for j in range(1, 4):
        for g in range(4):
            a(f"ds_write_b128 v{vWA}, {vr(vACC+16*j+4*g,4)} offset:{(j-1)*js+g*1024}")
def reduce_read(a, vACC, vT, vRA, region0, js=4096, wsh=14):
    for j in range(1, 4):
        a(f"""
        s_xor_b32 s{sTMP}, s{sWAVE}, {j}
        s_lshl_b32 s{sTMP}, s{sTMP}, {wsh}
        s_add_u32 s{sTMP}, s{sTMP}, {region0 + (j-1)*js}
        v_add_u32 v{vRA}, s{sTMP}, v{vL16}
        """)
        for g in range(4):
            a(f"ds_read_b128 {vr(vT+16*(j-1)+4*g,4)}, v{vRA} offset:{g*1024}")
    for j in range(3):
        for g in range(4):
            a(f"s_waitcnt lgkmcnt({11 - (4*j+g)})")
            for r in range(4):
                i = 4*g + r
                a(f"v_add_f32 v{vACC+i}, v{vACC+i}, v{vT+16*j+i}")

def gen_attn(a):
    sHEAD, sQB, sKV, sRD, sWR, sLB, sFB, sMK = sR, sR+1, sR+2, sR+3, sR+4, sR+5, sR+6, sR+7
    vKB = 212
    vKA, vVA, vKAb, vVAb, vHH, vHHI, vT0 = 3, 4, 5, 6, 7, 8, 12
    vQ = 16; vO = 48; vS = [112, 128]; vP = [144, 152]; vK = [160, 168]; vV = [176, 184]; vNM = 192
    vFA = 208
    a(f"""
    s_and_b32 s{sHEAD}, s{sSL}, 1
    s_lshl_b32 s{sTMP}, s{sXCD}, 1
    s_add_u32 s{sHEAD}, s{sHEAD}, s{sTMP}
    s_lshr_b32 s{sQB}, s{sSL}, 1
    s_lshl_b32 s{sKV}, s{sHEAD}, 18
    s_add_u32 s{sKV}, s{sKV}, {KF_OFF}
    s_lshl_b32 s{sLB}, s{sWAVE}, 12
    v_lshrrev_b32 v{vHH}, 5, v{vLANE}
    v_add_u32 v{vKAb}, s{sLB}, v{vL16}
    v_bfe_u32 v{vT0}, v{vLANE}, 4, 1
    v_lshlrev_b32 v{vVAb}, 10, v{vT0}
    v_and_b32 v{vT0}, 1, v{vLANE}
    v_lshl_add_u32 v{vVAb}, v{vT0}, 9, v{vVAb}
    v_bfe_u32 v{vT0}, v{vLANE}, 1, 1
    v_lshl_add_u32 v{vVAb}, v{vT0}, 3, v{vVAb}
    v_bfe_u32 v{vT0}, v{vLANE}, 2, 2
    v_lshl_add_u32 v{vT0}, v{vHH}, 2, v{vT0}
    v_lshl_add_u32 v{vVAb}, v{vT0}, 4, v{vVAb}
    v_add_u32 v{vVAb}, s{sLB}, v{vVAb}
    v_add_u32 v{vVAb}, 2048, v{vVAb}
    v_sub_u32 v{vHHI}, v{vHH}, 1
    v_sub_u32 v{vHH}, 0, v{vHH}
    """)
    a(f"""
    s_lshl_b32 s{sTMP}, s{sHEAD}, 4
    s_add_u32 s{sTMP}, s{sTMP}, s{sQB}
    s_lshl_b32 s{sTMP}, s{sTMP}, 9
    s_add_u32 s{sTMP}, s{sTMP}, {F1_OFF}
    s_lshl_b32 s{sTMP2}, s{sQB}, 3
    s_add_u32 s{sTMP2}, s{sTMP2}, s{sTMP}
    v_and_b32 v{vFA}, 1, v{vLANE}
    v_lshlrev_b32 v{vFA}, 7, v{vFA}
    v_add_u32 v{vFA}, s{sTMP2}, v{vFA}
    s_lshl_b32 s{sTMP2}, s{sWAVE}, 5
    s_add_u32 s{sTMP2}, s{sTMP2}, s{sTMP}
    s_add_u32 s{sTMP2}, s{sTMP2}, 128
    v_bfe_u32 v{vFA+1}, v{vLANE}, 2, 1
    v_lshlrev_b32 v{vFA+1}, 7, v{vFA+1}
    v_and_b32 v{vT0}, 3, v{vLANE}
    v_lshl_add_u32 v{vFA+1}, v{vT0}, 3, v{vFA+1}
    s_mov_b64 exec, 0xff
    v_add_u32 v{vFA}, s{sTMP2}, v{vFA+1}
    s_mov_b64 exec, -1
    """)
    mb23_addr(a, vFA+2, sQB, sHEAD, F3_OFF)
    a(f"v_mov_b32 v{vKA}, v{vKAb}")
    a(f"v_mov_b32 v{vVA}, v{vVAb}")
    a("s_waitcnt lgkmcnt(0)")
    for i in range(8):
        a(f"v_mov_b32 v{vP[1]+i}, 0")
        a(f"v_mov_b32 v{vV[1]+i}, 0")
    stamp(a, 8)
    a(f"""
    s_lshl_b32 s{sTMP}, s{sWAVE}, 16
    s_add_u32 s{sTMP}, s{sKV}, s{sTMP}
    v_add_u32 v{vKB}, s{sTMP}, v{vL16}
    s_mul_i32 s{sWR}, s{sQB}, {4096*env("ROTA", 1)}
    s_mov_b32 s{sMK}, 0xffff
    s_waitcnt vmcnt(0)
    v_readfirstlane_b32 s{sTAG}, v18
    v_readfirstlane_b32 s{sTAG+1}, v19
    s_min_u32 s{sTMP}, s{sTAG}, s{sTAG+1}
    s_cmp_lg_u32 s{sTMP}, 0
    s_cbranch_scc1 a_tagok
    """)
    get_tag(a, vT0+2)
    a.label("a_tagok")
    publish_flag(a, vT0+2, 17, 0)
    stamp(a, 9)
    a(f"s_setprio {env('APRIO', 1)}")
    prog_wait(a, vT0, LP, 7)
    if env("PFW", 0):
        set_srd(a, sA, pW2, DFF*D*2)
        set_srd(a, sB, pWO, D*D*2)
        a(f"""
        s_lshl_b32 s{sTMP}, s{sSL}, 2
        s_add_u32 s{sTMP}, s{sTMP}, s{sWAVE}
        v_lshlrev_b32 v{vT0}, 7, v{vLANE}
        s_lshl_b32 s{sTMP2}, s{sTMP}, 14
        buffer_load_dword v{vNM}, v{vT0}, {sr(sA,4)}, s{sTMP2} offen sc1
        s_add_u32 s{sTMP2}, s{sTMP2}, 8192
        buffer_load_dword v{vNM+1}, v{vT0}, {sr(sA,4)}, s{sTMP2} offen sc1
        s_lshl_b32 s{sTMP2}, s{sTMP}, 13
        buffer_load_dword v{vNM+2}, v{vT0}, {sr(sB,4)}, s{sTMP2} offen sc1
        """)
    stamp(a, 15)
    if env("F1SLEEP", 0): a(f"s_sleep {env('F1SLEEP', 0)}")
    poll_flags(a, vFA, vT0+2)
    a.label("a_pro")
    stamp(a, 16)
    a(f"""
    s_lshl_b32 s{sTMP}, s{sQB}, 14
    s_add_u32 s{sTMP}, s{sTMP}, s{sKV}
    buffer_load_dwordx4 {vr(vK[1],4)}, v{vL16}, {sr(sWS,4)}, s{sTMP} offen sc1
    buffer_load_dwordx4 {vr(vK[1]+4,4)}, v{vL16}, {sr(sWS,4)}, s{sTMP} offen offset:1024 sc1
    s_lshl_b32 s{sTMP2}, s{sQB}, 2
    s_lshl_b32 s{sTMP3}, s{sHEAD}, 6
    s_add_u32 s{sTMP2}, s{sTMP2}, s{sTMP3}
    """)
    for j in range(4):
        a(f"""
        s_xor_b32 s{sTMP}, s{sWAVE}, {j}
        s_add_u32 s{sTMP}, s{sTMP}, s{sTMP2}
        s_lshl_b32 s{sTMP}, s{sTMP}, 11
        buffer_load_dwordx4 {vr(vQ+8*j,4)}, v{vL16}, {sr(sWS,4)}, s{sTMP} offen sc1
        buffer_load_dwordx4 {vr(vQ+8*j+4,4)}, v{vL16}, {sr(sWS,4)}, s{sTMP} offen offset:1024 sc1
        """)
    stamp(a, 17)
    a(f"""
    s_mov_b32 m0, s{sLB}
    s_nop 0
    """)
    def dma_tile(va=None):
        for i in range(4):
            a(f"buffer_load_dwordx4 v{vKB if va is None else va}, {sr(sWS,4)}, s{sWR} offen offset:{1024*i} sc1 lds")
    def adv():
        a(f"s_add_u32 s{sWR}, s{sWR}, 4096")
        a(f"s_and_b32 s{sWR}, s{sWR}, s{sMK}")
    for t in range(2):
        dma_tile()
        a(f"s_add_u32 m0, m0, 16384")
        adv()
    for t in range(4):
        a(f"s_waitcnt vmcnt({8 + 2*(3-t)})")
        a(f"v_mfma_f32_32x32x16_bf16 {vr(vO+16*t,16)}, {vr(vK[1],4)}, {vr(vQ+8*t,4)}, 0")
        a(f"v_mfma_f32_32x32x16_bf16 {vr(vO+16*t,16)}, {vr(vK[1]+4,4)}, {vr(vQ+8*t+4,4)}, {vr(vO+16*t,16)}")
    a("s_nop 3")
    stamp(a, 18)
    def read_k(st, addr, off=0):
        a(f"ds_read_b128 {vr(vK[st],4)}, v{addr} offset:{off}")
        a(f"ds_read_b128 {vr(vK[st]+4,4)}, v{addr} offset:{off+1024}")
    def read_v_ins(st, addr, off=0):
        return [f"ds_read_b64_tr_b16 {vr(vV[st]+4*s_+2*p,2)}, v{addr} offset:{off+(16*s_+8*p)*16}" for s_ in range(2) for p in range(2)]
    for j in range(4):
        o = vO + 16*j
        if j == 2:
            prog_wait(a, vT0, SP, 1)
            for t in range(2):
                dma_tile()
                if t == 0:
                    a(f"s_add_u32 m0, m0, 16384")
                adv()
        if j == 3:
            a("s_waitcnt vmcnt(12)")
            read_k(0, vKAb)
            for x in read_v_ins(0, vVAb): a(x)
        t = vT0 + (j & 1) * 2
        a(f"v_max3_f32 v{t}, v{o}, v{o+1}, v{o+2}")
        for i in range(3, 15, 2):
            a(f"v_max3_f32 v{t}, v{t}, v{o+i}, v{o+i+1}")
        a(f"v_max_f32 v{t}, v{t}, v{o+15}")
        a(f"v_mov_b32 v{t+1}, v{t}")
        a(f"v_mfma_f32_32x32x16_bf16 {vr(o,16)}, {vr(vP[1],4)}, {vr(vP[1],4)}, 0")
        a("s_nop 0")
        a(f"v_permlane32_swap_b32 v{t}, v{t+1}")
        a("s_nop 1")
        a(f"v_max_f32 v{t}, v{t}, v{t+1}")
        a(f"v_add_f32 v{t}, {f32bits(BIAS - 1.0):#x}, v{t}")
        a(f"v_cvt_pk_bf16_f32 v{t}, -v{t}, 0")
        a(f"v_and_b32 v{t}, v{t}, v{vHH}")
        a(f"v_and_or_b32 v{vQ+8*j+6}, v{vQ+8*j+6}, v{vHHI}, v{t}")
    a(f"""
    s_mov_b32 s{sRD}, 0
    s_mov_b32 s{sIT}, 0
    s_waitcnt lgkmcnt(0)
    """)
    a(f"v_mfma_f32_32x32x16_bf16 {vr(vS[0],16)}, {vr(vK[0],4)}, {vr(vQ,4)}, 0")
    a(f"v_mfma_f32_32x32x16_bf16 {vr(vS[0],16)}, {vr(vK[0]+4,4)}, {vr(vQ+4,4)}, {vr(vS[0],16)}")
    a("s_nop 7")
    a("s_nop 3")
    def body(sl):
        st = sl % 2
        for j in range(4):
            sc = vS[j % 2]; sn = vS[(j + 1) % 2]
            pc = vP[j % 2]; pp = vP[(j + 1) % 2]
            kn = vK[st] if j < 3 else vK[1 - st]
            qn = vQ + 8 * ((j + 1) % 4)
            vv = vV[st] if j > 0 else vV[1 - st]
            op = vO + 16 * ((j + 3) % 4)
            mf = [
                f"v_mfma_f32_32x32x16_bf16 {vr(sn,16)}, {vr(kn,4)}, {vr(qn,4)}, 0",
                f"v_mfma_f32_32x32x16_bf16 {vr(sn,16)}, {vr(kn+4,4)}, {vr(qn+4,4)}, {vr(sn,16)}",
                f"v_mfma_f32_32x32x16_bf16 {vr(op,16)}, {vr(vv,4)}, {vr(pp,4)}, {vr(op,16)}",
                f"v_mfma_f32_32x32x16_bf16 {vr(op,16)}, {vr(vv+4,4)}, {vr(pp+4,4)}, {vr(op,16)}",
            ]
            if j == 3:
                a("s_waitcnt lgkmcnt(4)" if env("SPREAD", 0) else "s_waitcnt lgkmcnt(0)")
            if j == 0 and env("SPREAD", 0):
                a("s_waitcnt lgkmcnt(0)")
            plan = [[("e", 0), ("e", 1), ("e", 2)], [("e", 3), ("e", 4), ("e", 5)], [("e", 6), ("e", 7), ("e", 8)],
                    [("e", i) for i in range(9, 16)] + [("c", i) for i in range(8)]]
            for g in range(4):
                a(mf[g])
                if j == 0 and g == 2:
                    a(f"s_add_u32 m0, s{sLB}, {16384*sl}")
                if env("SPREAD", 0):
                    if g == 3:
                        a(f"buffer_load_dwordx4 v{vKB}, {sr(sWS,4)}, s{sWR} offen offset:{1024*j} sc1 lds")
                        if j == 3: adv()
                    if j == 1 and g == 3:
                        a("s_waitcnt vmcnt(10)")
                        read_k(1 - st, vKAb, 16384*((sl+1) % 4))
                    if j == 2 and g == 3:
                        for x in read_v_ins(1 - st, vVAb, 16384*((sl+1) % 4)): a(x)
                else:
                    if j == 0 and g == 3:
                        if env("TOG", 1): a("s_setprio 3")
                        dma_tile()
                        if env("TOG", 1): a("s_setprio 1")
                        adv()
                    if j == 1 and g == 3:
                        a("s_waitcnt vmcnt(12)")
                        read_k(1 - st, vKAb, 16384*((sl+1) % 4))
                        for x in read_v_ins(1 - st, vVAb, 16384*((sl+1) % 4)): a(x)
                for kind, i in plan[g]:
                    if kind == "e":
                        a(f"v_exp_f32 v{sc+i}, v{sc+i}")
                    else:
                        a(f"v_cvt_pk_bf16_f32 v{pc+i}, v{sc+2*i}, v{sc+2*i+1}")
    a("s_setprio 1")
    stamp(a, 19)
    dry_end(a)
    a.raw(".p2align 6")
    a.label("a_loop")
    body(0)
    body(1)
    dry_end(a)
    a.label("a_loop2")
    body(2)
    body(3)
    dry_end(a)
    if env("STL", 0) & 8: stamp_dyn(a, 24, sIT)
    a(f"""
    s_add_u32 s{sIT}, s{sIT}, 1
    s_cmp_eq_u32 s{sIT}, 3
    s_cselect_b32 s{sWR}, {OOB:#x}, s{sWR}
    s_cselect_b32 s{sMK}, -1, s{sMK}
    s_cmp_lt_u32 s{sIT}, 4
    s_cbranch_scc1 a_loop
    """)
    a.label("a_tail")
    stamp(a, 20)
    a("s_setprio 3")
    a("s_nop 1")
    a(f"v_mfma_f32_32x32x16_bf16 {vr(vO+48,16)}, {vr(vV[1],4)}, {vr(vP[1],4)}, {vr(vO+48,16)}")
    a(f"v_mfma_f32_32x32x16_bf16 {vr(vO+48,16)}, {vr(vV[1]+4,4)}, {vr(vP[1]+4,4)}, {vr(vO+48,16)}")
    a("s_waitcnt vmcnt(0)")
    a("s_nop 3")
    reduce_write(a, vO, vT0, sLB, js=16384)
    a("s_waitcnt lgkmcnt(0)")
    prog_set(a, vT0, AP, 1)
    prog_wait(a, vT0, AP, 1, sleep=0)
    reduce_read(a, vO, vS[0], vT0, ATT0, js=16384, wsh=12)
    a(f"s_mov_b32 s{sFB}, 0")
    stamp(a, 21)
    a.label("a_norm")
    a(f"""
    v_mov_b32 v{vT0}, v{vO+12}
    v_mov_b32 v{vT0+1}, v{vO+12}
    s_nop 1
    v_permlane32_swap_b32 v{vT0}, v{vT0+1}
    s_nop 1
    v_rcp_f32 v{vT0}, v{vT0+1}
    v_mov_b32 v{vT0+2}, 0
    """)
    for i in range(16):
        a(f"v_mul_f32 v{vS[0]+i}, v{vO+i}, v{vT0}")
    for i in range(16):
        a(f"v_fma_f32 v{vT0+2}, v{vS[0]+i}, 0, v{vT0+2}")
    a(f"""
    s_mov_b32 s{sTMP}, {f32bits(2.0**-90):#x}
    v_cmp_nle_f32 vcc, s{sTMP}, v{vT0+1}
    s_mov_b32 s{sTMP}, {f32bits(2.0**100):#x}
    v_cmp_nge_f32 s[72:73], s{sTMP}, v{vT0+1}
    v_cmp_u_f32 s[74:75], v{vT0+2}, v{vT0+2}
    s_or_b64 vcc, vcc, s[72:73]
    s_or_b64 vcc, vcc, s[74:75]
    s_cmp_lg_u32 s{sFB}, 0
    s_cbranch_scc1 a_store
    s_cbranch_vccnz a_fallback
    """)
    a.label("a_store")
    for i in range(8):
        a(f"v_cvt_pk_bf16_f32 v{vP[0]+i}, v{vS[0]+2*i}, v{vS[0]+2*i+1}")
    a(f"""
    v_and_b32 v{vP[0]+6}, v{vP[0]+6}, v{vHHI}
    v_and_b32 v{vP[0]+7}, v{vP[0]+7}, v{vHHI}
    s_lshl_b32 s{sTMP3}, s{sQB}, 2
    s_add_u32 s{sTMP3}, s{sTMP3}, s{sWAVE}
    s_mul_i32 s{sTMP}, s{sTMP3}, 144
    s_lshl_b32 s{sTMP2}, s{sHEAD}, 1
    s_add_u32 s{sTMP}, s{sTMP}, s{sTMP2}
    s_lshl_b32 s{sTMP}, s{sTMP}, 10
    s_add_u32 s{sTMP}, s{sTMP}, {HF_OFF + 112*1024}
    buffer_store_dwordx4 {vr(vP[0],4)}, v{vL16}, {sr(sWS,4)}, s{sTMP} offen sc1
    buffer_store_dwordx4 {vr(vP[0]+4,4)}, v{vL16}, {sr(sWS,4)}, s{sTMP} offen offset:1024 sc1
    s_waitcnt vmcnt(0)
    """)
    stamp(a, 22)
    publish_flag(a, vT0+2, vFA+2, 2)
    dry_end(a)
    stamp_flush(a, 0, sWS, sW8, 20, wpw=8)
    a("s_endpgm")
    a.label("a_fallback")
    a(f"""
    v_and_b32 v{vQ+6}, v{vQ+6}, v{vHHI}
    v_mov_b32 v{vT0}, 0xff800000
    s_mov_b32 s{sWR}, s{sKV}
    s_mov_b32 s{sIT}, 0
    """)
    a.label("a_fb1")
    a(f"""
    buffer_load_dwordx4 {vr(vK[0],4)}, v{vL16}, {sr(sWS,4)}, s{sWR} offen sc1
    buffer_load_dwordx4 {vr(vK[0]+4,4)}, v{vL16}, {sr(sWS,4)}, s{sWR} offen offset:1024 sc1
    s_waitcnt vmcnt(0)
    v_mfma_f32_32x32x16_bf16 {vr(vS[0],16)}, {vr(vK[0],4)}, {vr(vQ,4)}, 0
    v_mfma_f32_32x32x16_bf16 {vr(vS[0],16)}, {vr(vK[0]+4,4)}, {vr(vQ+4,4)}, {vr(vS[0],16)}
    s_nop 15
    s_nop 3
    """)
    for i in range(0, 16, 2):
        a(f"v_max3_f32 v{vT0}, v{vT0}, v{vS[0]+i}, v{vS[0]+i+1}")
    a(f"""
    s_add_u32 s{sWR}, s{sWR}, 4096
    s_add_u32 s{sIT}, s{sIT}, 1
    s_cmp_lt_u32 s{sIT}, 64
    s_cbranch_scc1 a_fb1
    v_mov_b32 v{vT0+1}, v{vT0}
    s_nop 1
    v_permlane32_swap_b32 v{vT0}, v{vT0+1}
    s_nop 1
    v_max_f32 v{vT0}, v{vT0}, v{vT0+1}
    """)
    for i in range(16):
        a(f"v_sub_f32 v{vNM+i}, 0, v{vT0}")
        a(f"v_mov_b32 v{vO+i}, 0")
    a(f"""
    s_add_u32 m0, s{sLB}, 49152
    v_add_u32 v{vKA}, 49152, v{vKAb}
    v_add_u32 v{vVA}, 49152, v{vVAb}
    s_mov_b32 s{sWR}, s{sKV}
    s_mov_b32 s{sIT}, 0
    """)
    a.label("a_fb2")
    dma_tile(vL16)
    a("s_waitcnt vmcnt(0)")
    read_k(0, vKA)
    for x in read_v_ins(0, vVA): a(x)
    a(f"""
    s_waitcnt lgkmcnt(0)
    v_mfma_f32_32x32x16_bf16 {vr(vS[0],16)}, {vr(vK[0],4)}, {vr(vQ,4)}, {vr(vNM,16)}
    v_mfma_f32_32x32x16_bf16 {vr(vS[0],16)}, {vr(vK[0]+4,4)}, {vr(vQ+4,4)}, {vr(vS[0],16)}
    s_nop 15
    s_nop 3
    """)
    for i in range(16):
        a(f"v_exp_f32 v{vS[0]+i}, v{vS[0]+i}")
    a("s_nop 0")
    for i in range(8):
        a(f"v_cvt_pk_bf16_f32 v{vP[0]+i}, v{vS[0]+2*i}, v{vS[0]+2*i+1}")
    a(f"""
    s_nop 1
    v_mfma_f32_32x32x16_bf16 {vr(vO,16)}, {vr(vV[0],4)}, {vr(vP[0],4)}, {vr(vO,16)}
    v_mfma_f32_32x32x16_bf16 {vr(vO,16)}, {vr(vV[0]+4,4)}, {vr(vP[0]+4,4)}, {vr(vO,16)}
    s_add_u32 s{sWR}, s{sWR}, 4096
    s_add_u32 s{sIT}, s{sIT}, 1
    s_cmp_lt_u32 s{sIT}, 64
    s_cbranch_scc1 a_fb2
    s_nop 15
    s_nop 3
    s_mov_b32 s{sFB}, 1
    s_branch a_norm
    """)

def gen_gemm2(a):
    sMT, sNT, sHO, sWOFF, sGB, sWO3, sBLK = sR, sR+1, sR+2, sR+3, sR+4, sR+5, sR+6
    vH0, vH1, vWD, vTR0, vTR1, vXA, vT0, vFA = 3, 4, 5, 6, 7, 8, 12, 15
    vXD = 18
    vWF = 224
    vACC = 80
    vHR = 144
    vWB = 16
    if env("STS", 0):
        stamp_flush(a, 0, sWS, sW8, 20, wpw=8)
        a("s_endpgm")
    a(f"""
    s_mul_i32 s{sTMP}, s{sSL}, 37
    s_lshr_b32 s{sTMP}, s{sTMP}, 8
    s_mul_i32 s{sTMP2}, s{sTMP}, 7
    s_sub_u32 s{sNT}, s{sSL}, s{sTMP2}
    s_lshl_b32 s{sMT}, s{sXCD}, 2
    s_add_u32 s{sMT}, s{sMT}, s{sTMP}
    s_lshl_b32 s{sMT}, s{sMT}, 1
    """)
    a(f"""
    v_and_b32 v{vFA}, 3, v{vLANE}
    s_mul_i32 s{sTMP}, s{sXCD}, 28
    s_add_u32 s{sTMP}, s{sTMP}, s{sSL}
    s_lshl_b32 s{sTMP}, s{sTMP}, 2
    s_add_u32 s{sTMP}, s{sTMP}, s{sWAVE}
    s_lshl_b32 s{sTMP}, s{sTMP}, 2
    v_add_u32 v{vFA}, s{sTMP}, v{vFA}
    v_lshlrev_b32 v{vFA}, 3, v{vFA}
    v_add_u32 v{vFA}, {F2_OFF}, v{vFA}
    s_and_b32 s{sTMP}, s{sWAVE}, 1
    s_add_u32 s{sMT}, s{sMT}, s{sTMP}
    s_mul_i32 s{sTMP}, s{sMT}, {144*1024}
    s_add_u32 s{sTMP}, s{sTMP}, {HF_OFF}
    v_add_u32 v{vH0}, s{sTMP}, v{vL16}
    s_xor_b32 s{sTMP}, s{sMT}, 1
    s_mul_i32 s{sTMP}, s{sTMP}, {144*1024}
    s_add_u32 s{sTMP}, s{sTMP}, {HF_OFF}
    v_add_u32 v{vH1}, s{sTMP}, v{vL16}
    s_mul_i32 s{sHO}, s{sWAVE}, {28*1024}
    s_lshl_b32 s{sGB}, s{sWAVE}, 14
    s_add_u32 s{sGB}, s{sGB}, {GR0}
    """)
    a(f"""
    v_lshrrev_b32 v{vT0}, 3, v{vLANE}
    v_bfe_u32 v{vT0+1}, v{vLANE}, 4, 1
    v_lshlrev_b32 v{vT0+1}, 2, v{vT0+1}
    v_and_b32 v{vT0+2}, 7, v{vLANE}
    v_xor_b32 v{vT0+2}, v{vT0+2}, v{vT0+1}
    v_lshlrev_b32 v{vT0+2}, 4, v{vT0+2}
    s_movk_i32 s{sTMP}, 896
    v_mad_u32_u24 v{vWD}, v{vT0}, s{sTMP}, v{vT0+2}
    s_mul_i32 s{sWOFF}, s{sWAVE}, {448*896}
    s_lshl_b32 s{sTMP}, s{sNT}, 7
    s_add_u32 s{sWOFF}, s{sWOFF}, s{sTMP}
    """)
    a(f"""
    v_lshrrev_b32 v{vT0}, 5, v{vLANE}
    v_bfe_u32 v{vT0+1}, v{vLANE}, 2, 2
    v_lshl_add_u32 v{vT0}, v{vT0}, 2, v{vT0+1}
    v_lshlrev_b32 v{vTR0}, 7, v{vT0}
    v_bfe_u32 v{vT0+1}, v{vLANE}, 3, 1
    s_lshr_b32 s{sTMP}, s{sWAVE}, 1
    v_xor_b32 v{vT0+1}, s{sTMP}, v{vT0+1}
    v_lshl_add_u32 v{vTR0}, v{vT0+1}, 6, v{vTR0}
    v_bfe_u32 v{vT0+1}, v{vLANE}, 4, 1
    v_lshl_add_u32 v{vTR0}, v{vT0+1}, 5, v{vTR0}
    v_and_b32 v{vT0+1}, 3, v{vLANE}
    v_lshl_add_u32 v{vTR0}, v{vT0+1}, 3, v{vTR0}
    v_xor_b32 v{vTR1}, 64, v{vTR0}
    v_add_u32 v{vTR0}, s{sGB}, v{vTR0}
    v_add_u32 v{vTR1}, s{sGB}, v{vTR1}
    s_lshl_b32 s{sNT}, s{sNT}, 1
    s_add_u32 s{sNT}, s{sNT}, s{sTMP}
    """)
    def loadw(k):
        a(f"s_add_u32 m0, s{sGB}, {2048*k}")
        a(f"s_add_u32 s{sTMP}, s{sWOFF}, {8*896 - 1024}")
        a(f"buffer_load_dwordx4 v{vWD}, {sr(sB,4)}, s{sWOFF} offen lds")
        a(f"buffer_load_dwordx4 v{vWD}, {sr(sB,4)}, s{sTMP} offen offset:1024 lds")
        a(f"s_add_u32 s{sWOFF}, s{sWOFF}, {16*896}")
    def loadh(k):
        f = vHR + 8*k
        a(f"buffer_load_dwordx4 {vr(f,4)}, v{vH0}, {sr(sWS,4)}, s{sHO} offen sc1")
        a(f"buffer_load_dwordx4 {vr(f+4,4)}, v{vH1}, {sr(sWS,4)}, s{sHO} offen sc1")
        a(f"s_add_u32 s{sHO}, s{sHO}, 1024")
    def loads(k):
        loadw(k); loadh(k)
    def rdw(k, dst):
        for t, ad in ((0, vTR0), (1, vTR1)):
            for p in range(2):
                a(f"ds_read_b64_tr_b16 {vr(dst+4*t+2*p,2)}, v{ad} offset:{2048*k + 1024*p}")
    def mfmas(w, h):
        for j in range(4):
            a(f"v_mfma_f32_32x32x16_bf16 {vr(vACC+16*j,16)}, {vr(w+4*(j>>1),4)}, {vr(h+4*(j&1),4)}, {vr(vACC+16*j,16)}")
    vFA3, vXD3, vOA = 208, 212, 220
    set_srd(a, sB, pWO, D*D*2)
    set_srd(a, sA, pX, S*D*2)
    set_srd(a, sCc, pOUT, S*D*2)
    a(f"""
    s_mul_i32 s{sWO3}, s{sWAVE}, {4*28*896}
    s_lshr_b32 s{sTMP}, s{sNT}, 1
    s_lshl_b32 s{sTMP}, s{sTMP}, 7
    s_add_u32 s{sWO3}, s{sWO3}, s{sTMP}
    """)
    for k in range(8):
        off = (28*(k >> 1) + 16*(k & 1)) * 896
        a(f"s_add_u32 m0, s{sGB}, {2048*k}")
        a(f"s_add_u32 s{sTMP}, s{sWO3}, {off}")
        a(f"buffer_load_dwordx4 v{vWD}, {sr(sB,4)}, s{sTMP} offen lds")
        a(f"s_add_u32 s{sTMP}, s{sWO3}, {off + 8*896 - 1024}")
        a(f"buffer_load_dwordx4 v{vWD}, {sr(sB,4)}, s{sTMP} offen offset:1024 lds")
    a(f"""
    v_add_u32 v{vFA3}, {F3_OFF - F2_OFF}, v{vFA}
    v_and_b32 v{vOA}, 31, v{vLANE}
    s_lshl_b32 s{sTMP}, s{sMT}, 5
    v_add_u32 v{vOA}, s{sTMP}, v{vOA}
    s_movk_i32 s{sTMP}, 896
    v_mul_lo_u32 v{vOA}, v{vOA}, s{sTMP}
    v_lshrrev_b32 v{vT0}, 5, v{vLANE}
    v_lshl_add_u32 v{vXA}, v{vT0}, 3, v{vOA}
    v_lshl_add_u32 v{vOA}, v{vT0}, 4, v{vOA}
    s_lshl_b32 s{sNT}, s{sNT}, 6
    """)
    for g in range(4):
        a(f"buffer_load_dwordx2 {vr(vXD3+2*g,2)}, v{vXA}, {sr(sA,4)}, s{sNT} offen offset:{16*g}")
    a(f"s_lshr_b32 s{sTMP3}, s{sMT32}, 2")
    mb23_addr(a, 16, sTMP3, sCOL, F2_OFF)
    a(f"""
    s_waitcnt vmcnt(20)
    """)
    publish_flag(a, vT0, 16, 1)
    a(f"""
    s_cmp_ge_u32 s{sSL}, 28
    s_cbranch_scc1 k_end
    """)
    stamp(a, 13)
    a("s_waitcnt vmcnt(0)")
    for k in range(8):
        rdw(k, vWB + 8*k)
        if k % 2 == 1: a("s_waitcnt lgkmcnt(0)")
    for g in range(4):
        for p in range(2):
            a(f"v_lshlrev_b32 v{vT0}, 16, v{vXD3+2*g+p}")
            a(f"v_and_b32 v{vT0+1}, 0xffff0000, v{vXD3+2*g+p}")
            a(f"v_add_f32 v{vACC+4*g+2*p}, v{vACC+4*g+2*p}, v{vT0}")
            a(f"v_add_f32 v{vACC+4*g+2*p+1}, v{vACC+4*g+2*p+1}, v{vT0+1}")
    set_srd(a, sB, pW2, DFF*D*2)
    WPRE = env("WPRE", 1)
    a(f"""
    s_mul_i32 s{sBLK}, s{sSL}, {env("ROTG", 1)}
    s_and_b32 s{sBLK}, s{sBLK}, 3
    s_mul_i32 s{sTMP}, s{sBLK}, {7*1024}
    s_add_u32 s{sHO}, s{sHO}, s{sTMP}
    s_mul_i32 s{sTMP}, s{sBLK}, {7*16*896}
    s_add_u32 s{sWOFF}, s{sWOFF}, s{sTMP}
    """)
    if WPRE:
        for k in range(7): loadw(k)
        a(f"s_mov_b32 s{sTMP2}, {OOB:#x}")
    stamp(a, 20)
    poll_flags(a, vFA, vT0)
    stamp(a, 14)
    a.label("g_pre")
    for k in range(7):
        if WPRE:
            if k > 0:
                a(f"buffer_load_dword v{vT0}, v{vL16}, {sr(sWS,4)}, s{sTMP2} offen")
                a(f"buffer_load_dword v{vT0}, v{vL16}, {sr(sWS,4)}, s{sTMP2} offen")
            loadh(k)
        else:
            loads(k)
    a(f"s_mov_b32 s{sIT}, 0")
    a(f"s_setprio {env('GPRIO', 2)}")
    dry_end(a)
    a.label("g_loop")
    a(f"""
    s_add_u32 s{sBLK}, s{sBLK}, 1
    s_cmp_eq_u32 s{sBLK}, 4
    s_cselect_b32 s{sTMP}, {28*1024}, 0
    s_cselect_b32 s{sTMP2}, {28*16*896}, 0
    s_sub_u32 s{sHO}, s{sHO}, s{sTMP}
    s_sub_u32 s{sWOFF}, s{sWOFF}, s{sTMP2}
    s_cmp_eq_u32 s{sIT}, 3
    s_cselect_b32 s{sHO}, {OOB:#x}, s{sHO}
    s_cselect_b32 s{sWOFF}, {OOB:#x}, s{sWOFF}
    """)
    for k in range(7):
        a("s_waitcnt vmcnt(24)")
        rdw(k, vWF)
        a("s_waitcnt lgkmcnt(0)")
        if env("GTOG", 1): a("s_setprio 0")
        mfmas(vWF, vHR + 8*k)
        if env("GTOG", 1): a("s_setprio 2")
        if env("GTHR", 99) < 24: a(f"s_waitcnt vmcnt({env('GTHR', 99)})")
        loads(k)
    dry_end(a)
    a(f"""
    s_add_u32 s{sIT}, s{sIT}, 1
    s_cmp_lt_u32 s{sIT}, 4
    s_cbranch_scc1 g_loop
    """)
    a.label("g_p3")
    a("s_setprio 2")
    a("s_waitcnt vmcnt(0)")
    stamp(a, 15)
    a(f"""
    s_lshl_b32 s{sHO}, s{sWAVE}, 13
    s_add_u32 s{sHO}, s{sHO}, {112*1024}
    s_add_u32 s{sTMP2}, s{sHO}, 4096
    """)
    stamp(a, 16)
    dry_end(a)
    a.label("g_tail")
    poll_flags(a, vFA3, vT0)
    stamp(a, 17)
    for k in range(8):
        f = vHR + 8*k
        so = sHO if k < 4 else sTMP2
        a(f"buffer_load_dwordx4 {vr(f,4)}, v{vH0}, {sr(sWS,4)}, s{so} offen offset:{1024*(k%4)} sc1")
        a(f"buffer_load_dwordx4 {vr(f+4,4)}, v{vH1}, {sr(sWS,4)}, s{so} offen offset:{1024*(k%4)} sc1")
    for k in range(8):
        a(f"s_waitcnt vmcnt({14 - 2*k})")
        mfmas(vWB + 8*k, vHR + 8*k)
    stamp(a, 18)
    a("s_nop 7")
    a("s_nop 3")
    reduce_write(a, vACC, vT0, sGB)
    a("s_waitcnt lgkmcnt(0)")
    prog_set(a, vT0, SP, 3)
    prog_wait(a, vT0, SP, 3, sleep=0)
    dry_end(a)
    a.label("g_tail2")
    reduce_read(a, vACC, vHR, vT0, GR0)
    stamp(a, 19)
    for i in range(8):
        a(f"v_cvt_pk_bf16_f32 v{vHR+i}, v{vACC+2*i}, v{vACC+2*i+1}")
    a("s_nop 1")
    for q in range(2):
        a(f"v_permlane32_swap_b32 v{vHR+4*q}, v{vHR+4*q+2}")
        a(f"v_permlane32_swap_b32 v{vHR+4*q+1}, v{vHR+4*q+3}")
    a("s_nop 1")
    for q in range(2):
        a(f"buffer_store_dwordx4 {vr(vHR+4*q,4)}, v{vOA}, {sr(sCc,4)}, s{sNT} offen offset:{32*q}")
    dry_end(a)
    stamp_flush(a, 0, sWS, sW8, 20, wpw=8)
```

```python
import os
from asmlib import *
from mk import *

def reduce_write(a, vACC, vWA, sBASE, js=4096):
    a(f"v_add_u32 v{vWA}, s{sBASE}, v{vL16}")
    for j in range(1, 4):
        for g in range(4):
            a(f"ds_write_b128 v{vWA}, {vr(vACC+16*j+4*g,4)} offset:{(j-1)*js+g*1024}")
def reduce_read(a, vACC, vT, vRA, region0, js=4096, wsh=14):
    for j in range(1, 4):
        a(f"""
        s_xor_b32 s{sTMP}, s{sWAVE}, {j}
        s_lshl_b32 s{sTMP}, s{sTMP}, {wsh}
        s_add_u32 s{sTMP}, s{sTMP}, {region0 + (j-1)*js}
        v_add_u32 v{vRA}, s{sTMP}, v{vL16}
        """)
        for g in range(4):
            a(f"ds_read_b128 {vr(vT+16*(j-1)+4*g,4)}, v{vRA} offset:{g*1024}")
    for j in range(3):
        for g in range(4):
            a(f"s_waitcnt lgkmcnt({11 - (4*j+g)})")
            for r in range(4):
                i = 4*g + r
                a(f"v_add_f32 v{vACC+i}, v{vACC+i}, v{vT+16*j+i}")

def gen_attn(a):
    sHEAD, sQB, sKV, sRD, sWR, sLB, sFB, sMK = sR, sR+1, sR+2, sR+3, sR+4, sR+5, sR+6, sR+7
    vKB = 212
    vKA, vVA, vKAb, vVAb, vHH, vHHI, vT0 = 3, 4, 5, 6, 7, 8, 12
    vQ = 16; vO = 48; vS = [112, 128]; vP = [144, 152]; vK = [160, 168]; vV = [176, 184]; vNM = 192
    vFA = 208
    a(f"""
    s_and_b32 s{sHEAD}, s{sSL}, 1
    s_lshl_b32 s{sTMP}, s{sXCD}, 1
    s_add_u32 s{sHEAD}, s{sHEAD}, s{sTMP}
    s_lshr_b32 s{sQB}, s{sSL}, 1
    s_lshl_b32 s{sKV}, s{sHEAD}, 18
    s_add_u32 s{sKV}, s{sKV}, {KF_OFF}
    s_lshl_b32 s{sLB}, s{sWAVE}, 12
    v_lshrrev_b32 v{vHH}, 5, v{vLANE}
    v_add_u32 v{vKAb}, s{sLB}, v{vL16}
    v_bfe_u32 v{vT0}, v{vLANE}, 4, 1
    v_lshlrev_b32 v{vVAb}, 10, v{vT0}
    v_and_b32 v{vT0}, 1, v{vLANE}
    v_lshl_add_u32 v{vVAb}, v{vT0}, 9, v{vVAb}
    v_bfe_u32 v{vT0}, v{vLANE}, 1, 1
    v_lshl_add_u32 v{vVAb}, v{vT0}, 3, v{vVAb}
    v_bfe_u32 v{vT0}, v{vLANE}, 2, 2
    v_lshl_add_u32 v{vT0}, v{vHH}, 2, v{vT0}
    v_lshl_add_u32 v{vVAb}, v{vT0}, 4, v{vVAb}
    v_add_u32 v{vVAb}, s{sLB}, v{vVAb}
    v_add_u32 v{vVAb}, 2048, v{vVAb}
    v_sub_u32 v{vHHI}, v{vHH}, 1
    v_sub_u32 v{vHH}, 0, v{vHH}
    """)
    a(f"""
    s_lshl_b32 s{sTMP}, s{sHEAD}, 4
    s_add_u32 s{sTMP}, s{sTMP}, s{sQB}
    s_lshl_b32 s{sTMP}, s{sTMP}, 9
    s_add_u32 s{sTMP}, s{sTMP}, {F1_OFF}
    s_lshl_b32 s{sTMP2}, s{sQB}, 3
    s_add_u32 s{sTMP2}, s{sTMP2}, s{sTMP}
    v_and_b32 v{vFA}, 1, v{vLANE}
    v_lshlrev_b32 v{vFA}, 7, v{vFA}
    v_add_u32 v{vFA}, s{sTMP2}, v{vFA}
    s_lshl_b32 s{sTMP2}, s{sWAVE}, 5
    s_add_u32 s{sTMP2}, s{sTMP2}, s{sTMP}
    s_add_u32 s{sTMP2}, s{sTMP2}, 128
    v_bfe_u32 v{vFA+1}, v{vLANE}, 2, 1
    v_lshlrev_b32 v{vFA+1}, 7, v{vFA+1}
    v_and_b32 v{vT0}, 3, v{vLANE}
    v_lshl_add_u32 v{vFA+1}, v{vT0}, 3, v{vFA+1}
    s_mov_b64 exec, 0xff
    v_add_u32 v{vFA}, s{sTMP2}, v{vFA+1}
    s_mov_b64 exec, -1
    """)
    mb23_addr(a, vFA+2, sQB, sHEAD, F3_OFF)
    a(f"v_mov_b32 v{vKA}, v{vKAb}")
    a(f"v_mov_b32 v{vVA}, v{vVAb}")
    a("s_waitcnt lgkmcnt(0)")
    for i in range(8):
        a(f"v_mov_b32 v{vP[1]+i}, 0")
        a(f"v_mov_b32 v{vV[1]+i}, 0")
    stamp(a, 8)
    a(f"""
    s_lshl_b32 s{sTMP}, s{sWAVE}, 16
    s_add_u32 s{sTMP}, s{sKV}, s{sTMP}
    v_add_u32 v{vKB}, s{sTMP}, v{vL16}
    s_mul_i32 s{sWR}, s{sQB}, {4096*env("ROTA", 1)}
    s_mov_b32 s{sMK}, 0xffff
    s_waitcnt vmcnt(0)
    v_readfirstlane_b32 s{sTAG}, v18
    v_readfirstlane_b32 s{sTAG+1}, v19
    s_min_u32 s{sTMP}, s{sTAG}, s{sTAG+1}
    s_cmp_lg_u32 s{sTMP}, 0
    s_cbranch_scc1 a_tagok
    """)
    get_tag(a, vT0+2)
    a.label("a_tagok")
    publish_flag(a, vT0+2, 17, 0)
    stamp(a, 9)
    a(f"s_setprio {env('APRIO', 3)}")
    prog_wait(a, vT0, LP, 7)
    if env("PFW", 0):
        set_srd(a, sA, pW2, DFF*D*2)
        set_srd(a, sB, pWO, D*D*2)
        a(f"""
        s_lshl_b32 s{sTMP}, s{sSL}, 2
        s_add_u32 s{sTMP}, s{sTMP}, s{sWAVE}
        v_lshlrev_b32 v{vT0}, 7, v{vLANE}
        s_lshl_b32 s{sTMP2}, s{sTMP}, 14
        buffer_load_dword v{vNM}, v{vT0}, {sr(sA,4)}, s{sTMP2} offen sc1
        s_add_u32 s{sTMP2}, s{sTMP2}, 8192
        buffer_load_dword v{vNM+1}, v{vT0}, {sr(sA,4)}, s{sTMP2} offen sc1
        s_lshl_b32 s{sTMP2}, s{sTMP}, 13
        buffer_load_dword v{vNM+2}, v{vT0}, {sr(sB,4)}, s{sTMP2} offen sc1
        """)
    stamp(a, 15)
    if env('F1SLEEP', 12): a(f"s_sleep {env('F1SLEEP', 12)}")
    poll_flags(a, vFA, vT0+2)
    a.label("a_pro")
    stamp(a, 16)
    a(f"""
    s_lshl_b32 s{sTMP}, s{sQB}, 14
    s_add_u32 s{sTMP}, s{sTMP}, s{sKV}
    buffer_load_dwordx4 {vr(vK[1],4)}, v{vL16}, {sr(sWS,4)}, s{sTMP} offen sc1
    buffer_load_dwordx4 {vr(vK[1]+4,4)}, v{vL16}, {sr(sWS,4)}, s{sTMP} offen offset:1024 sc1
    s_lshl_b32 s{sTMP2}, s{sQB}, 2
    s_lshl_b32 s{sTMP3}, s{sHEAD}, 6
    s_add_u32 s{sTMP2}, s{sTMP2}, s{sTMP3}
    """)
    for j in range(4):
        a(f"""
        s_xor_b32 s{sTMP}, s{sWAVE}, {j}
        s_add_u32 s{sTMP}, s{sTMP}, s{sTMP2}
        s_lshl_b32 s{sTMP}, s{sTMP}, 11
        buffer_load_dwordx4 {vr(vQ+8*j,4)}, v{vL16}, {sr(sWS,4)}, s{sTMP} offen sc1
        buffer_load_dwordx4 {vr(vQ+8*j+4,4)}, v{vL16}, {sr(sWS,4)}, s{sTMP} offen offset:1024 sc1
        """)
    stamp(a, 17)
    a(f"""
    s_mov_b32 m0, s{sLB}
    s_nop 0
    """)
    def dma_tile(va=None):
        for i in range(4):
            a(f"buffer_load_dwordx4 v{vKB if va is None else va}, {sr(sWS,4)}, s{sWR} offen offset:{1024*i} sc1 lds")
    def adv():
        a(f"s_add_u32 s{sWR}, s{sWR}, 4096")
        a(f"s_and_b32 s{sWR}, s{sWR}, s{sMK}")
    for t in range(2):
        dma_tile()
        a(f"s_add_u32 m0, m0, 16384")
        adv()
    for t in range(4):
        a(f"s_waitcnt vmcnt({8 + 2*(3-t)})")
        a(f"v_mfma_f32_32x32x16_bf16 {vr(vO+16*t,16)}, {vr(vK[1],4)}, {vr(vQ+8*t,4)}, 0")
        a(f"v_mfma_f32_32x32x16_bf16 {vr(vO+16*t,16)}, {vr(vK[1]+4,4)}, {vr(vQ+8*t+4,4)}, {vr(vO+16*t,16)}")
    a("s_nop 3")
    stamp(a, 18)
    def read_k(st, addr, off=0):
        a(f"ds_read_b128 {vr(vK[st],4)}, v{addr} offset:{off}")
        a(f"ds_read_b128 {vr(vK[st]+4,4)}, v{addr} offset:{off+1024}")
    def read_v_ins(st, addr, off=0):
        return [f"ds_read_b64_tr_b16 {vr(vV[st]+4*s_+2*p,2)}, v{addr} offset:{off+(16*s_+8*p)*16}" for s_ in range(2) for p in range(2)]
    for j in range(4):
        o = vO + 16*j
        if j == 2:
            prog_wait(a, vT0, SP, 1)
            for t in range(2):
                dma_tile()
                if t == 0:
                    a(f"s_add_u32 m0, m0, 16384")
                adv()
        if j == 3:
            a("s_waitcnt vmcnt(12)")
            read_k(0, vKAb)
            for x in read_v_ins(0, vVAb): a(x)
        t = vT0 + (j & 1) * 2
        a(f"v_max3_f32 v{t}, v{o}, v{o+1}, v{o+2}")
        for i in range(3, 15, 2):
            a(f"v_max3_f32 v{t}, v{t}, v{o+i}, v{o+i+1}")
        a(f"v_max_f32 v{t}, v{t}, v{o+15}")
        a(f"v_mov_b32 v{t+1}, v{t}")
        a(f"v_mfma_f32_32x32x16_bf16 {vr(o,16)}, {vr(vP[1],4)}, {vr(vP[1],4)}, 0")
        a("s_nop 0")
        a(f"v_permlane32_swap_b32 v{t}, v{t+1}")
        a("s_nop 1")
        a(f"v_max_f32 v{t}, v{t}, v{t+1}")
        a(f"v_add_f32 v{t}, {f32bits(BIAS - 1.0):#x}, v{t}")
        a(f"v_cvt_pk_bf16_f32 v{t}, -v{t}, 0")
        a(f"v_and_b32 v{t}, v{t}, v{vHH}")
        a(f"v_and_or_b32 v{vQ+8*j+6}, v{vQ+8*j+6}, v{vHHI}, v{t}")
    a(f"""
    s_mov_b32 s{sRD}, 0
    s_mov_b32 s{sIT}, 0
    s_waitcnt lgkmcnt(0)
    """)
    a(f"v_mfma_f32_32x32x16_bf16 {vr(vS[0],16)}, {vr(vK[0],4)}, {vr(vQ,4)}, 0")
    a(f"v_mfma_f32_32x32x16_bf16 {vr(vS[0],16)}, {vr(vK[0]+4,4)}, {vr(vQ+4,4)}, {vr(vS[0],16)}")
    a("s_nop 7")
    a("s_nop 3")
    def body(sl):
        st = sl % 2
        for j in range(4):
            sc = vS[j % 2]; sn = vS[(j + 1) % 2]
            pc = vP[j % 2]; pp = vP[(j + 1) % 2]
            kn = vK[st] if j < 3 else vK[1 - st]
            qn = vQ + 8 * ((j + 1) % 4)
            vv = vV[st] if j > 0 else vV[1 - st]
            op = vO + 16 * ((j + 3) % 4)
            mf = [
                f"v_mfma_f32_32x32x16_bf16 {vr(sn,16)}, {vr(kn,4)}, {vr(qn,4)}, 0",
                f"v_mfma_f32_32x32x16_bf16 {vr(sn,16)}, {vr(kn+4,4)}, {vr(qn+4,4)}, {vr(sn,16)}",
                f"v_mfma_f32_32x32x16_bf16 {vr(op,16)}, {vr(vv,4)}, {vr(pp,4)}, {vr(op,16)}",
                f"v_mfma_f32_32x32x16_bf16 {vr(op,16)}, {vr(vv+4,4)}, {vr(pp+4,4)}, {vr(op,16)}",
            ]
            if j == 3:
                a("s_waitcnt lgkmcnt(4)" if env("SPREAD", 0) else "s_waitcnt lgkmcnt(0)")
            if j == 0 and env("SPREAD", 0):
                a("s_waitcnt lgkmcnt(0)")
            plan = [[("e", 0), ("e", 1), ("e", 2)], [("e", 3), ("e", 4), ("e", 5)], [("e", 6), ("e", 7), ("e", 8)],
                    [("e", i) for i in range(9, 16)] + [("c", i) for i in range(8)]]
            for g in range(4):
                a(mf[g])
                if j == 0 and g == 2:
                    a(f"s_add_u32 m0, s{sLB}, {16384*sl}")
                if env("SPREAD", 0):
                    if g == 3:
                        a(f"buffer_load_dwordx4 v{vKB}, {sr(sWS,4)}, s{sWR} offen offset:{1024*j} sc1 lds")
                        if j == 3: adv()
                    if j == 1 and g == 3:
                        a("s_waitcnt vmcnt(10)")
                        read_k(1 - st, vKAb, 16384*((sl+1) % 4))
                    if j == 2 and g == 3:
                        for x in read_v_ins(1 - st, vVAb, 16384*((sl+1) % 4)): a(x)
                else:
                    if j == 0 and g == 3:
                        a(f"s_cmp_eq_u32 s{sIT}, 3")
                        a(f"s_cbranch_scc1 a_nd{sl}")
                        a("s_setprio 3")
                        dma_tile()
                        a("s_setprio 1")
                        adv()
                        a.label(f"a_ndb{sl}")
                    if j == 1 and g == 3:
                        a("s_waitcnt vmcnt(12)")
                        read_k(1 - st, vKAb, 16384*((sl+1) % 4))
                        for x in read_v_ins(1 - st, vVAb, 16384*((sl+1) % 4)): a(x)
                for kind, i in plan[g]:
                    if kind == "e":
                        a(f"v_exp_f32 v{sc+i}, v{sc+i}")
                    else:
                        a(f"v_cvt_pk_bf16_f32 v{pc+i}, v{sc+2*i}, v{sc+2*i+1}")
    a("s_setprio 1")
    stamp(a, 19)
    dry_end(a)
    a.raw(".p2align 6")
    a.label("a_loop")
    body(0)
    body(1)
    dry_end(a)
    a.label("a_loop2")
    body(2)
    body(3)
    dry_end(a)
    if env("STL", 0) & 8: stamp_dyn(a, 24, sIT)
    a(f"""
    s_add_u32 s{sIT}, s{sIT}, 1
    s_cmp_lt_u32 s{sIT}, 4
    s_cbranch_scc1 a_loop
    """)
    a.label("a_tail")
    stamp(a, 20)
    a("s_setprio 3")
    a("s_nop 1")
    a(f"v_mfma_f32_32x32x16_bf16 {vr(vO+48,16)}, {vr(vV[1],4)}, {vr(vP[1],4)}, {vr(vO+48,16)}")
    a(f"v_mfma_f32_32x32x16_bf16 {vr(vO+48,16)}, {vr(vV[1]+4,4)}, {vr(vP[1]+4,4)}, {vr(vO+48,16)}")
    a("s_waitcnt vmcnt(0)")
    a("s_nop 3")
    reduce_write(a, vO, vT0, sLB, js=16384)
    a("s_waitcnt lgkmcnt(0)")
    prog_set(a, vT0, AP, 1)
    prog_wait(a, vT0, AP, 1, sleep=0)
    reduce_read(a, vO, vS[0], vT0, ATT0, js=16384, wsh=12)
    a(f"s_mov_b32 s{sFB}, 0")
    stamp(a, 21)
    a.label("a_norm")
    a(f"""
    v_mov_b32 v{vT0}, v{vO+12}
    v_mov_b32 v{vT0+1}, v{vO+12}
    s_nop 1
    v_permlane32_swap_b32 v{vT0}, v{vT0+1}
    s_nop 1
    v_rcp_f32 v{vT0}, v{vT0+1}
    v_mov_b32 v{vT0+2}, 0
    """)
    for i in range(16):
        a(f"v_mul_f32 v{vS[0]+i}, v{vO+i}, v{vT0}")
    for i in range(16):
        a(f"v_fma_f32 v{vT0+2}, v{vS[0]+i}, 0, v{vT0+2}")
    a(f"""
    s_mov_b32 s{sTMP}, {f32bits(2.0**-90):#x}
    v_cmp_nle_f32 vcc, s{sTMP}, v{vT0+1}
    s_mov_b32 s{sTMP}, {f32bits(2.0**100):#x}
    v_cmp_nge_f32 s[72:73], s{sTMP}, v{vT0+1}
    v_cmp_u_f32 s[74:75], v{vT0+2}, v{vT0+2}
    s_or_b64 vcc, vcc, s[72:73]
    s_or_b64 vcc, vcc, s[74:75]
    s_cmp_lg_u32 s{sFB}, 0
    s_cbranch_scc1 a_store
    s_cbranch_vccnz a_fallback
    """)
    a.label("a_store")
    for i in range(8):
        a(f"v_cvt_pk_bf16_f32 v{vP[0]+i}, v{vS[0]+2*i}, v{vS[0]+2*i+1}")
    a(f"""
    v_and_b32 v{vP[0]+6}, v{vP[0]+6}, v{vHHI}
    v_and_b32 v{vP[0]+7}, v{vP[0]+7}, v{vHHI}
    s_lshl_b32 s{sTMP3}, s{sQB}, 2
    s_add_u32 s{sTMP3}, s{sTMP3}, s{sWAVE}
    s_mul_i32 s{sTMP}, s{sTMP3}, 144
    s_lshl_b32 s{sTMP2}, s{sHEAD}, 1
    s_add_u32 s{sTMP}, s{sTMP}, s{sTMP2}
    s_lshl_b32 s{sTMP}, s{sTMP}, 10
    s_add_u32 s{sTMP}, s{sTMP}, {HF_OFF + 112*1024}
    buffer_store_dwordx4 {vr(vP[0],4)}, v{vL16}, {sr(sWS,4)}, s{sTMP} offen sc1
    buffer_store_dwordx4 {vr(vP[0]+4,4)}, v{vL16}, {sr(sWS,4)}, s{sTMP} offen offset:1024 sc1
    s_waitcnt vmcnt(0)
    """)
    stamp(a, 22)
    publish_flag(a, vT0+2, vFA+2, 2)
    prog_set(a, vT0, AP, 2)
    dry_end(a)
    stamp_flush(a, 0, sWS, sW8, 20, wpw=8)
    a("s_endpgm")
    for sl in range(4):
        a.label(f"a_nd{sl}")
        a(f"s_waitcnt vmcnt({max(0, 8 - 4*sl)})")
        a(f"s_branch a_ndb{sl}")
    a.label("a_fallback")
    a(f"""
    v_and_b32 v{vQ+6}, v{vQ+6}, v{vHHI}
    v_mov_b32 v{vT0}, 0xff800000
    s_mov_b32 s{sWR}, s{sKV}
    s_mov_b32 s{sIT}, 0
    """)
    a.label("a_fb1")
    a(f"""
    buffer_load_dwordx4 {vr(vK[0],4)}, v{vL16}, {sr(sWS,4)}, s{sWR} offen sc1
    buffer_load_dwordx4 {vr(vK[0]+4,4)}, v{vL16}, {sr(sWS,4)}, s{sWR} offen offset:1024 sc1
    s_waitcnt vmcnt(0)
    v_mfma_f32_32x32x16_bf16 {vr(vS[0],16)}, {vr(vK[0],4)}, {vr(vQ,4)}, 0
    v_mfma_f32_32x32x16_bf16 {vr(vS[0],16)}, {vr(vK[0]+4,4)}, {vr(vQ+4,4)}, {vr(vS[0],16)}
    s_nop 15
    s_nop 3
    """)
    for i in range(0, 16, 2):
        a(f"v_max3_f32 v{vT0}, v{vT0}, v{vS[0]+i}, v{vS[0]+i+1}")
    a(f"""
    s_add_u32 s{sWR}, s{sWR}, 4096
    s_add_u32 s{sIT}, s{sIT}, 1
    s_cmp_lt_u32 s{sIT}, 64
    s_cbranch_scc1 a_fb1
    v_mov_b32 v{vT0+1}, v{vT0}
    s_nop 1
    v_permlane32_swap_b32 v{vT0}, v{vT0+1}
    s_nop 1
    v_max_f32 v{vT0}, v{vT0}, v{vT0+1}
    """)
    for i in range(16):
        a(f"v_sub_f32 v{vNM+i}, 0, v{vT0}")
        a(f"v_mov_b32 v{vO+i}, 0")
    a(f"""
    s_add_u32 m0, s{sLB}, 49152
    v_add_u32 v{vKA}, 49152, v{vKAb}
    v_add_u32 v{vVA}, 49152, v{vVAb}
    s_mov_b32 s{sWR}, s{sKV}
    s_mov_b32 s{sIT}, 0
    """)
    a.label("a_fb2")
    dma_tile(vL16)
    a("s_waitcnt vmcnt(0)")
    read_k(0, vKA)
    for x in read_v_ins(0, vVA): a(x)
    a(f"""
    s_waitcnt lgkmcnt(0)
    v_mfma_f32_32x32x16_bf16 {vr(vS[0],16)}, {vr(vK[0],4)}, {vr(vQ,4)}, {vr(vNM,16)}
    v_mfma_f32_32x32x16_bf16 {vr(vS[0],16)}, {vr(vK[0]+4,4)}, {vr(vQ+4,4)}, {vr(vS[0],16)}
    s_nop 15
    s_nop 3
    """)
    for i in range(16):
        a(f"v_exp_f32 v{vS[0]+i}, v{vS[0]+i}")
    a("s_nop 0")
    for i in range(8):
        a(f"v_cvt_pk_bf16_f32 v{vP[0]+i}, v{vS[0]+2*i}, v{vS[0]+2*i+1}")
    a(f"""
    s_nop 1
    v_mfma_f32_32x32x16_bf16 {vr(vO,16)}, {vr(vV[0],4)}, {vr(vP[0],4)}, {vr(vO,16)}
    v_mfma_f32_32x32x16_bf16 {vr(vO,16)}, {vr(vV[0]+4,4)}, {vr(vP[0]+4,4)}, {vr(vO,16)}
    s_add_u32 s{sWR}, s{sWR}, 4096
    s_add_u32 s{sIT}, s{sIT}, 1
    s_cmp_lt_u32 s{sIT}, 64
    s_cbranch_scc1 a_fb2
    s_nop 15
    s_nop 3
    s_mov_b32 s{sFB}, 1
    s_branch a_norm
    """)

def gen_gemm2(a):
    sMT, sNT, sHO, sWOFF, sGB, sWO3, sBLK = sR, sR+1, sR+2, sR+3, sR+4, sR+5, sR+6
    vH0, vH1, vWD, vTR0, vTR1, vXA, vT0, vFA = 3, 4, 5, 6, 7, 8, 12, 15
    vXD = 18
    vWF = 224
    vACC = 80
    vHR = 144
    vWB = 16
    if env("STS", 0):
        stamp_flush(a, 0, sWS, sW8, 20, wpw=8)
        a("s_endpgm")
    a(f"""
    s_mul_i32 s{sTMP}, s{sSL}, 37
    s_lshr_b32 s{sTMP}, s{sTMP}, 8
    s_mul_i32 s{sTMP2}, s{sTMP}, 7
    s_sub_u32 s{sNT}, s{sSL}, s{sTMP2}
    s_lshl_b32 s{sMT}, s{sXCD}, 2
    s_add_u32 s{sMT}, s{sMT}, s{sTMP}
    s_lshl_b32 s{sMT}, s{sMT}, 1
    """)
    a(f"""
    v_and_b32 v{vFA}, 3, v{vLANE}
    s_mul_i32 s{sTMP}, s{sXCD}, 28
    s_add_u32 s{sTMP}, s{sTMP}, s{sSL}
    s_lshl_b32 s{sTMP}, s{sTMP}, 2
    s_add_u32 s{sTMP}, s{sTMP}, s{sWAVE}
    s_lshl_b32 s{sTMP}, s{sTMP}, 2
    v_add_u32 v{vFA}, s{sTMP}, v{vFA}
    v_lshlrev_b32 v{vFA}, 3, v{vFA}
    v_add_u32 v{vFA}, {F2_OFF}, v{vFA}
    s_and_b32 s{sTMP}, s{sWAVE}, 1
    s_add_u32 s{sMT}, s{sMT}, s{sTMP}
    s_mul_i32 s{sTMP}, s{sMT}, {144*1024}
    s_add_u32 s{sTMP}, s{sTMP}, {HF_OFF}
    v_add_u32 v{vH0}, s{sTMP}, v{vL16}
    s_xor_b32 s{sTMP}, s{sMT}, 1
    s_mul_i32 s{sTMP}, s{sTMP}, {144*1024}
    s_add_u32 s{sTMP}, s{sTMP}, {HF_OFF}
    v_add_u32 v{vH1}, s{sTMP}, v{vL16}
    s_mul_i32 s{sHO}, s{sWAVE}, {28*1024}
    s_lshl_b32 s{sGB}, s{sWAVE}, 14
    s_add_u32 s{sGB}, s{sGB}, {GR0}
    """)
    a(f"""
    v_lshrrev_b32 v{vT0}, 3, v{vLANE}
    v_bfe_u32 v{vT0+1}, v{vLANE}, 4, 1
    v_lshlrev_b32 v{vT0+1}, 2, v{vT0+1}
    v_and_b32 v{vT0+2}, 7, v{vLANE}
    v_xor_b32 v{vT0+2}, v{vT0+2}, v{vT0+1}
    v_lshlrev_b32 v{vT0+2}, 4, v{vT0+2}
    s_movk_i32 s{sTMP}, 896
    v_mad_u32_u24 v{vWD}, v{vT0}, s{sTMP}, v{vT0+2}
    s_mul_i32 s{sWOFF}, s{sWAVE}, {448*896}
    s_lshl_b32 s{sTMP}, s{sNT}, 7
    s_add_u32 s{sWOFF}, s{sWOFF}, s{sTMP}
    """)
    a(f"""
    v_lshrrev_b32 v{vT0}, 5, v{vLANE}
    v_bfe_u32 v{vT0+1}, v{vLANE}, 2, 2
    v_lshl_add_u32 v{vT0}, v{vT0}, 2, v{vT0+1}
    v_lshlrev_b32 v{vTR0}, 7, v{vT0}
    v_bfe_u32 v{vT0+1}, v{vLANE}, 3, 1
    s_lshr_b32 s{sTMP}, s{sWAVE}, 1
    v_xor_b32 v{vT0+1}, s{sTMP}, v{vT0+1}
    v_lshl_add_u32 v{vTR0}, v{vT0+1}, 6, v{vTR0}
    v_bfe_u32 v{vT0+1}, v{vLANE}, 4, 1
    v_lshl_add_u32 v{vTR0}, v{vT0+1}, 5, v{vTR0}
    v_and_b32 v{vT0+1}, 3, v{vLANE}
    v_lshl_add_u32 v{vTR0}, v{vT0+1}, 3, v{vTR0}
    v_xor_b32 v{vTR1}, 64, v{vTR0}
    v_add_u32 v{vTR0}, s{sGB}, v{vTR0}
    v_add_u32 v{vTR1}, s{sGB}, v{vTR1}
    s_lshl_b32 s{sNT}, s{sNT}, 1
    s_add_u32 s{sNT}, s{sNT}, s{sTMP}
    """)
    def loadw(k):
        a(f"s_add_u32 m0, s{sGB}, {2048*k}")
        a(f"s_add_u32 s{sTMP}, s{sWOFF}, {8*896 - 1024}")
        a(f"buffer_load_dwordx4 v{vWD}, {sr(sB,4)}, s{sWOFF} offen lds")
        a(f"buffer_load_dwordx4 v{vWD}, {sr(sB,4)}, s{sTMP} offen offset:1024 lds")
        a(f"s_add_u32 s{sWOFF}, s{sWOFF}, {16*896}")
    def loadh(k):
        f = vHR + 8*k
        a(f"buffer_load_dwordx4 {vr(f,4)}, v{vH0}, {sr(sWS,4)}, s{sHO} offen sc1")
        a(f"buffer_load_dwordx4 {vr(f+4,4)}, v{vH1}, {sr(sWS,4)}, s{sHO} offen sc1")
        a(f"s_add_u32 s{sHO}, s{sHO}, 1024")
    def loads(k):
        loadw(k); loadh(k)
    def rdw(k, dst):
        for t, ad in ((0, vTR0), (1, vTR1)):
            for p in range(2):
                a(f"ds_read_b64_tr_b16 {vr(dst+4*t+2*p,2)}, v{ad} offset:{2048*k + 1024*p}")
    def mfmas(w, h):
        for j in range(4):
            a(f"v_mfma_f32_32x32x16_bf16 {vr(vACC+16*j,16)}, {vr(w+4*(j>>1),4)}, {vr(h+4*(j&1),4)}, {vr(vACC+16*j,16)}")
    vFA3, vXD3, vOA = 208, 212, 220
    set_srd(a, sB, pWO, D*D*2)
    set_srd(a, sA, pX, S*D*2)
    set_srd(a, sCc, pOUT, S*D*2)
    a(f"""
    s_mul_i32 s{sWO3}, s{sWAVE}, {4*28*896}
    s_lshr_b32 s{sTMP}, s{sNT}, 1
    s_lshl_b32 s{sTMP}, s{sTMP}, 7
    s_add_u32 s{sWO3}, s{sWO3}, s{sTMP}
    """)
    for k in range(8):
        off = (28*(k >> 1) + 16*(k & 1)) * 896
        a(f"s_add_u32 m0, s{sGB}, {2048*k}")
        a(f"s_add_u32 s{sTMP}, s{sWO3}, {off}")
        a(f"buffer_load_dwordx4 v{vWD}, {sr(sB,4)}, s{sTMP} offen lds")
        a(f"s_add_u32 s{sTMP}, s{sWO3}, {off + 8*896 - 1024}")
        a(f"buffer_load_dwordx4 v{vWD}, {sr(sB,4)}, s{sTMP} offen offset:1024 lds")
    a(f"""
    v_add_u32 v{vFA3}, {F3_OFF - F2_OFF}, v{vFA}
    v_and_b32 v{vOA}, 31, v{vLANE}
    s_lshl_b32 s{sTMP}, s{sMT}, 5
    v_add_u32 v{vOA}, s{sTMP}, v{vOA}
    s_movk_i32 s{sTMP}, 896
    v_mul_lo_u32 v{vOA}, v{vOA}, s{sTMP}
    v_lshrrev_b32 v{vT0}, 5, v{vLANE}
    v_lshl_add_u32 v{vXA}, v{vT0}, 3, v{vOA}
    v_lshl_add_u32 v{vOA}, v{vT0}, 4, v{vOA}
    s_lshl_b32 s{sNT}, s{sNT}, 6
    """)
    for g in range(4):
        a(f"buffer_load_dwordx2 {vr(vXD3+2*g,2)}, v{vXA}, {sr(sA,4)}, s{sNT} offen offset:{16*g}")
    a(f"s_lshr_b32 s{sTMP3}, s{sMT32}, 2")
    mb23_addr(a, 16, sTMP3, sCOL, F2_OFF)
    a(f"""
    s_waitcnt vmcnt(20)
    """)
    publish_flag(a, vT0, 16, 1)
    a(f"""
    s_cmp_ge_u32 s{sSL}, 28
    s_cbranch_scc1 k_end
    """)
    stamp(a, 13)
    a("s_waitcnt vmcnt(0)")
    for k in range(8):
        rdw(k, vWB + 8*k)
        if k % 2 == 1: a("s_waitcnt lgkmcnt(0)")
    for g in range(4):
        for p in range(2):
            a(f"v_lshlrev_b32 v{vT0}, 16, v{vXD3+2*g+p}")
            a(f"v_and_b32 v{vT0+1}, 0xffff0000, v{vXD3+2*g+p}")
            a(f"v_add_f32 v{vACC+4*g+2*p}, v{vACC+4*g+2*p}, v{vT0}")
            a(f"v_add_f32 v{vACC+4*g+2*p+1}, v{vACC+4*g+2*p+1}, v{vT0+1}")
    set_srd(a, sB, pW2, DFF*D*2)
    WPRE = env("WPRE", 1)
    a(f"""
    s_mul_i32 s{sBLK}, s{sSL}, {env("ROTG", 1)}
    s_and_b32 s{sBLK}, s{sBLK}, 3
    s_mul_i32 s{sTMP}, s{sBLK}, {7*1024}
    s_add_u32 s{sHO}, s{sHO}, s{sTMP}
    s_mul_i32 s{sTMP}, s{sBLK}, {7*16*896}
    s_add_u32 s{sWOFF}, s{sWOFF}, s{sTMP}
    """)
    if WPRE:
        for k in range(7): loadw(k)
        a(f"s_mov_b32 s{sTMP2}, {OOB:#x}")
    stamp(a, 20)
    poll_flags(a, vFA, vT0)
    stamp(a, 14)
    a.label("g_pre")
    for k in range(7):
        if WPRE:
            loadh(k)
        else:
            loads(k)
    a(f"s_mov_b32 s{sIT}, 0")
    a(f"s_setprio {env('GPRIO', 2)}")
    dry_end(a)
    a.label("g_loop")
    a(f"""
    s_add_u32 s{sBLK}, s{sBLK}, 1
    s_cmp_eq_u32 s{sBLK}, 4
    s_cselect_b32 s{sTMP}, {28*1024}, 0
    s_cselect_b32 s{sTMP2}, {28*16*896}, 0
    s_sub_u32 s{sHO}, s{sHO}, s{sTMP}
    s_sub_u32 s{sWOFF}, s{sWOFF}, s{sTMP2}
    """)
    for k in range(7):
        a("s_waitcnt vmcnt(12)")
        rdw(k, vWF)
        a("s_waitcnt lgkmcnt(0)")
        if env("GTOG", 1): a("s_setprio 0")
        mfmas(vWF, vHR + 8*k)
        if env("GTOG", 1): a("s_setprio 2")
        a(f"s_cmp_eq_u32 s{sIT}, 3")
        a(f"s_cbranch_scc1 g_nl{k}")
        loads(k)
        a.label(f"g_nlb{k}")
    dry_end(a)
    a(f"""
    s_add_u32 s{sIT}, s{sIT}, 1
    s_cmp_lt_u32 s{sIT}, 4
    s_cbranch_scc1 g_loop
    """)
    a("s_branch g_p3")
    for k in range(7):
        a.label(f"g_nl{k}")
        if k >= 3: a(f"s_waitcnt vmcnt({max(0, 4*(5-k))})")
        a(f"s_branch g_nlb{k}")
    a.label("g_p3")
    a("s_setprio 2")
    a("s_waitcnt vmcnt(0)")
    stamp(a, 15)
    a(f"""
    s_lshl_b32 s{sHO}, s{sWAVE}, 13
    s_add_u32 s{sHO}, s{sHO}, {112*1024}
    s_add_u32 s{sTMP2}, s{sHO}, 4096
    """)
    stamp(a, 16)
    dry_end(a)
    a.label("g_tail")
    if env("F3W", 2): prog_wait(a, vT0, AP, env("F3W", 2), sleep=2)
    if env("F3S", 0): a(f"s_sleep {env('F3S', 0)}")
    poll_flags(a, vFA3, vT0)
    stamp(a, 17)
    for k in range(8):
        f = vHR + 8*k
        so = sHO if k < 4 else sTMP2
        a(f"buffer_load_dwordx4 {vr(f,4)}, v{vH0}, {sr(sWS,4)}, s{so} offen offset:{1024*(k%4)} sc1")
        a(f"buffer_load_dwordx4 {vr(f+4,4)}, v{vH1}, {sr(sWS,4)}, s{so} offen offset:{1024*(k%4)} sc1")
    for k in range(8):
        a(f"s_waitcnt vmcnt({14 - 2*k})")
        mfmas(vWB + 8*k, vHR + 8*k)
    stamp(a, 18)
    a("s_nop 7")
    a("s_nop 3")
    reduce_write(a, vACC, vT0, sGB)
    a("s_waitcnt lgkmcnt(0)")
    prog_set(a, vT0, SP, 3)
    prog_wait(a, vT0, SP, 3, sleep=0)
    dry_end(a)
    a.label("g_tail2")
    reduce_read(a, vACC, vHR, vT0, GR0)
    stamp(a, 19)
    for i in range(8):
        a(f"v_cvt_pk_bf16_f32 v{vHR+i}, v{vACC+2*i}, v{vACC+2*i+1}")
    a("s_nop 1")
    for q in range(2):
        a(f"v_permlane32_swap_b32 v{vHR+4*q}, v{vHR+4*q+2}")
        a(f"v_permlane32_swap_b32 v{vHR+4*q+1}, v{vHR+4*q+3}")
    a("s_nop 1")
    for q in range(2):
        a(f"buffer_store_dwordx4 {vr(vHR+4*q,4)}, v{vOA}, {sr(sCc,4)}, s{sNT} offen offset:{32*q}")
    dry_end(a)
    stamp_flush(a, 0, sWS, sW8, 20, wpw=8)
```

```python
import sys, math, struct, os
from asmlib import *

NAME = "parallel_sum__mha_block__dense_activation_relu__prompt"
S, D, H, DH, DFF = 2048, 448, 16, 28, 1792
QF_OFF = 0
KF_OFF = 2 << 20
VF_OFF = 4 << 20
HF_OFF = 7 << 20
FL_OFF = 17 << 20
F1_OFF, F2_OFF, F3_OFF = FL_OFF, FL_OFF + 131072, FL_OFF + 131072 + 32768
WS_SIZE = 0x10000000
OOB = 0x40000000
BIAS = 80.0
SPIN_G = 1 << 19
SPIN_L = 1 << 22
def env(k, d): return int(os.environ.get(k, str(d)))
DRY = env("DRY", 0)

def f32bits(x): return struct.unpack("<I", struct.pack("<f", x))[0]
QSCALE = math.log2(math.e) / math.sqrt(DH)

class LgkmTracker:
    def __init__(self, a): self.a = a; self.q = []
    def issue(self, tag): self.q.append(tag)
    def need(self, tag):
        if tag in self.q:
            idx = len(self.q) - 1 - self.q[::-1].index(tag)
            n = min(len(self.q) - 1 - idx, 13)
            self.a(f"s_waitcnt lgkmcnt({n})")
            self.q = self.q[len(self.q) - n:] if n > 0 else []

SLOT = 28672
SL0 = 12288
WB = SL0 + SLOT
ATT0 = 0
GR0 = 90112
CTL = SL0 + 5*SLOT
CSA, CSB_, STA = CTL + 4096, CTL + 4608, CTL + 5120
LP, CP, AP, SP = CTL + 6144, CTL + 6160, CTL + 6176, CTL + 6192
LDS_TOTAL = 163840

pX, pWQ, pWO, pW1, pW2, pOUT, pDBG = 4, 6, 8, 12, 14, 16, 18
sWS, sA, sB, sCc = 20, 24, 28, 32
sXCD, sSL, sW8, sWAVE, sMT32, sCOL, sTMP, sTMP2, sTMP3, sIT = 36, 37, 38, 39, 40, 41, 42, 43, 44, 45
sR = 46
sTAG, sSPIN, sRET = 76, 78, 90
vLANE, vL16, vPW, vPR, vF0 = 1, 2, 9, 10, 0

def dry_end(a):
    if DRY: a("s_cbranch_execz dry_ret")
def dry_call(a, label):
    a(f"s_call_b64 s[{sRET}:{sRET+1}], {label}")
def dry_by_wave(a, plans, name):
    if not (DRY >> (int(name[-1]) - 1)) & 1: return
    a("s_mov_b64 exec, 0")
    for w in range(4):
        if w < 3:
            a(f"s_cmp_lg_u32 s{sWAVE}, {w}")
            a(f"s_cbranch_scc1 {name}_{w+1}")
        for lbl in plans[w]:
            dry_call(a, lbl)
        if w < 3:
            a(f"s_branch {name}_end")
            a.label(f"{name}_{w+1}")
    a.label(f"{name}_end")
    a("s_mov_b64 exec, -1")

def prog_wait(a, vD, base, target, sleep=1):
    lp = a.newlabel("lw"); dn = a.newlabel("lwd")
    a(f"s_mov_b32 s{sSPIN}, {SPIN_L}")
    a.label(lp)
    a(f"""
    ds_read_b32 v{vD}, v{vPR} offset:{base - CTL}
    s_waitcnt lgkmcnt(0)
    v_cmp_gt_u32 vcc, {target}, v{vD}
    s_cbranch_vccz {dn}
    s_sleep {sleep}
    s_sub_u32 s{sSPIN}, s{sSPIN}, 1
    s_cbranch_scc0 {lp}
    """)
    a.label(dn)
def prog_set(a, vD, base, val):
    a(f"v_mov_b32 v{vD}, {val}")
    a(f"ds_write_b32 v{vPW}, v{vD} offset:{base - CTL}")
def get_tag(a, vD):
    lp = a.newlabel("tg"); dn = a.newlabel("tgd")
    a(f"s_mov_b32 s{sSPIN}, {SPIN_G}")
    a.label(lp)
    a(f"""
    buffer_load_dwordx2 {vr(vD,2)}, v{vF0}, {sr(sCc,4)}, 0 offen sc1
    s_waitcnt vmcnt(0)
    v_readfirstlane_b32 s{sTAG}, v{vD}
    v_readfirstlane_b32 s{sTAG+1}, v{vD+1}
    s_cbranch_execz {dn}
    s_min_u32 s{sTMP}, s{sTAG}, s{sTAG+1}
    s_cmp_lg_u32 s{sTMP}, 0
    s_cbranch_scc1 {dn}
    s_sub_u32 s{sSPIN}, s{sSPIN}, 1
    s_cbranch_scc0 {lp}
    """)
    a.label(dn)
def poll_flags(a, vFA, vD):
    lp = a.newlabel("pf"); dn = a.newlabel("pfd")
    a(f"s_mov_b32 s{sSPIN}, {SPIN_G}")
    a.label(lp)
    a(f"""
    buffer_load_dwordx2 {vr(vD,2)}, v{vFA}, {sr(sWS,4)}, 0 offen sc1
    s_waitcnt vmcnt(0)
    v_cmp_ne_u64 vcc, {sr(sTAG,2)}, {vr(vD,2)}
    s_cbranch_vccz {dn}
    s_sleep {env('PSLEEP', 3)}
    s_sub_u32 s{sSPIN}, s{sSPIN}, 1
    s_cbranch_scc0 {lp}
    """)
    a.label(dn)
GC = CTL + 6208
def publish_flag(a, vD, vMB, gidx):
    sk = a.newlabel("pub")
    a(f"""
    s_lshl_b32 s{sSPIN}, s{sWAVE}, 2
    v_mov_b32 v{vD+1}, 1
    v_subrev_u32 v{vD}, s{sSPIN}, v{vPW}
    ds_add_rtn_u32 v{vD+1}, v{vD}, v{vD+1} offset:{GC + 4*gidx - CTL}
    v_mov_b32 v{vD}, s{sTAG}
    s_waitcnt lgkmcnt(0)
    v_readfirstlane_b32 s{sSPIN}, v{vD+1}
    v_mov_b32 v{vD+1}, s{sTAG+1}
    s_cmp_lg_u32 s{sSPIN}, 3
    s_cbranch_scc1 {sk}
    buffer_store_dwordx2 {vr(vD,2)}, v{vMB}, {sr(sWS,4)}, 0 offen sc1
    """)
    a.label(sk)
def mb23_addr(a, vMB, sBLK, sSLOT_, base):
    a(f"""
    s_mul_i32 s{sTMP}, s{sBLK}, {14*128}
    s_lshl_b32 s{sTMP2}, s{sSLOT_}, 3
    s_add_u32 s{sTMP}, s{sTMP}, s{sTMP2}
    s_add_u32 s{sTMP}, s{sTMP}, {base}
    v_lshlrev_b32 v{vMB}, 7, v{vLANE}
    v_add_u32 v{vMB}, s{sTMP}, v{vMB}
    v_cmp_lt_u32 vcc, 13, v{vLANE}
    v_mov_b32 v{vMB+1}, {OOB:#x}
    s_nop 0
    v_cndmask_b32 v{vMB}, v{vMB}, v{vMB+1}, vcc
    """)
def set_srd(a, srd, ptr, size):
    a(f"""
    s_mov_b32 s{srd}, s{ptr}
    s_mov_b32 s{srd+1}, s{ptr+1}
    s_mov_b32 s{srd+2}, {size}
    """)

def gen(a):
    KN = NAME + "_kernel"
    a.label(KN)
    a(f"""
    s_cmp_ge_u32 s2, 256
    s_cbranch_scc1 k_end
    """)
    stamp(a, 0)
    a(f"""
    s_load_dwordx4 s[4:7], s[0:1], 0
    s_load_dwordx2 s[8:9], s[0:1], 16
    s_load_dwordx8 s[12:19], s[0:1], 32
    s_load_dwordx2 s[{sWS}:{sWS+1}], s[0:1], 64
    v_lshlrev_b32 v7, 3, v0
    v_add_u32 v7, {CTL + 4096}, v7
    v_mov_b32 v4, 0
    v_mov_b32 v5, 0
    ds_write_b64 v7, v[4:5]
    v_and_b32 v{vLANE}, 63, v0
    v_lshrrev_b32 v7, 6, v0
    v_lshlrev_b32 v{vL16}, 4, v{vLANE}
    v_readfirstlane_b32 s{sW8}, v7
    s_and_b32 s{sXCD}, s2, 7
    s_lshr_b32 s{sSL}, s2, 3
    s_mov_b32 s{sWS+2}, {WS_SIZE:#x}
    s_mov_b32 s{sWS+3}, 0x00020000
    s_mov_b32 s{sA+3}, 0x00020000
    s_mov_b32 s{sB+3}, 0x00020000
    s_mov_b32 s{sCc+3}, 0x00020000
    s_and_b32 s{sWAVE}, s{sW8}, 3
    s_and_b32 s{sMT32}, s{sXCD}, 1
    s_lshl_b32 s{sMT32}, s{sMT32}, 3
    s_and_b32 s{sTMP}, s{sSL}, 7
    s_add_u32 s{sMT32}, s{sMT32}, s{sTMP}
    s_lshl_b32 s{sMT32}, s{sMT32}, 2
    s_add_u32 s{sMT32}, s{sMT32}, s{sWAVE}
    s_lshr_b32 s{sCOL}, s{sXCD}, 1
    s_lshl_b32 s{sCOL}, s{sCOL}, 2
    s_lshr_b32 s{sTMP}, s{sSL}, 3
    s_add_u32 s{sCOL}, s{sCOL}, s{sTMP}
    v_and_b32 v{vPR}, 3, v{vLANE}
    v_lshlrev_b32 v{vPR}, 2, v{vPR}
    v_add_u32 v{vPR}, {CTL}, v{vPR}
    s_lshl_b32 s{sTMP}, s{sWAVE}, 2
    s_add_u32 s{sTMP}, s{sTMP}, {CTL}
    v_min_u32 v{vF0}, 1, v{vLANE}
    v_lshlrev_b32 v{vPW}, 9, v{vF0}
    v_lshl_add_u32 v{vPW}, v{vLANE}, 2, v{vPW}
    v_add_u32 v{vPW}, s{sTMP}, v{vPW}
    v_lshlrev_b32 v{vF0}, 30, v{vF0}
    s_cmp_lt_u32 s{sW8}, 4
    s_cbranch_scc1 k_comp
    """)
    ROLE[0] = "Y"
    gen_loader(a)
    a("s_branch c_passb")
    a.label("k_comp")
    ROLE[0] = "X"
    gen_comp(a)
    gen_gemm2(a)
    a("s_endpgm")
    a.label("x_attn")
    ROLE[0] = "X"
    gen_attn(a)
    a.label("k_end")
    a("s_endpgm")
    if DRY:
        a.label("dry_ret")
        a(f"s_setpc_b64 s[{sRET}:{sRET+1}]")
    return dict(name=KN, grid=256, block=512, lds=LDS_TOTAL, nvgpr=256, accum=256)

def gen_loader(a):
    vXD, vXD2, vWQ, vB1, vT = 7, 8, 3, 13, 14
    vSX, vAX = 20, 22
    vRD = 40
    vXB = 144
    sXOFF, sQOFF, sSLW, sMX, sMQ, sBOFF, sROT, sSLS, sMB, sCK, sBR = [sR + i for i in range(11)]
    a(f"""
    v_lshrrev_b32 v{vT}, 3, v{vLANE}
    v_lshrrev_b32 v{vT+1}, 4, v{vLANE}
    v_and_b32 v{vT+2}, 7, v{vLANE}
    v_xor_b32 v{vT+2}, v{vT+2}, v{vT+1}
    v_lshlrev_b32 v{vT+2}, 4, v{vT+2}
    s_movk_i32 s{sTMP}, 896
    v_mad_u32_u24 v{vXD}, v{vT}, s{sTMP}, v{vT+2}
    v_xor_b32 v{vXD2}, 64, v{vXD}
    s_mul_i32 s{sXOFF}, s{sMT32}, {32*896}
    s_lshl_b32 s{sMX}, s{sWAVE}, 12
    s_mul_i32 s{sMQ}, s{sWAVE}, 3072
    s_add_u32 s{sMQ}, s{sMQ}, 16384
    s_mul_i32 s{sQOFF}, s{sWAVE}, {16*2688}
    s_mul_i32 s{sTMP}, s{sCOL}, 168
    s_and_b32 s{sTMP}, s{sTMP}, -16
    s_add_u32 s{sQOFF}, s{sQOFF}, s{sTMP}
    s_lshr_b32 s{sTMP}, s{sSL}, 3
    s_lshl_b32 s{sTMP}, s{sTMP}, 1
    s_and_b32 s{sROT}, s{sSL}, 7
    s_add_u32 s{sROT}, s{sROT}, s{sTMP}
    s_mul_i32 s{sROT}, s{sROT}, {env("ROT", 0)}
    s_cmp_ge_u32 s{sROT}, 7
    s_cselect_b32 s{sTMP}, 7, 0
    s_sub_u32 s{sROT}, s{sROT}, s{sTMP}
    s_mov_b32 s{sCK}, s{sROT}
    s_lshl_b32 s{sTMP}, s{sROT}, 7
    s_add_u32 s{sXOFF}, s{sXOFF}, s{sTMP}
    s_mul_i32 s{sTMP}, s{sROT}, {64*2688}
    s_add_u32 s{sQOFF}, s{sQOFF}, s{sTMP}
    s_movk_i32 s{sTMP}, 5462
    s_movk_i32 s{sTMP2}, 2688
    """)
    for i in range(3):
        a(f"""
        v_add_u32 v{vT}, {64*i}, v{vLANE}
        v_mul_u32_u24 v{vT+2}, s{sTMP}, v{vT}
        v_lshrrev_b32 v{vT+2}, 16, v{vT+2}
        v_mul_u32_u24 v{vT+3}, 12, v{vT+2}
        v_sub_u32 v{vT}, v{vT}, v{vT+3}
        v_lshlrev_b32 v{vT}, 4, v{vT}
        v_mad_u32_u24 v{vWQ+i}, v{vT+2}, s{sTMP2}, v{vT}
        """)
    a(f"""
    v_mov_b32 v{vB1}, 0
    s_mov_b32 s{sSLW}, {SL0 + 4*SLOT}
    s_mov_b32 s{sSLS}, {SL0 + 4*SLOT}
    s_mov_b32 s{sIT}, 0
    s_waitcnt lgkmcnt(0)
    s_barrier
    """)
    set_srd(a, sA, pX, S*D*2)
    set_srd(a, sB, pWQ, D*3*D*2)
    set_srd(a, sCc, pW1, D*DFF*2)
    stamp(a, 1)
    LDD = env("LDD", 1)
    a.label("ld_loop")
    a(f"""
    s_cmp_lt_u32 s{sIT}, 5
    s_cbranch_scc1 ld_isa
    s_sub_u32 s{sTMP3}, s{sIT}, 4
    """)
    BT = env("BTHROT", 99)
    if BT < 11:
        a(f"s_cmp_eq_u32 s{sIT}, {BT}")
        a(f"s_cselect_b32 s{sTMP3}, 9, s{sTMP3}")
    a(f"""
    s_waitcnt lgkmcnt(5)
    s_cmp_lt_u32 s{sIT}, {8 + LDD}
    s_cbranch_scc1 ld_chk
    s_waitcnt lgkmcnt(1)
    """)
    a.label("ld_chk")
    a(f"""
    v_cmp_gt_u32 vcc, s{sTMP3}, v{vT+4}
    s_cbranch_vccz ld_free
    """)
    prog_wait(a, vT+1, CP, f"s{sTMP3}")
    a.label("ld_free")
    a(f"""
    s_cmp_ge_u32 s{sIT}, 7
    s_cbranch_scc1 ld_isb
    """)
    a.label("ld_isa")
    a(f"s_add_u32 m0, s{sSLW}, s{sMX}")
    for i in range(4):
        a(f"s_add_u32 s{sTMP}, s{sXOFF}, {8*896*i}")
        a(f"buffer_load_dwordx4 v{vXD if i % 2 == 0 else vXD2}, {sr(sA,4)}, s{sTMP} offen lds")
        if i < 3: a("s_add_u32 m0, m0, 1024")
    a(f"s_add_u32 m0, s{sSLW}, s{sMQ}")
    a(f"s_add_u32 s{sXOFF}, s{sXOFF}, 128")
    for i in range(3):
        a(f"buffer_load_dwordx4 v{vWQ+i}, {sr(sB,4)}, s{sQOFF} offen lds")
        if i < 2:
            a("s_add_u32 m0, m0, 1024")
            a("s_nop 0")
    a(f"""
    s_add_u32 s{sQOFF}, s{sQOFF}, {64*2688}
    s_add_u32 s{sCK}, s{sCK}, 1
    s_cmp_eq_u32 s{sCK}, 7
    s_cselect_b32 s{sTMP}, 896, 0
    s_cselect_b32 s{sTMP2}, {448*2688}, 0
    s_sub_u32 s{sXOFF}, s{sXOFF}, s{sTMP}
    s_sub_u32 s{sQOFF}, s{sQOFF}, s{sTMP2}
    s_cmp_lg_u32 s{sIT}, 1
    s_cbranch_scc1 ld_post
    """)
    a(f"""
    v_lshrrev_b32 v{vT+1}, 4, v{vLANE}
    v_lshlrev_b32 v{vT+3}, 2, v{vT+1}
    v_and_b32 v{vT+2}, 15, v{vLANE}
    v_xor_b32 v{vT+2}, v{vT+2}, v{vT+3}
    v_lshlrev_b32 v{vT+3}, 4, v{vT+2}
    s_movk_i32 s{sTMP}, 3584
    v_mad_u32_u24 v{vB1}, v{vT+1}, s{sTMP}, v{vT+3}
    s_lshr_b32 s{sTMP}, s{sCOL}, 1
    s_mul_i32 s{sBOFF}, s{sTMP}, 448
    s_and_b32 s{sTMP}, s{sCOL}, 1
    s_mul_i32 s{sTMP}, s{sTMP}, 192
    s_add_u32 s{sBOFF}, s{sBOFF}, s{sTMP}
    s_mul_i32 s{sBR}, s{sWAVE}, 28
    s_lshl_b32 s{sTMP}, s{sROT}, 6
    s_add_u32 s{sBR}, s{sBR}, s{sTMP}
    s_mul_i32 s{sMB}, s{sWAVE}, 7168
    v_and_b32 v{vT}, 31, v{vLANE}
    v_lshrrev_b32 v{vT+1}, 5, v{vLANE}
    v_bfe_u32 v{vT+2}, v{vLANE}, 1, 3
    v_xor_b32 v{vT+1}, v{vT+1}, v{vT+2}
    v_lshlrev_b32 v{vT+1}, 4, v{vT+1}
    v_lshl_add_u32 v{vSX}, v{vT}, 7, v{vT+1}
    v_add_u32 v{vSX}, s{sMX}, v{vSX}
    v_mov_b32 v{vT}, 0
    """)
    a("s_branch ld_post")
    a.label("ld_isb")
    a(f"s_add_u32 m0, s{sSLW}, s{sMB}")
    for i in range(7):
        a(f"""
        s_cmp_ge_u32 s{sBR}, 448
        s_cselect_b32 s{sTMP}, 448, 0
        s_sub_u32 s{sBR}, s{sBR}, s{sTMP}
        s_mul_i32 s{sTMP}, s{sBR}, 3584
        s_add_u32 s{sTMP}, s{sTMP}, s{sBOFF}
        buffer_load_dwordx4 v{vB1}, {sr(sCc,4)}, s{sTMP} offen lds
        s_add_u32 s{sBR}, s{sBR}, {4 if i < 6 else 88}
        """)
        if i < 6: a("s_add_u32 m0, m0, 1024")
    a.label("ld_post")
    a(f"""
    s_add_u32 s{sSLW}, s{sSLW}, {SLOT}
    s_cmp_ge_u32 s{sSLW}, {CTL}
    s_cselect_b32 s{sSLW}, {SL0}, s{sSLW}
    s_cmp_lt_u32 s{sIT}, {LDD}
    s_cbranch_scc1 ld_next
    ds_read_b32 v{vT+4}, v{vPR} offset:{CP - CTL}
    s_sub_u32 s{sTMP}, s{sIT}, {LDD}
    s_add_u32 s{sTMP2}, s{sTMP}, 1
    v_mov_b32 v{vT}, s{sTMP2}
    v_add_u32 v{vAX}, s{sSLS}, v{vSX}
    v_xor_b32 v{vAX+1}, 32, v{vAX}
    v_xor_b32 v{vAX+2}, 64, v{vAX}
    v_xor_b32 v{vAX+3}, 96, v{vAX}
    s_add_u32 s{sSLS}, s{sSLS}, {SLOT}
    s_cmp_ge_u32 s{sSLS}, {CTL}
    s_cselect_b32 s{sSLS}, {SL0}, s{sSLS}
    """)
    for c in range(7):
        a(f"s_cmp_lg_u32 s{sTMP}, {c}")
        a(f"s_cbranch_scc1 ld_sv{c+1}")
        a(f"s_waitcnt vmcnt({7*LDD})")
        for i in range(4):
            a(f"ds_read_b128 {vr(vXB+16*c+4*i,4)}, v{vAX+i}")
        a("s_branch ld_sig")
        a.label(f"ld_sv{c+1}")
    a(f"s_waitcnt vmcnt({7*LDD})")
    a.label("ld_sig")
    a(f"ds_write_b32 v{vPW}, v{vT} offset:{LP - CTL}")
    a.label("ld_next")
    if env("STL", 0) & 1: stamp_dyn(a, 20, sIT)
    a(f"""
    s_add_u32 s{sIT}, s{sIT}, 1
    s_cmp_lt_u32 s{sIT}, 11
    s_cbranch_scc1 ld_loop
    """)
    stamp(a, 4)
    for k in range(LDD - 1, 0, -1):
        a(f"s_waitcnt vmcnt({7*k})")
        prog_set(a, vT, LP, 11 - k)

def gen_comp(a):
    vHH, vHHI, vMASK, vCONST, vXR, vXRC = 3, 4, 5, 6, 7, 8
    vNM, vRSTD, vA = 12, 13, 14
    vPG = 15
    vTB = 17
    vTG = 18
    vTN = 20
    vCP = 33
    vTC = 21
    vS0 = 25
    vCSR, vT1, vSEL = 35, 16, 28
    vZ = 36
    vFR = [40, 60]
    vACC = 80
    vXB = 144
    sDST, sSCL, sCSO = sR, sR+4, sR+8
    sRELU, sPASS, sSLOT, sONE, sIDX = sR+12, sR+13, sR+14, sR+15, sR+16
    if env("CPF", 0):
        a(f"""
        s_cmp_ge_u32 s{sSL}, {env("CPF", 0)}
        s_cbranch_scc1 cpf_skip
        s_getpc_b64 s[72:73]
        """)
        a.label("cpf_base")
        a(f"""
        s_sub_u32 s72, s72, cpf_base-{NAME}_kernel
        s_subb_u32 s73, s73, 0
        v_lshlrev_b32 v3, 7, v{vLANE}
        s_lshl_b32 s{sTMP}, s{sWAVE}, 13
        v_add_u32 v3, s{sTMP}, v3
        v_min_u32 v3, k_end-{NAME}_kernel, v3
        global_load_dword v79, v3, s[72:73]
        """)
        a.label("cpf_skip")
    a("""
    s_waitcnt lgkmcnt(0)
    s_barrier
    """)
    set_srd(a, sCc, pDBG, 256)
    set_srd(a, sA, pX, S*D*2)
    set_srd(a, sB, pW2, DFF*D*2)
    stamp(a, 1)
    a(f"""
    s_or_b32 s{sTMP}, s2, s{sWAVE}
    s_cmp_lg_u32 s{sTMP}, 0
    s_cbranch_scc1 c_notag
    s_memrealtime s[{sTAG}:{sTAG+1}]
    s_waitcnt lgkmcnt(0)
    s_or_b32 s{sTAG}, s{sTAG}, 1
    s_or_b32 s{sTAG+1}, s{sTAG+1}, 0x40000000
    v_mov_b32 v{vTG}, s{sTAG}
    v_mov_b32 v{vTG+1}, s{sTAG+1}
    buffer_store_dwordx2 {vr(vTG,2)}, v{vF0}, {sr(sCc,4)}, 0 offen sc1
    """)
    a.label("c_notag")
    a(f"v_mov_b32 v{vTB}, {OOB:#x}")
    dry_by_wave(a, [["c_epi"], ["c_epi2"], ["c_posta", "c_epi_end"], ["c_passb"]], "dw1")
    stamp(a, 2)
    a(f"""
    v_lshrrev_b32 v{vHH}, 5, v{vLANE}
    v_bfe_u32 v{vS0+1}, v{vLANE}, 2, 2
    v_bfe_u32 v{vS0+2}, v{vLANE}, 4, 1
    v_and_b32 v{vS0+3}, 3, v{vLANE}
    v_lshlrev_b32 v{vS0+2}, 5, v{vS0+2}
    v_lshl_add_u32 v{vS0+2}, v{vS0+3}, 3, v{vS0+2}
    v_lshl_add_u32 v{vS0+4}, v{vHH}, 3, v{vS0+1}
    s_movk_i32 s{sTMP}, 192
    v_mad_u32_u24 v{vTB}, v{vS0+4}, s{sTMP}, v{vS0+2}
    s_and_b32 s{sTMP}, s{sCOL}, 1
    s_lshl_b32 s{sTMP}, s{sTMP}, 3
    s_add_u32 s{sTMP}, s{sTMP}, 16384
    v_add_u32 v{vTB}, s{sTMP}, v{vTB}
    v_mov_b32 v{vZ}, 0
    v_mov_b32 v{vZ+1}, 0
    v_mov_b32 v{vZ+2}, 0
    v_mov_b32 v{vZ+3}, 0
    v_and_b32 v{vS0+5}, 31, v{vLANE}
    v_bfe_u32 v{vS0+6}, v{vLANE}, 1, 3
    v_xor_b32 v{vS0+6}, v{vS0+6}, v{vHH}
    v_lshlrev_b32 v{vS0+6}, 4, v{vS0+6}
    v_mfma_f32_32x32x16_bf16 {vr(vACC,16)}, {vr(vZ,4)}, {vr(vZ,4)}, 0
    v_lshl_add_u32 v{vXR}, v{vS0+5}, 7, v{vS0+6}
    s_lshl_b32 s{sTMP}, s{sWAVE}, 12
    v_add_u32 v{vXR}, s{sTMP}, v{vXR}
    v_lshlrev_b32 v{vCSR}, 4, v{vHH}
    v_add_u32 v{vCSR}, {CSA}, v{vCSR}
    v_lshlrev_b32 v{vT1}, 8, v{vS0+4}
    v_mfma_f32_32x32x16_bf16 {vr(vACC+16,16)}, {vr(vZ,4)}, {vr(vZ,4)}, 0
    v_add_u32 v{vT1}, v{vT1}, v{vS0+2}
    v_lshlrev_b32 v{vS0+7}, 6, v{vS0+1}
    v_or_b32 v{vT1}, v{vT1}, v{vS0+7}
    v_mfma_f32_32x32x16_bf16 {vr(vACC+32,16)}, {vr(vZ,4)}, {vr(vZ,4)}, 0
    v_sub_u32 v{vHHI}, v{vHH}, 1
    v_sub_u32 v{vHH}, 0, v{vHH}
    v_mov_b32 v{vMASK}, v{vHHI}
    v_and_b32 v{vCONST}, 0x3f80, v{vHH}
    s_mov_b32 s{sRELU}, 0x80008000
    s_mov_b32 s{sONE}, 0x3f803f80
    s_mov_b32 s{sIT}, 1
    s_mov_b32 s{sSLOT}, {SL0 + 4*SLOT}
    s_mov_b32 s{sIDX}, 0
    s_mul_i32 s{sTMP2}, s{sCOL}, 3
    s_cmp_eq_u32 s{sWAVE}, 3
    s_cselect_b32 s{sTMP3}, 0, s{sWAVE}
    v_mov_b32 v{vS0}, v{vTB}
    """)
    for j in range(3):
        a(f"""
        s_add_u32 s{sTMP}, s{sTMP2}, s{sTMP3}
        s_cmp_lt_u32 s{sTMP}, 16
        s_cselect_b32 s{sSCL+j}, {f32bits(QSCALE):#x}, 1.0
        s_cselect_b32 s{sIDX}, 11, 12
        s_cselect_b32 s{sSPIN}, 0, {KF_OFF}
        s_cmp_ge_u32 s{sTMP}, 32
        s_cselect_b32 s{sSPIN}, {KF_OFF + 2048}, s{sSPIN}
        s_and_b32 s{sTMP}, s{sTMP}, 15
        s_lshl_b32 s{sTMP}, s{sTMP}, 6
        s_add_u32 s{sTMP}, s{sTMP}, s{sMT32}
        s_lshl_b32 s{sTMP}, s{sTMP}, s{sIDX}
        s_add_u32 s{sDST+j}, s{sTMP}, s{sSPIN}
        s_lshl_b32 s{sCSO+j}, s{sTMP3}, 7
        s_mul_i32 s{sTMP}, s{sTMP3}, 56
        v_add_u32 v{vTB+j}, s{sTMP}, v{vS0}
        s_add_u32 s{sTMP3}, s{sTMP3}, 1
        s_cmp_eq_u32 s{sTMP3}, 3
        s_cselect_b32 s{sTMP3}, 0, s{sTMP3}
        v_add_u32 v{vTC+j}, s{sSLOT}, v{vTB+j}
        """)
    a(f"""
    s_mov_b32 s{sCSO+3}, 0
    s_mov_b32 s{sPASS}, 1
    v_add_u32 v{vXRC}, s{sSLOT}, v{vXR}
    v_mov_b32 v{vCP}, 0
    v_mov_b32 v{vCP+1}, 0
    v_and_b32 v{vS0}, 0x13, v{vLANE}
    v_cmp_ne_u32 vcc, 0x13, v{vS0}
    v_and_b32 v{vS0+1}, 7, v{vLANE}
    v_mul_u32_u24 v{vS0+1}, {4*192}, v{vS0+1}
    v_cndmask_b32 v{vSEL}, 0, 1, vcc
    v_lshrrev_b32 v{vS0+2}, 1, v{vLANE}
    v_and_b32 v{vS0+2}, 3, v{vS0+2}
    v_mul_u32_u24 v{vS0+2}, {8*192}, v{vS0+2}
    v_add_u32 v{vS0+1}, v{vS0+1}, v{vS0+2}
    v_mov_b32 v{vS0+5}, s{sONE}
    v_mov_b32 v{vS0+6}, s{sONE}
    ds_write_b64 v{vS0+1}, {vr(vS0+5,2)}
    v_mul_u32_u24 v{vTB+1}, v{vSEL}, v{vTB+1}
    v_mad_u32_u24 v{vTC+1}, v{vSEL}, s{sSLOT}, v{vTB+1}
    """)
    for i in range(4, 8):
        a(f"v_mov_b32 v{vS0+i}, 0")
    prog_wait(a, vPG, LP, env("AWAIT", 1))
    a(f"s_setprio {env('XPRIO', 3)}")
    stamp(a, 3)
    vCB = [128, 192]
    def reads(st):
        ops = []
        for q in range(4):
            f = vCB[st] + 16*q
            if q == 0:
                ops.append(f"ds_read_b128 {vr(f+12,4)}, v{vXRC}")
            else:
                ops.append(f"v_xor_b32 v{vTN}, {32*q}, v{vXRC}\nds_read_b128 {vr(f+12,4)}, v{vTN}")
            for j in range(3):
                for p in range(2):
                    ops.append(f"ds_read_b64_tr_b16 {vr(f+4*j+2*p,2)}, v{vTC+j} offset:{(16*q+4*p)*192}")
        return ops
    r0 = reads(0)
    for i, op in enumerate(r0):
        a(op)
        if i == 13: a("s_waitcnt lgkmcnt(0)")
    a.raw(".p2align 6")
    a.label("c_loopa")
    def half(st):
        a("s_waitcnt lgkmcnt(0)")
        if env("STL", 0) & 2: stamp_dyn(a, 22, sIT)
        a(f"""
        v_mov_b32 v{vTC+3}, s{sIT}
        s_add_u32 s{sSLOT}, s{sSLOT}, {SLOT}
        ds_write_b32 v{vPW}, v{vTC+3} offset:{CP - CTL}
        s_cmp_ge_u32 s{sSLOT}, {CTL}
        s_cselect_b32 s{sSLOT}, {SL0}, s{sSLOT}
        v_add_u32 v{vXRC}, s{sSLOT}, v{vXR}
        v_add_u32 v{vTC}, s{sSLOT}, v{vTB}
        v_mad_u32_u24 v{vTC+1}, v{vSEL}, s{sSLOT}, v{vTB+1}
        v_add_u32 v{vTC+2}, s{sSLOT}, v{vTB+2}
        ds_read_b32 v{vPG}, v{vPR} offset:{LP - CTL}
        """)
        for q in range(4):
            f = vCB[st] + 16*q
            for i in range(4):
                a(f"v_dot2c_f32_bf16 v{vCP+(i&1)}, s{sONE}, v{f+i}")
                a(f"v_dot2c_f32_bf16 v{vS0+4+i}, v{f+12+i}, v{f+12+i}")
        f0 = vCB[st]
        a(f"v_mfma_f32_32x32x16_bf16 {vr(vACC,16)}, {vr(f0,4)}, {vr(f0+12,4)}, {vr(vACC,16)}")
        a(f"""
        s_waitcnt lgkmcnt(0)
        v_cmp_ge_u32 vcc, s{sIT}, v{vPG}
        s_cbranch_vccnz c_la_slow{st}
        """)
        a.label(f"c_la_back{st}")
        nx = reads(1 - st)
        for _ in range(2): a(nx.pop(0))
        k = 0
        for q in range(4):
            f = vCB[st] + 16*q
            for j in range(3):
                if q == 0 and j == 0: continue
                a(f"v_mfma_f32_32x32x16_bf16 {vr(vACC+16*j,16)}, {vr(f+4*j,4)}, {vr(f+12,4)}, {vr(vACC+16*j,16)}")
                if k == 4 or k == 7: a("s_waitcnt lgkmcnt(5)")
                for _ in range(3):
                    if nx: a(nx.pop(0))
                k += 1
        assert not nx
        a(f"s_add_u32 s{sIT}, s{sIT}, 1")
    half(0)
    if DRY: a("s_cbranch_execz c_loopa2")
    a(f"""
    s_cmp_eq_u32 s{sIT}, 8
    s_cbranch_scc1 c_posta
    """)
    a.label("c_loopa2")
    half(1)
    dry_end(a)
    a("s_branch c_loopa")
    a.label("c_posta")
    stamp(a, 4)
    a(f"buffer_load_dwordx2 {vr(vTG,2)}, v{vF0}, {sr(sCc,4)}, 0 offen sc1")
    a(f"""
    v_add_f32 v{vCP}, v{vCP}, v{vCP+1}
    v_add_f32 v{vS0+4}, v{vS0+4}, v{vS0+5}
    v_add_f32 v{vS0+6}, v{vS0+6}, v{vS0+7}
    v_mov_b32 v{vCP+1}, v{vCP}
    v_and_b32 v{vS0+2}, 31, v{vLANE}
    v_lshlrev_b32 v{vS0+2}, 2, v{vS0+2}
    v_permlane32_swap_b32 v{vCP}, v{vCP+1}
    v_add_f32 v{vS0+4}, v{vS0+4}, v{vS0+6}
    v_add_u32 v{vS0+2}, s{sCSO}, v{vS0+2}
    v_add_f32 v{vCP}, v{vCP}, v{vCP+1}
    v_add_u32 v{vS0+2}, {CSA}, v{vS0+2}
    v_mov_b32 v{vS0+5}, v{vS0+4}
    ds_write_b32 v{vS0+2}, v{vCP}
    v_mov_b32 v{vS0+6}, 8
    ds_write_b32 v{vPW}, v{vS0+6} offset:{CP - CTL}
    v_mov_b32 v{vS0}, v{vACC+16+12}
    v_mov_b32 v{vS0+1}, v{vACC+16+12}
    v_permlane32_swap_b32 v{vS0+4}, v{vS0+5}
    s_nop 0
    v_permlane32_swap_b32 v{vS0}, v{vS0+1}
    v_add_f32 v{vS0+4}, v{vS0+4}, v{vS0+5}
    v_mul_f32 v{vS0+4}, {f32bits(1.0/D):#x}, v{vS0+4}
    v_mul_f32 v{vNM}, {f32bits(-1.0/D):#x}, v{vS0+1}
    v_fma_f32 v{vS0+4}, -v{vNM}, v{vNM}, v{vS0+4}
    v_max_f32 v{vS0+4}, 0, v{vS0+4}
    v_add_f32 v{vS0+4}, {f32bits(1e-5):#x}, v{vS0+4}
    v_rsq_f32 v{vRSTD}, v{vS0+4}
    s_lshl_b32 s{sTMP}, s{sWAVE}, 8
    s_add_u32 s{sTMP}, s{sTMP}, {STA}
    v_and_b32 v{vS0+2}, 31, v{vLANE}
    v_lshlrev_b32 v{vS0+2}, 3, v{vS0+2}
    v_add_u32 v{vS0+2}, s{sTMP}, v{vS0+2}
    ds_write_b64 v{vS0+2}, {vr(vNM,2)}
    """)
    prog_wait(a, vPG, CP, 8, sleep=0)
    dry_end(a)
    a.label("c_epi")
    vCS2 = [vFR[0], vFR[0] + 16]
    def cs_read(j):
        a(f"v_add_u32 v{vXRC}, s{sCSO+j}, v{vCSR}")
        for g in range(4):
            a(f"ds_read_b128 {vr(vCS2[j%2]+4*g,4)}, v{vXRC} offset:{32*g}")
    cs_read(0)
    for j in range(4):
        acc = vACC + 16*j
        cs = vCS2[j % 2]
        if j == 2:
            dry_end(a)
            a.label("c_epi2")
        if j < 3:
            cs_read(j + 1)
            a("s_waitcnt lgkmcnt(4)")
        else:
            a("s_waitcnt lgkmcnt(0)")
        if env("STL", 0) & 4 and j < 3: stamp(a, 10 + j)
        a(f"v_mul_f32 v{vA}, s{sSCL+j}, v{vRSTD}")
        for i in range(16):
            a(f"v_fmac_f32 v{acc+i}, v{cs+i}, v{vNM}")
        for i in range(16):
            a(f"v_mul_f32 v{acc+i}, v{vA}, v{acc+i}")
        for i in range(8):
            a(f"v_cvt_pk_bf16_f32 v{acc+i}, v{acc+2*i}, v{acc+2*i+1}")
        for i in range(8):
            a(f"v_pk_max_i16 v{acc+i}, v{acc+i}, s{sRELU}")
            if i == 5:
                a(f"buffer_store_dwordx4 {vr(acc,4)}, v{vL16}, {sr(sWS,4)}, s{sDST+j} offen sc1")
        a(f"v_and_or_b32 v{acc+6}, v{acc+6}, v{vMASK}, v{vCONST}")
        a(f"v_and_b32 v{acc+7}, v{acc+7}, v{vMASK}")
        a(f"buffer_store_dwordx4 {vr(acc+4,4)}, v{vL16}, {sr(sWS,4)}, s{sDST+j} offen offset:1024 sc1")
        if j == 2:
            if DRY: a("s_cbranch_execz c_epi3")
            a(f"s_cmp_eq_u32 s{sPASS}, 1")
            a("s_cbranch_scc1 c_epi_end")
            a.label("c_epi3")
    a("s_nop 1")
    for j in range(4):
        a(f"v_mfma_f32_32x32x16_bf16 {vr(vACC+16*j,16)}, {vr(vZ,4)}, {vr(vZ,4)}, 0")
    dry_end(a)
    a("s_branch c_done")
    a.label("c_epi_end")
    prog_set(a, vS0, CP, 9)
    stamp(a, 5)
    a(f"""
    s_mul_i32 s{sTMP}, s{sCOL}, 3
    s_lshr_b32 s{sTMP2}, s{sMT32}, 2
    v_lshrrev_b32 v{vS0+1}, 4, v{vLANE}
    v_add_u32 v{vS0+1}, s{sTMP}, v{vS0+1}
    v_and_b32 v{vS0+2}, 15, v{vS0+1}
    v_lshrrev_b32 v{vS0+1}, 4, v{vS0+1}
    v_and_b32 v{vS0+3}, 15, v{vLANE}
    v_lshl_add_u32 v{vS0+2}, v{vS0+2}, 4, v{vS0+3}
    v_lshlrev_b32 v{vS0+2}, 9, v{vS0+2}
    v_lshlrev_b32 v{vTB}, 4, v{vS0+1}
    v_add_u32 v{vTB}, s{sTMP2}, v{vTB}
    v_lshl_add_u32 v{vTB}, v{vTB}, 3, v{vS0+2}
    v_add_u32 v{vTB}, {F1_OFF}, v{vTB}
    v_cmp_eq_u32 vcc, 0, v{vS0+1}
    v_cmp_ne_u32 s[72:73], s{sTMP2}, v{vS0+3}
    s_and_b64 vcc, vcc, s[72:73]
    v_cmp_lt_u32 s[72:73], 47, v{vLANE}
    s_or_b64 vcc, vcc, s[72:73]
    v_mov_b32 v{vS0+1}, {OOB:#x}
    s_nop 0
    v_cndmask_b32 v{vTB}, v{vTB}, v{vS0+1}, vcc
    """)
    dry_end(a)
    a("s_branch x_attn")
    ROLE[0] = "Y"
    a.label("c_passb")
    a(f"s_setprio {env('CPRIO', 2)}")
    set_srd(a, sCc, pDBG, 256)
    a(f"""
    s_waitcnt lgkmcnt(0)
    buffer_load_dwordx2 {vr(vTG,2)}, v{vF0}, {sr(sCc,4)}, 0 offen sc1
    v_lshrrev_b32 v{vHH}, 5, v{vLANE}
    v_bfe_u32 v{vS0+1}, v{vLANE}, 2, 2
    v_bfe_u32 v{vS0+2}, v{vLANE}, 4, 1
    v_and_b32 v{vS0+3}, 3, v{vLANE}
    v_lshlrev_b32 v{vS0+2}, 5, v{vS0+2}
    v_lshl_add_u32 v{vS0+2}, v{vS0+3}, 3, v{vS0+2}
    v_lshl_add_u32 v{vS0+4}, v{vHH}, 3, v{vS0+1}
    v_mov_b32 v{vZ}, 0
    v_mov_b32 v{vZ+1}, 0
    v_mov_b32 v{vZ+2}, 0
    v_mov_b32 v{vZ+3}, 0
    v_lshlrev_b32 v{vCSR}, 4, v{vHH}
    v_add_u32 v{vCSR}, {CSA}, v{vCSR}
    v_lshlrev_b32 v{vT1}, 8, v{vS0+4}
    v_add_u32 v{vT1}, v{vT1}, v{vS0+2}
    v_lshlrev_b32 v{vS0+7}, 6, v{vS0+1}
    v_or_b32 v{vT1}, v{vT1}, v{vS0+7}
    s_lshl_b32 s{sTMP}, s{sWAVE}, 6
    v_xor_b32 v{vT1}, s{sTMP}, v{vT1}
    s_mov_b32 s{sONE}, 0x3f803f80
    """)
    for b in range(4):
        a(f"v_mfma_f32_32x32x16_bf16 {vr(vACC+16*b,16)}, {vr(vZ,4)}, {vr(vZ,4)}, 0")
        a(f"v_mov_b32 v{vS0+4+b}, 0")
        a(f"v_xor_b32 v{vTC+b}, {b << 6}, v{vT1}")
        a(f"v_add_u32 v{vTC+b}, {WB}, v{vTC+b}")
    prog_wait(a, vPG, LP, 10)
    stamp(a, 7)
    def rdB(step, b):
        f = vFR[step % 2]
        for p in range(2):
            a(f"ds_read_b64_tr_b16 {vr(f+4*b+2*p,2)}, v{vTC+b} offset:{4096*step + 1024*p}")
    def fetchx(step, i0):
        f = vFR[step % 2]
        a(f"s_set_gpr_idx_on s{sIDX}, gpr_idx(SRC0)")
        for i in range(i0, i0 + 2):
            a(f"v_mov_b32 v{f+16+i}, v{vXB+4*(step%4)+i}")
        a("s_set_gpr_idx_off")
    a(f"""
    s_mov_b32 s{sIT}, 0
    s_mov_b32 s{sIDX}, 0
    """)
    for b in range(4): rdB(0, b)
    a("s_waitcnt lgkmcnt(4)")
    for b in range(4): rdB(1, b)
    fetchx(0, 0); fetchx(0, 2)
    a.raw(".p2align 6")
    a.label("c_loopb")
    a(f"""
    s_bitcmp1_b32 {(1<<2)|(1<<4):#x}, s{sIT}
    s_cbranch_scc1 c_lb_rare
    """)
    a.label("c_lb_go")
    for k in range(4):
        f = vFR[k % 2]
        for b in range(4):
            if b % 2 == 0:
                a("s_waitcnt lgkmcnt(11)")
            if b == 0:
                for i in range(4):
                    a(f"v_dot2c_f32_bf16 v{vS0+4+i}, s{sONE}, v{f+i}")
            a(f"v_mfma_f32_32x32x16_bf16 {vr(vACC+16*b,16)}, {vr(f+4*b,4)}, {vr(f+16,4)}, {vr(vACC+16*b,16)}")
            rdB(k + 2, b)
            if k == 2 and b == 3:
                a(f"s_add_u32 s{sIDX}, s{sIDX}, 16")
                a(f"s_min_u32 s{sIDX}, s{sIDX}, 96")
            if b == 0: fetchx(k + 1, 0)
            if b == 2: fetchx(k + 1, 2)
            if k == 3:
                a(f"v_add_u32 v{vTC+b}, 16384, v{vTC+b}")
    dry_end(a)
    a(f"""
    s_add_u32 s{sIT}, s{sIT}, 1
    s_cmp_lt_u32 s{sIT}, 7
    s_cbranch_scc1 c_loopb
    s_waitcnt lgkmcnt(0)
    """)
    stamp(a, 6)
    a(f"""
    v_add_f32 v{vS0+4}, v{vS0+4}, v{vS0+5}
    v_add_f32 v{vS0+6}, v{vS0+6}, v{vS0+7}
    v_and_b32 v{vS0+2}, 31, v{vLANE}
    v_add_f32 v{vS0+4}, v{vS0+4}, v{vS0+6}
    v_lshlrev_b32 v{vS0+2}, 2, v{vS0+2}
    v_mov_b32 v{vS0+5}, v{vS0+4}
    s_lshl_b32 s{sTMP}, s{sWAVE}, 7
    s_add_u32 s{sTMP}, s{sTMP}, {CSB_}
    v_permlane32_swap_b32 v{vS0+4}, v{vS0+5}
    v_add_u32 v{vS0+2}, s{sTMP}, v{vS0+2}
    s_nop 0
    v_add_f32 v{vS0+4}, v{vS0+4}, v{vS0+5}
    ds_write_b32 v{vS0+2}, v{vS0+4}
    """)
    prog_set(a, vS0, SP, 2)
    a(f"""
    s_lshr_b32 s{sTMP}, s{sCOL}, 1
    s_mul_i32 s{sTMP}, s{sTMP}, 7
    s_and_b32 s{sTMP2}, s{sCOL}, 1
    s_mul_i32 s{sTMP2}, s{sTMP2}, 3
    s_add_u32 s{sTMP}, s{sTMP}, s{sTMP2}
    s_mul_i32 s{sTMP2}, s{sMT32}, 72
    s_add_u32 s{sTMP}, s{sTMP}, s{sTMP2}
    s_lshl_b32 s{sTMP}, s{sTMP}, 11
    s_add_u32 s{sTMP}, s{sTMP}, {HF_OFF}
    s_and_b32 s{sIDX}, s{sCOL}, 1
    s_sub_u32 s{sIDX}, s{sIDX}, 1
    s_mov_b32 s{sRELU}, 0
    v_mov_b32 v{vMASK}, -1
    v_mov_b32 v{vCONST}, 0
    s_mov_b32 s{sPASS}, 2
    """)
    for j in range(4):
        a(f"""
        s_mov_b32 s{sSCL+j}, 1.0
        s_xor_b32 s{sTMP2}, s{sWAVE}, {j}
        s_lshl_b32 s{sTMP3}, s{sTMP2}, 7
        s_add_u32 s{sCSO+j}, s{sTMP3}, 512
        s_lshl_b32 s{sTMP2}, s{sTMP2}, 11
        s_add_u32 s{sDST+j}, s{sTMP}, s{sTMP2}
        s_cmp_eq_u32 s{sTMP2}, s{sIDX}
        s_cselect_b32 s{sDST+j}, {OOB:#x}, s{sDST+j}
        """)
    a(f"""
    v_readfirstlane_b32 s{sTAG}, v{vTG}
    v_readfirstlane_b32 s{sTAG+1}, v{vTG+1}
    s_min_u32 s{sTMP}, s{sTAG}, s{sTAG+1}
    s_cmp_lg_u32 s{sTMP}, 0
    s_cbranch_scc1 c_lb_tag2
    """)
    get_tag(a, vS0+1)
    a.label("c_lb_tag2")
    prog_wait(a, vPG, CP, 9)
    a(f"""
    s_lshl_b32 s{sTMP}, s{sWAVE}, 8
    s_add_u32 s{sTMP}, s{sTMP}, {STA}
    v_and_b32 v{vS0+2}, 31, v{vLANE}
    v_lshlrev_b32 v{vS0+2}, 3, v{vS0+2}
    v_add_u32 v{vS0+2}, s{sTMP}, v{vS0+2}
    ds_read_b64 {vr(vNM,2)}, v{vS0+2}
    """)
    prog_wait(a, vPG, SP, 2, sleep=0)
    stamp(a, 11)
    a("s_branch c_epi")
    for st in range(2):
        a.label(f"c_la_slow{st}")
        a(f"""
        s_cmp_eq_u32 s{sIT}, 7
        s_cbranch_scc1 c_la_back{st}
        s_add_u32 s{sTMP3}, s{sIT}, 1
        """)
        prog_wait(a, vPG, LP, f"s{sTMP3}", sleep=env("ASLEEP", 1))
        a(f"s_branch c_la_back{st}")
    a.label("c_lb_rare")
    a(f"""
    s_cmp_lg_u32 s{sIT}, 2
    s_cbranch_scc1 c_lb_r1
    """)
    prog_set(a, vS0, SP, 1)
    a("s_waitcnt vmcnt(0)")
    prog_set(a, vS0+1, LP, 11)
    a("s_waitcnt lgkmcnt(0)")
    a("s_branch c_lb_go")
    a.label("c_lb_r1")
    prog_wait(a, vPG, LP, 11)
    stamp(a, 10)
    a("s_branch c_lb_go")
    a.label("c_done")
    stamp(a, 12)

from mk2 import gen_attn, gen_gemm2

def build():
    hdr = open("cdna_kernels/" + NAME + ".s.ref").read().split("\n")
    out = [l for l in hdr if l.startswith(";") and "@launch" not in l]
    body = Asm()
    body.raw(".p2align 8")
    d = gen(body)
    out.append(f"; @launch grid=({d['grid']},1,1) block=({d['block']},1,1) lds={d['lds']}")
    out.append('.amdgcn_target "amdgcn-amd-amdhsa--gfx950"')
    out.append("""; One persistent kernel, 256 workgroups x 8 waves (generated by a python script, hand-scheduled).
;  per-consumer mailboxes in d_ws; consumers poll and read the data with sc1 loads.""")
    out.append(".text")
    out.append(f".globl {d['name']}")
    out.append(f".type {d['name']},@function")
    txt = "\n".join(out) + "\n" + body.text()
    txt += '.section .rodata,"a"\n.p2align 6\n' + kernel_desc(d['name'], d['nvgpr'], d['accum'])
    return txt
```

```python
import os
from asmlib import *
from mk import *

def reduce_write(a, vACC, vWA, sBASE, js=4096):
    a(f"v_add_u32 v{vWA}, s{sBASE}, v{vL16}")
    for j in range(1, 4):
        for g in range(4):
            a(f"ds_write_b128 v{vWA}, {vr(vACC+16*j+4*g,4)} offset:{(j-1)*js+g*1024}")
def reduce_read(a, vACC, vT, vRA, region0, js=4096, wsh=14):
    for j in range(1, 4):
        a(f"""
        s_xor_b32 s{sTMP}, s{sWAVE}, {j}
        s_lshl_b32 s{sTMP}, s{sTMP}, {wsh}
        s_add_u32 s{sTMP}, s{sTMP}, {region0 + (j-1)*js}
        v_add_u32 v{vRA}, s{sTMP}, v{vL16}
        """)
        for g in range(4):
            a(f"ds_read_b128 {vr(vT+16*(j-1)+4*g,4)}, v{vRA} offset:{g*1024}")
    for j in range(3):
        for g in range(4):
            a(f"s_waitcnt lgkmcnt({11 - (4*j+g)})")
            for r in range(4):
                i = 4*g + r
                a(f"v_add_f32 v{vACC+i}, v{vACC+i}, v{vT+16*j+i}")

PFCODE = 'PFW = env("PFW", 0)\nif PFW:\n    # L2 prefetch of w2 / wo (one line per lane; each XCD covers the whole matrices when ids map round-robin)\n    set_srd(a, sA, pW2, DFF*D*2)\n    set_srd(a, sB, pWO, D*D*2)\n    a(f"""\n    s_lshl_b32 s{sTMP}, s{sSL}, 2\n    s_add_u32 s{sTMP}, s{sTMP}, s{sWAVE}\n    v_lshlrev_b32 v{vT0}, 7, v{vLANE}\n    s_lshl_b32 s{sTMP2}, s{sTMP}, 14\n    buffer_load_dword v{vNM}, v{vT0}, {sr(sA,4)}, s{sTMP2} offen\n    s_add_u32 s{sTMP2}, s{sTMP2}, 8192\n    buffer_load_dword v{vNM+1}, v{vT0}, {sr(sA,4)}, s{sTMP2} offen\n    s_lshl_b32 s{sTMP2}, s{sTMP}, 13\n    buffer_load_dword v{vNM+2}, v{vT0}, {sr(sB,4)}, s{sTMP2} offen\n    """)\n'
def gen_attn(a):
    sHEAD, sQB, sKV, sRD, sWR, sLB, sFB, sMK = sR, sR+1, sR+2, sR+3, sR+4, sR+5, sR+6, sR+7
    vKB = 212
    vKA, vVA, vKAb, vVAb, vHH, vHHI, vT0 = 3, 4, 5, 6, 7, 8, 12
    vQ = 16; vO = 48; vS = [112, 128]; vP = [144, 152]; vK = [160, 168]; vV = [176, 184]; vNM = 192
    vFA = 208
    a(f"""
    s_and_b32 s{sHEAD}, s{sSL}, 1
    s_lshl_b32 s{sTMP}, s{sXCD}, 1
    s_add_u32 s{sHEAD}, s{sHEAD}, s{sTMP}
    s_lshr_b32 s{sQB}, s{sSL}, 1
    s_lshl_b32 s{sKV}, s{sHEAD}, 18
    s_add_u32 s{sKV}, s{sKV}, {KF_OFF}
    s_lshl_b32 s{sLB}, s{sWAVE}, 12
    v_lshrrev_b32 v{vHH}, 5, v{vLANE}
    v_add_u32 v{vKAb}, s{sLB}, v{vL16}
    v_bfe_u32 v{vT0}, v{vLANE}, 4, 1
    v_lshlrev_b32 v{vVAb}, 10, v{vT0}
    v_and_b32 v{vT0}, 1, v{vLANE}
    v_lshl_add_u32 v{vVAb}, v{vT0}, 9, v{vVAb}
    v_bfe_u32 v{vT0}, v{vLANE}, 1, 1
    v_lshl_add_u32 v{vVAb}, v{vT0}, 3, v{vVAb}
    v_bfe_u32 v{vT0}, v{vLANE}, 2, 2
    v_lshl_add_u32 v{vT0}, v{vHH}, 2, v{vT0}
    v_lshl_add_u32 v{vVAb}, v{vT0}, 4, v{vVAb}
    v_add_u32 v{vVAb}, s{sLB}, v{vVAb}
    v_add_u32 v{vVAb}, 2048, v{vVAb}
    v_sub_u32 v{vHHI}, v{vHH}, 1
    v_sub_u32 v{vHH}, 0, v{vHH}
    """)
    a(f"""
    s_lshl_b32 s{sTMP}, s{sHEAD}, 4
    s_add_u32 s{sTMP}, s{sTMP}, s{sQB}
    s_lshl_b32 s{sTMP}, s{sTMP}, 9
    s_add_u32 s{sTMP}, s{sTMP}, {F1_OFF}
    s_lshl_b32 s{sTMP2}, s{sQB}, 3
    s_add_u32 s{sTMP2}, s{sTMP2}, s{sTMP}
    v_and_b32 v{vFA}, 1, v{vLANE}
    v_lshlrev_b32 v{vFA}, 7, v{vFA}
    v_add_u32 v{vFA}, s{sTMP2}, v{vFA}
    s_lshl_b32 s{sTMP2}, s{sWAVE}, 5
    s_add_u32 s{sTMP2}, s{sTMP2}, s{sTMP}
    s_add_u32 s{sTMP2}, s{sTMP2}, 128
    v_bfe_u32 v{vFA+1}, v{vLANE}, 2, 1
    v_lshlrev_b32 v{vFA+1}, 7, v{vFA+1}
    v_and_b32 v{vT0}, 3, v{vLANE}
    v_lshl_add_u32 v{vFA+1}, v{vT0}, 3, v{vFA+1}
    s_mov_b64 exec, 0xff
    v_add_u32 v{vFA}, s{sTMP2}, v{vFA+1}
    s_mov_b64 exec, -1
    """)
    mb23_addr(a, vFA+2, sQB, sHEAD, F3_OFF)
    a(f"v_mov_b32 v{vKA}, v{vKAb}")
    a(f"v_mov_b32 v{vVA}, v{vVAb}")
    a("s_waitcnt lgkmcnt(0)")
    for i in range(8):
        a(f"v_mov_b32 v{vP[1]+i}, 0")
        a(f"v_mov_b32 v{vV[1]+i}, 0")
    if env("PFW", 0) == 1:
        exec(PFCODE, globals(), locals())
    stamp(a, 8)
    a(f"""
    s_lshl_b32 s{sTMP}, s{sWAVE}, 16
    s_add_u32 s{sTMP}, s{sKV}, s{sTMP}
    v_add_u32 v{vKB}, s{sTMP}, v{vL16}
    s_mul_i32 s{sWR}, s{sQB}, {4096*env("ROTA", 1)}
    s_mov_b32 s{sMK}, 0xffff
    s_waitcnt vmcnt({3 if env("PFW", 0) == 1 else 0})
    v_readfirstlane_b32 s{sTAG}, v18
    v_readfirstlane_b32 s{sTAG+1}, v19
    s_min_u32 s{sTMP}, s{sTAG}, s{sTAG+1}
    s_cmp_lg_u32 s{sTMP}, 0
    s_cbranch_scc1 a_tagok
    """)
    get_tag(a, vT0+2)
    a.label("a_tagok")
    publish_flag(a, vT0+2, 17, 0)
    stamp(a, 9)
    if env("PFW", 0) == 2:
        exec(PFCODE, globals(), locals())
    a(f"s_setprio {env('APRIO', 3)}")
    prog_wait(a, vT0, LP, 7)
    stamp(a, 15)
    if env('F1SLEEP', 12): a(f"s_sleep {env('F1SLEEP', 12)}")
    poll_flags(a, vFA, vT0+2)
    a.label("a_pro")
    stamp(a, 16)
    a(f"""
    s_lshl_b32 s{sTMP}, s{sQB}, 14
    s_add_u32 s{sTMP}, s{sTMP}, s{sKV}
    buffer_load_dwordx4 {vr(vK[1],4)}, v{vL16}, {sr(sWS,4)}, s{sTMP} offen sc1
    buffer_load_dwordx4 {vr(vK[1]+4,4)}, v{vL16}, {sr(sWS,4)}, s{sTMP} offen offset:1024 sc1
    s_lshl_b32 s{sTMP2}, s{sQB}, 2
    s_lshl_b32 s{sTMP3}, s{sHEAD}, 6
    s_add_u32 s{sTMP2}, s{sTMP2}, s{sTMP3}
    """)
    for j in range(4):
        a(f"""
        s_xor_b32 s{sTMP}, s{sWAVE}, {j}
        s_add_u32 s{sTMP}, s{sTMP}, s{sTMP2}
        s_lshl_b32 s{sTMP}, s{sTMP}, 11
        buffer_load_dwordx4 {vr(vQ+8*j,4)}, v{vL16}, {sr(sWS,4)}, s{sTMP} offen sc1
        buffer_load_dwordx4 {vr(vQ+8*j+4,4)}, v{vL16}, {sr(sWS,4)}, s{sTMP} offen offset:1024 sc1
        """)
    stamp(a, 17)
    a(f"""
    s_mov_b32 m0, s{sLB}
    s_nop 0
    """)
    def dma_tile(va=None):
        for i in range(4):
            a(f"buffer_load_dwordx4 v{vKB if va is None else va}, {sr(sWS,4)}, s{sWR} offen offset:{1024*i} sc1 lds")
    def adv():
        a(f"s_add_u32 s{sWR}, s{sWR}, 4096")
        a(f"s_and_b32 s{sWR}, s{sWR}, s{sMK}")
    for t in range(2):
        dma_tile()
        a(f"s_add_u32 m0, m0, 16384")
        adv()
    for t in range(4):
        a(f"s_waitcnt vmcnt({8 + 2*(3-t)})")
        a(f"v_mfma_f32_32x32x16_bf16 {vr(vO+16*t,16)}, {vr(vK[1],4)}, {vr(vQ+8*t,4)}, 0")
        a(f"v_mfma_f32_32x32x16_bf16 {vr(vO+16*t,16)}, {vr(vK[1]+4,4)}, {vr(vQ+8*t+4,4)}, {vr(vO+16*t,16)}")
    a("s_nop 3")
    stamp(a, 18)
    def read_k(st, addr, off=0):
        a(f"ds_read_b128 {vr(vK[st],4)}, v{addr} offset:{off}")
        a(f"ds_read_b128 {vr(vK[st]+4,4)}, v{addr} offset:{off+1024}")
    def read_v_ins(st, addr, off=0):
        return [f"ds_read_b64_tr_b16 {vr(vV[st]+4*s_+2*p,2)}, v{addr} offset:{off+(16*s_+8*p)*16}" for s_ in range(2) for p in range(2)]
    for j in range(4):
        o = vO + 16*j
        if j == 2:
            prog_wait(a, vT0, SP, 1)
            for t in range(2):
                dma_tile()
                if t == 0:
                    a(f"s_add_u32 m0, m0, 16384")
                adv()
        if j == 3:
            a("s_waitcnt vmcnt(12)")
            read_k(0, vKAb)
            for x in read_v_ins(0, vVAb): a(x)
        t = vT0 + (j & 1) * 2
        a(f"v_max3_f32 v{t}, v{o}, v{o+1}, v{o+2}")
        for i in range(3, 15, 2):
            a(f"v_max3_f32 v{t}, v{t}, v{o+i}, v{o+i+1}")
        a(f"v_max_f32 v{t}, v{t}, v{o+15}")
        a(f"v_mov_b32 v{t+1}, v{t}")
        a(f"v_mfma_f32_32x32x16_bf16 {vr(o,16)}, {vr(vP[1],4)}, {vr(vP[1],4)}, 0")
        a("s_nop 0")
        a(f"v_permlane32_swap_b32 v{t}, v{t+1}")
        a("s_nop 1")
        a(f"v_max_f32 v{t}, v{t}, v{t+1}")
        a(f"v_add_f32 v{t}, {f32bits(BIAS - 1.0):#x}, v{t}")
        a(f"v_cvt_pk_bf16_f32 v{t}, -v{t}, 0")
        a(f"v_and_b32 v{t}, v{t}, v{vHH}")
        a(f"v_and_or_b32 v{vQ+8*j+6}, v{vQ+8*j+6}, v{vHHI}, v{t}")
    a(f"""
    s_mov_b32 s{sRD}, 0
    s_mov_b32 s{sIT}, 0
    s_waitcnt lgkmcnt(0)
    """)
    a(f"v_mfma_f32_32x32x16_bf16 {vr(vS[0],16)}, {vr(vK[0],4)}, {vr(vQ,4)}, 0")
    a(f"v_mfma_f32_32x32x16_bf16 {vr(vS[0],16)}, {vr(vK[0]+4,4)}, {vr(vQ+4,4)}, {vr(vS[0],16)}")
    a("s_nop 7")
    a("s_nop 3")
    def body(sl):
        st = sl % 2
        for j in range(4):
            sc = vS[j % 2]; sn = vS[(j + 1) % 2]
            pc = vP[j % 2]; pp = vP[(j + 1) % 2]
            kn = vK[st] if j < 3 else vK[1 - st]
            qn = vQ + 8 * ((j + 1) % 4)
            vv = vV[st] if j > 0 else vV[1 - st]
            op = vO + 16 * ((j + 3) % 4)
            mf = [
                f"v_mfma_f32_32x32x16_bf16 {vr(sn,16)}, {vr(kn,4)}, {vr(qn,4)}, 0",
                f"v_mfma_f32_32x32x16_bf16 {vr(sn,16)}, {vr(kn+4,4)}, {vr(qn+4,4)}, {vr(sn,16)}",
                f"v_mfma_f32_32x32x16_bf16 {vr(op,16)}, {vr(vv,4)}, {vr(pp,4)}, {vr(op,16)}",
                f"v_mfma_f32_32x32x16_bf16 {vr(op,16)}, {vr(vv+4,4)}, {vr(pp+4,4)}, {vr(op,16)}",
            ]
            if j == 3:
                a("s_waitcnt lgkmcnt(4)" if env("SPREAD", 0) else "s_waitcnt lgkmcnt(0)")
            if j == 0 and env("SPREAD", 0):
                a("s_waitcnt lgkmcnt(0)")
            plan = [[("e", 0), ("e", 1), ("e", 2)], [("e", 3), ("e", 4), ("e", 5)], [("e", 6), ("e", 7), ("e", 8)],
                    [("e", i) for i in range(9, 16)] + [("c", i) for i in range(8)]]
            for g in range(4):
                a(mf[g])
                if j == 0 and g == 2:
                    a(f"s_add_u32 m0, s{sLB}, {16384*sl}")
                if env("SPREAD", 0):
                    if g == 3:
                        a(f"buffer_load_dwordx4 v{vKB}, {sr(sWS,4)}, s{sWR} offen offset:{1024*j} sc1 lds")
                        if j == 3: adv()
                    if j == 1 and g == 3:
                        a("s_waitcnt vmcnt(10)")
                        read_k(1 - st, vKAb, 16384*((sl+1) % 4))
                    if j == 2 and g == 3:
                        for x in read_v_ins(1 - st, vVAb, 16384*((sl+1) % 4)): a(x)
                else:
                    if j == 0 and g == 3:
                        a(f"s_cmp_eq_u32 s{sIT}, 3")
                        a(f"s_cbranch_scc1 a_nd{sl}")
                        a("s_setprio 3")
                        dma_tile()
                        a("s_setprio 1")
                        adv()
                        a.label(f"a_ndb{sl}")
                    if j == 1 and g == 3:
                        a("s_waitcnt vmcnt(12)")
                        read_k(1 - st, vKAb, 16384*((sl+1) % 4))
                        for x in read_v_ins(1 - st, vVAb, 16384*((sl+1) % 4)): a(x)
                for kind, i in plan[g]:
                    if kind == "e":
                        a(f"v_exp_f32 v{sc+i}, v{sc+i}")
                    else:
                        a(f"v_cvt_pk_bf16_f32 v{pc+i}, v{sc+2*i}, v{sc+2*i+1}")
    a("s_setprio 1")
    stamp(a, 19)
    dry_end(a)
    a.raw(".p2align 6")
    a.label("a_loop")
    body(0)
    body(1)
    dry_end(a)
    a.label("a_loop2")
    body(2)
    body(3)
    dry_end(a)
    if env("STL", 0) & 8: stamp_dyn(a, 24, sIT)
    a(f"""
    s_add_u32 s{sIT}, s{sIT}, 1
    s_cmp_lt_u32 s{sIT}, 4
    s_cbranch_scc1 a_loop
    """)
    a.label("a_tail")
    stamp(a, 20)
    a("s_setprio 3")
    a("s_nop 1")
    a(f"v_mfma_f32_32x32x16_bf16 {vr(vO+48,16)}, {vr(vV[1],4)}, {vr(vP[1],4)}, {vr(vO+48,16)}")
    a(f"v_mfma_f32_32x32x16_bf16 {vr(vO+48,16)}, {vr(vV[1]+4,4)}, {vr(vP[1]+4,4)}, {vr(vO+48,16)}")
    a("s_waitcnt vmcnt(0)")
    a("s_nop 3")
    reduce_write(a, vO, vT0, sLB, js=16384)
    a("s_waitcnt lgkmcnt(0)")
    prog_set(a, vT0, AP, 1)
    prog_wait(a, vT0, AP, 1, sleep=0)
    reduce_read(a, vO, vS[0], vT0, ATT0, js=16384, wsh=12)
    a(f"s_mov_b32 s{sFB}, 0")
    stamp(a, 21)
    a.label("a_norm")
    a(f"""
    v_mov_b32 v{vT0}, v{vO+12}
    v_mov_b32 v{vT0+1}, v{vO+12}
    s_nop 1
    v_permlane32_swap_b32 v{vT0}, v{vT0+1}
    s_nop 1
    v_rcp_f32 v{vT0}, v{vT0+1}
    v_mov_b32 v{vT0+2}, 0
    """)
    for i in range(16):
        a(f"v_mul_f32 v{vS[0]+i}, v{vO+i}, v{vT0}")
    for i in range(16):
        a(f"v_fma_f32 v{vT0+2}, v{vS[0]+i}, 0, v{vT0+2}")
    a(f"""
    s_mov_b32 s{sTMP}, {f32bits(2.0**-90):#x}
    v_cmp_nle_f32 vcc, s{sTMP}, v{vT0+1}
    s_mov_b32 s{sTMP}, {f32bits(2.0**100):#x}
    v_cmp_nge_f32 s[72:73], s{sTMP}, v{vT0+1}
    v_cmp_u_f32 s[74:75], v{vT0+2}, v{vT0+2}
    s_or_b64 vcc, vcc, s[72:73]
    s_or_b64 vcc, vcc, s[74:75]
    s_cmp_lg_u32 s{sFB}, 0
    s_cbranch_scc1 a_store
    s_cbranch_vccnz a_fallback
    """)
    a.label("a_store")
    for i in range(8):
        a(f"v_cvt_pk_bf16_f32 v{vP[0]+i}, v{vS[0]+2*i}, v{vS[0]+2*i+1}")
    a(f"""
    v_and_b32 v{vP[0]+6}, v{vP[0]+6}, v{vHHI}
    v_and_b32 v{vP[0]+7}, v{vP[0]+7}, v{vHHI}
    s_lshl_b32 s{sTMP3}, s{sQB}, 2
    s_add_u32 s{sTMP3}, s{sTMP3}, s{sWAVE}
    s_mul_i32 s{sTMP}, s{sTMP3}, 144
    s_lshl_b32 s{sTMP2}, s{sHEAD}, 1
    s_add_u32 s{sTMP}, s{sTMP}, s{sTMP2}
    s_lshl_b32 s{sTMP}, s{sTMP}, 10
    s_add_u32 s{sTMP}, s{sTMP}, {HF_OFF + 112*1024}
    buffer_store_dwordx4 {vr(vP[0],4)}, v{vL16}, {sr(sWS,4)}, s{sTMP} offen sc1
    buffer_store_dwordx4 {vr(vP[0]+4,4)}, v{vL16}, {sr(sWS,4)}, s{sTMP} offen offset:1024 sc1
    s_waitcnt vmcnt(0)
    """)
    stamp(a, 22)
    publish_flag(a, vT0+2, vFA+2, 2)
    prog_set(a, vT0, AP, 2)
    dry_end(a)
    stamp_flush(a, 0, sWS, sW8, 20, wpw=8)
    a("s_endpgm")
    for sl in range(4):
        a.label(f"a_nd{sl}")
        a(f"s_waitcnt vmcnt({max(0, 8 - 4*sl)})")
        a(f"s_branch a_ndb{sl}")
    a.label("a_fallback")
    a(f"""
    v_and_b32 v{vQ+6}, v{vQ+6}, v{vHHI}
    v_mov_b32 v{vT0}, 0xff800000
    s_mov_b32 s{sWR}, s{sKV}
    s_mov_b32 s{sIT}, 0
    """)
    a.label("a_fb1")
    a(f"""
    buffer_load_dwordx4 {vr(vK[0],4)}, v{vL16}, {sr(sWS,4)}, s{sWR} offen sc1
    buffer_load_dwordx4 {vr(vK[0]+4,4)}, v{vL16}, {sr(sWS,4)}, s{sWR} offen offset:1024 sc1
    s_waitcnt vmcnt(0)
    v_mfma_f32_32x32x16_bf16 {vr(vS[0],16)}, {vr(vK[0],4)}, {vr(vQ,4)}, 0
    v_mfma_f32_32x32x16_bf16 {vr(vS[0],16)}, {vr(vK[0]+4,4)}, {vr(vQ+4,4)}, {vr(vS[0],16)}
    s_nop 15
    s_nop 3
    """)
    for i in range(0, 16, 2):
        a(f"v_max3_f32 v{vT0}, v{vT0}, v{vS[0]+i}, v{vS[0]+i+1}")
    a(f"""
    s_add_u32 s{sWR}, s{sWR}, 4096
    s_add_u32 s{sIT}, s{sIT}, 1
    s_cmp_lt_u32 s{sIT}, 64
    s_cbranch_scc1 a_fb1
    v_mov_b32 v{vT0+1}, v{vT0}
    s_nop 1
    v_permlane32_swap_b32 v{vT0}, v{vT0+1}
    s_nop 1
    v_max_f32 v{vT0}, v{vT0}, v{vT0+1}
    """)
    for i in range(16):
        a(f"v_sub_f32 v{vNM+i}, 0, v{vT0}")
        a(f"v_mov_b32 v{vO+i}, 0")
    a(f"""
    s_add_u32 m0, s{sLB}, 49152
    v_add_u32 v{vKA}, 49152, v{vKAb}
    v_add_u32 v{vVA}, 49152, v{vVAb}
    s_mov_b32 s{sWR}, s{sKV}
    s_mov_b32 s{sIT}, 0
    """)
    a.label("a_fb2")
    dma_tile(vL16)
    a("s_waitcnt vmcnt(0)")
    read_k(0, vKA)
    for x in read_v_ins(0, vVA): a(x)
    a(f"""
    s_waitcnt lgkmcnt(0)
    v_mfma_f32_32x32x16_bf16 {vr(vS[0],16)}, {vr(vK[0],4)}, {vr(vQ,4)}, {vr(vNM,16)}
    v_mfma_f32_32x32x16_bf16 {vr(vS[0],16)}, {vr(vK[0]+4,4)}, {vr(vQ+4,4)}, {vr(vS[0],16)}
    s_nop 15
    s_nop 3
    """)
    for i in range(16):
        a(f"v_exp_f32 v{vS[0]+i}, v{vS[0]+i}")
    a("s_nop 0")
    for i in range(8):
        a(f"v_cvt_pk_bf16_f32 v{vP[0]+i}, v{vS[0]+2*i}, v{vS[0]+2*i+1}")
    a(f"""
    s_nop 1
    v_mfma_f32_32x32x16_bf16 {vr(vO,16)}, {vr(vV[0],4)}, {vr(vP[0],4)}, {vr(vO,16)}
    v_mfma_f32_32x32x16_bf16 {vr(vO,16)}, {vr(vV[0]+4,4)}, {vr(vP[0]+4,4)}, {vr(vO,16)}
    s_add_u32 s{sWR}, s{sWR}, 4096
    s_add_u32 s{sIT}, s{sIT}, 1
    s_cmp_lt_u32 s{sIT}, 64
    s_cbranch_scc1 a_fb2
    s_nop 15
    s_nop 3
    s_mov_b32 s{sFB}, 1
    s_branch a_norm
    """)

def gen_gemm2(a):
    sMT, sNT, sHO, sWOFF, sGB, sWO3, sBLK = sR, sR+1, sR+2, sR+3, sR+4, sR+5, sR+6
    vH0, vH1, vWD, vTR0, vTR1, vXA, vT0, vFA = 3, 4, 5, 6, 7, 8, 12, 15
    vXD = 18
    vWF = 224
    vACC = 80
    vHR = 144
    vWB = 16
    if env("STS", 0):
        stamp_flush(a, 0, sWS, sW8, 20, wpw=8)
        a("s_endpgm")
    a(f"""
    s_mul_i32 s{sTMP}, s{sSL}, 37
    s_lshr_b32 s{sTMP}, s{sTMP}, 8
    s_mul_i32 s{sTMP2}, s{sTMP}, 7
    s_sub_u32 s{sNT}, s{sSL}, s{sTMP2}
    s_lshl_b32 s{sMT}, s{sXCD}, 2
    s_add_u32 s{sMT}, s{sMT}, s{sTMP}
    s_lshl_b32 s{sMT}, s{sMT}, 1
    """)
    a(f"""
    v_and_b32 v{vFA}, 3, v{vLANE}
    s_mul_i32 s{sTMP}, s{sXCD}, 28
    s_add_u32 s{sTMP}, s{sTMP}, s{sSL}
    s_lshl_b32 s{sTMP}, s{sTMP}, 2
    s_add_u32 s{sTMP}, s{sTMP}, s{sWAVE}
    s_lshl_b32 s{sTMP}, s{sTMP}, 2
    v_add_u32 v{vFA}, s{sTMP}, v{vFA}
    v_lshlrev_b32 v{vFA}, 3, v{vFA}
    v_add_u32 v{vFA}, {F2_OFF}, v{vFA}
    s_and_b32 s{sTMP}, s{sWAVE}, 1
    s_add_u32 s{sMT}, s{sMT}, s{sTMP}
    s_mul_i32 s{sTMP}, s{sMT}, {144*1024}
    s_add_u32 s{sTMP}, s{sTMP}, {HF_OFF}
    v_add_u32 v{vH0}, s{sTMP}, v{vL16}
    s_xor_b32 s{sTMP}, s{sMT}, 1
    s_mul_i32 s{sTMP}, s{sTMP}, {144*1024}
    s_add_u32 s{sTMP}, s{sTMP}, {HF_OFF}
    v_add_u32 v{vH1}, s{sTMP}, v{vL16}
    s_mul_i32 s{sHO}, s{sWAVE}, {28*1024}
    s_lshl_b32 s{sGB}, s{sWAVE}, 14
    s_add_u32 s{sGB}, s{sGB}, {GR0}
    """)
    a(f"""
    v_lshrrev_b32 v{vT0}, 3, v{vLANE}
    v_bfe_u32 v{vT0+1}, v{vLANE}, 4, 1
    v_lshlrev_b32 v{vT0+1}, 2, v{vT0+1}
    v_and_b32 v{vT0+2}, 7, v{vLANE}
    v_xor_b32 v{vT0+2}, v{vT0+2}, v{vT0+1}
    v_lshlrev_b32 v{vT0+2}, 4, v{vT0+2}
    s_movk_i32 s{sTMP}, 896
    v_mad_u32_u24 v{vWD}, v{vT0}, s{sTMP}, v{vT0+2}
    s_mul_i32 s{sWOFF}, s{sWAVE}, {448*896}
    s_lshl_b32 s{sTMP}, s{sNT}, 7
    s_add_u32 s{sWOFF}, s{sWOFF}, s{sTMP}
    """)
    a(f"""
    v_lshrrev_b32 v{vT0}, 5, v{vLANE}
    v_bfe_u32 v{vT0+1}, v{vLANE}, 2, 2
    v_lshl_add_u32 v{vT0}, v{vT0}, 2, v{vT0+1}
    v_lshlrev_b32 v{vTR0}, 7, v{vT0}
    v_bfe_u32 v{vT0+1}, v{vLANE}, 3, 1
    s_lshr_b32 s{sTMP}, s{sWAVE}, 1
    v_xor_b32 v{vT0+1}, s{sTMP}, v{vT0+1}
    v_lshl_add_u32 v{vTR0}, v{vT0+1}, 6, v{vTR0}
    v_bfe_u32 v{vT0+1}, v{vLANE}, 4, 1
    v_lshl_add_u32 v{vTR0}, v{vT0+1}, 5, v{vTR0}
    v_and_b32 v{vT0+1}, 3, v{vLANE}
    v_lshl_add_u32 v{vTR0}, v{vT0+1}, 3, v{vTR0}
    v_xor_b32 v{vTR1}, 64, v{vTR0}
    v_add_u32 v{vTR0}, s{sGB}, v{vTR0}
    v_add_u32 v{vTR1}, s{sGB}, v{vTR1}
    s_lshl_b32 s{sNT}, s{sNT}, 1
    s_add_u32 s{sNT}, s{sNT}, s{sTMP}
    """)
    def loadw(k):
        a(f"s_add_u32 m0, s{sGB}, {2048*k}")
        a(f"s_add_u32 s{sTMP}, s{sWOFF}, {8*896 - 1024}")
        a(f"buffer_load_dwordx4 v{vWD}, {sr(sB,4)}, s{sWOFF} offen lds")
        a(f"buffer_load_dwordx4 v{vWD}, {sr(sB,4)}, s{sTMP} offen offset:1024 lds")
        a(f"s_add_u32 s{sWOFF}, s{sWOFF}, {16*896}")
    def loadh(k):
        f = vHR + 8*k
        a(f"buffer_load_dwordx4 {vr(f,4)}, v{vH0}, {sr(sWS,4)}, s{sHO} offen sc1")
        a(f"buffer_load_dwordx4 {vr(f+4,4)}, v{vH1}, {sr(sWS,4)}, s{sHO} offen sc1")
        a(f"s_add_u32 s{sHO}, s{sHO}, 1024")
    def loads(k):
        loadw(k); loadh(k)
    def rdw(k, dst):
        for t, ad in ((0, vTR0), (1, vTR1)):
            for p in range(2):
                a(f"ds_read_b64_tr_b16 {vr(dst+4*t+2*p,2)}, v{ad} offset:{2048*k + 1024*p}")
    def mfmas(w, h):
        for j in range(4):
            a(f"v_mfma_f32_32x32x16_bf16 {vr(vACC+16*j,16)}, {vr(w+4*(j>>1),4)}, {vr(h+4*(j&1),4)}, {vr(vACC+16*j,16)}")
    vFA3, vXD3, vOA = 208, 212, 220
    set_srd(a, sB, pWO, D*D*2)
    set_srd(a, sA, pX, S*D*2)
    set_srd(a, sCc, pOUT, S*D*2)
    a(f"""
    s_mul_i32 s{sWO3}, s{sWAVE}, {4*28*896}
    s_lshr_b32 s{sTMP}, s{sNT}, 1
    s_lshl_b32 s{sTMP}, s{sTMP}, 7
    s_add_u32 s{sWO3}, s{sWO3}, s{sTMP}
    """)
    for k in range(8):
        off = (28*(k >> 1) + 16*(k & 1)) * 896
        a(f"s_add_u32 m0, s{sGB}, {2048*k}")
        a(f"s_add_u32 s{sTMP}, s{sWO3}, {off}")
        a(f"buffer_load_dwordx4 v{vWD}, {sr(sB,4)}, s{sTMP} offen lds")
        a(f"s_add_u32 s{sTMP}, s{sWO3}, {off + 8*896 - 1024}")
        a(f"buffer_load_dwordx4 v{vWD}, {sr(sB,4)}, s{sTMP} offen offset:1024 lds")
    a(f"""
    v_add_u32 v{vFA3}, {F3_OFF - F2_OFF}, v{vFA}
    v_and_b32 v{vOA}, 31, v{vLANE}
    s_lshl_b32 s{sTMP}, s{sMT}, 5
    v_add_u32 v{vOA}, s{sTMP}, v{vOA}
    s_movk_i32 s{sTMP}, 896
    v_mul_lo_u32 v{vOA}, v{vOA}, s{sTMP}
    v_lshrrev_b32 v{vT0}, 5, v{vLANE}
    v_lshl_add_u32 v{vXA}, v{vT0}, 3, v{vOA}
    v_lshl_add_u32 v{vOA}, v{vT0}, 4, v{vOA}
    s_lshl_b32 s{sNT}, s{sNT}, 6
    """)
    for g in range(4):
        a(f"buffer_load_dwordx2 {vr(vXD3+2*g,2)}, v{vXA}, {sr(sA,4)}, s{sNT} offen offset:{16*g}")
    a(f"s_lshr_b32 s{sTMP3}, s{sMT32}, 2")
    mb23_addr(a, 16, sTMP3, sCOL, F2_OFF)
    a(f"""
    s_waitcnt vmcnt(20)
    """)
    publish_flag(a, vT0, 16, 1)
    a(f"""
    s_cmp_ge_u32 s{sSL}, 28
    s_cbranch_scc1 k_end
    """)
    stamp(a, 13)
    a("s_waitcnt vmcnt(0)")
    for k in range(8):
        rdw(k, vWB + 8*k)
        if k % 2 == 1: a("s_waitcnt lgkmcnt(0)")
    for g in range(4):
        for p in range(2):
            a(f"v_lshlrev_b32 v{vT0}, 16, v{vXD3+2*g+p}")
            a(f"v_and_b32 v{vT0+1}, 0xffff0000, v{vXD3+2*g+p}")
            a(f"v_add_f32 v{vACC+4*g+2*p}, v{vACC+4*g+2*p}, v{vT0}")
            a(f"v_add_f32 v{vACC+4*g+2*p+1}, v{vACC+4*g+2*p+1}, v{vT0+1}")
    set_srd(a, sB, pW2, DFF*D*2)
    WPRE = env("WPRE", 1)
    a(f"""
    s_mul_i32 s{sBLK}, s{sSL}, {env("ROTG", 1)}
    s_and_b32 s{sBLK}, s{sBLK}, 3
    s_mul_i32 s{sTMP}, s{sBLK}, {7*1024}
    s_add_u32 s{sHO}, s{sHO}, s{sTMP}
    s_mul_i32 s{sTMP}, s{sBLK}, {7*16*896}
    s_add_u32 s{sWOFF}, s{sWOFF}, s{sTMP}
    """)
    if WPRE:
        for k in range(7): loadw(k)
        a(f"s_mov_b32 s{sTMP2}, {OOB:#x}")
    stamp(a, 20)
    poll_flags(a, vFA, vT0)
    stamp(a, 14)
    a.label("g_pre")
    for k in range(7):
        if WPRE:
            loadh(k)
        else:
            loads(k)
    a(f"s_mov_b32 s{sIT}, 0")
    a(f"s_setprio {env('GPRIO', 2)}")
    dry_end(a)
    a.label("g_loop")
    a(f"""
    s_add_u32 s{sBLK}, s{sBLK}, 1
    s_cmp_eq_u32 s{sBLK}, 4
    s_cselect_b32 s{sTMP}, {28*1024}, 0
    s_cselect_b32 s{sTMP2}, {28*16*896}, 0
    s_sub_u32 s{sHO}, s{sHO}, s{sTMP}
    s_sub_u32 s{sWOFF}, s{sWOFF}, s{sTMP2}
    """)
    for k in range(7):
        a("s_waitcnt vmcnt(12)")
        rdw(k, vWF)
        a("s_waitcnt lgkmcnt(0)")
        if env("GTOG", 1): a("s_setprio 0")
        mfmas(vWF, vHR + 8*k)
        if env("GTOG", 1): a("s_setprio 2")
        a(f"s_cmp_eq_u32 s{sIT}, 3")
        a(f"s_cbranch_scc1 g_nl{k}")
        loads(k)
        a.label(f"g_nlb{k}")
    dry_end(a)
    a(f"""
    s_add_u32 s{sIT}, s{sIT}, 1
    s_cmp_lt_u32 s{sIT}, 4
    s_cbranch_scc1 g_loop
    """)
    a("s_branch g_p3")
    for k in range(7):
        a.label(f"g_nl{k}")
        if k >= 3: a(f"s_waitcnt vmcnt({max(0, 4*(5-k))})")
        a(f"s_branch g_nlb{k}")
    a.label("g_p3")
    a("s_setprio 2")
    a("s_waitcnt vmcnt(0)")
    stamp(a, 15)
    a(f"""
    s_lshl_b32 s{sHO}, s{sWAVE}, 13
    s_add_u32 s{sHO}, s{sHO}, {112*1024}
    s_add_u32 s{sTMP2}, s{sHO}, 4096
    """)
    stamp(a, 16)
    dry_end(a)
    a.label("g_tail")
    if env("F3W", 2): prog_wait(a, vT0, AP, env("F3W", 2), sleep=2)
    if env("F3S", 0): a(f"s_sleep {env('F3S', 0)}")
    poll_flags(a, vFA3, vT0)
    stamp(a, 17)
    for k in range(8):
        f = vHR + 8*k
        so = sHO if k < 4 else sTMP2
        a(f"buffer_load_dwordx4 {vr(f,4)}, v{vH0}, {sr(sWS,4)}, s{so} offen offset:{1024*(k%4)} sc1")
        a(f"buffer_load_dwordx4 {vr(f+4,4)}, v{vH1}, {sr(sWS,4)}, s{so} offen offset:{1024*(k%4)} sc1")
    for k in range(8):
        a(f"s_waitcnt vmcnt({14 - 2*k})")
        mfmas(vWB + 8*k, vHR + 8*k)
    stamp(a, 18)
    a("s_nop 7")
    a("s_nop 3")
    reduce_write(a, vACC, vT0, sGB)
    a("s_waitcnt lgkmcnt(0)")
    prog_set(a, vT0, SP, 3)
    prog_wait(a, vT0, SP, 3, sleep=0)
    dry_end(a)
    a.label("g_tail2")
    reduce_read(a, vACC, vHR, vT0, GR0)
    stamp(a, 19)
    for i in range(8):
        a(f"v_cvt_pk_bf16_f32 v{vHR+i}, v{vACC+2*i}, v{vACC+2*i+1}")
    a("s_nop 1")
    for q in range(2):
        a(f"v_permlane32_swap_b32 v{vHR+4*q}, v{vHR+4*q+2}")
        a(f"v_permlane32_swap_b32 v{vHR+4*q+1}, v{vHR+4*q+3}")
    a("s_nop 1")
    for q in range(2):
        a(f"buffer_store_dwordx4 {vr(vHR+4*q,4)}, v{vOA}, {sr(sCc,4)}, s{sNT} offen offset:{32*q}")
    dry_end(a)
    stamp_flush(a, 0, sWS, sW8, 20, wpw=8)
```

```python
import sys, math, struct, os
from asmlib import *

NAME = "parallel_sum__mha_block__dense_activation_relu__prompt"
S, D, H, DH, DFF = 2048, 448, 16, 28, 1792
QF_OFF = 0
KF_OFF = 2 << 20
VF_OFF = 4 << 20
HF_OFF = 7 << 20
FL_OFF = 17 << 20
F1_OFF, F2_OFF, F3_OFF = FL_OFF, FL_OFF + 131072, FL_OFF + 131072 + 32768
WS_SIZE = 0x10000000
OOB = 0x40000000
BIAS = 80.0
SPIN_G = 1 << 19
SPIN_L = 1 << 22
def env(k, d): return int(os.environ.get(k, str(d)))
DRY = env("DRY", 0)

def f32bits(x): return struct.unpack("<I", struct.pack("<f", x))[0]
QSCALE = math.log2(math.e) / math.sqrt(DH)

class LgkmTracker:
    def __init__(self, a): self.a = a; self.q = []
    def issue(self, tag): self.q.append(tag)
    def need(self, tag):
        if tag in self.q:
            idx = len(self.q) - 1 - self.q[::-1].index(tag)
            n = min(len(self.q) - 1 - idx, 13)
            self.a(f"s_waitcnt lgkmcnt({n})")
            self.q = self.q[len(self.q) - n:] if n > 0 else []

SLOT = 28672
SL0 = 12288
WB = SL0 + SLOT
ATT0 = 0
GR0 = 90112
CTL = SL0 + 5*SLOT
CSA, CSB_, STA = CTL + 4096, CTL + 4608, CTL + 5120
LP, CP, AP, SP = CTL + 6144, CTL + 6160, CTL + 6176, CTL + 6192
LDS_TOTAL = 163840

pX, pWQ, pWO, pW1, pW2, pOUT, pDBG = 4, 6, 8, 12, 14, 16, 18
sWS, sA, sB, sCc = 20, 24, 28, 32
sXCD, sSL, sW8, sWAVE, sMT32, sCOL, sTMP, sTMP2, sTMP3, sIT = 36, 37, 38, 39, 40, 41, 42, 43, 44, 45
sR = 46
sTAG, sSPIN, sRET = 76, 78, 90
vLANE, vL16, vPW, vPR, vF0 = 1, 2, 9, 10, 0

def dry_end(a):
    if DRY: a("s_cbranch_execz dry_ret")
def dry_call(a, label):
    a(f"s_call_b64 s[{sRET}:{sRET+1}], {label}")
def dry_by_wave(a, plans, name):
    if not (DRY >> (int(name[-1]) - 1)) & 1: return
    a("s_mov_b64 exec, 0")
    for w in range(4):
        if w < 3:
            a(f"s_cmp_lg_u32 s{sWAVE}, {w}")
            a(f"s_cbranch_scc1 {name}_{w+1}")
        for lbl in plans[w]:
            dry_call(a, lbl)
        if w < 3:
            a(f"s_branch {name}_end")
            a.label(f"{name}_{w+1}")
    a.label(f"{name}_end")
    a("s_mov_b64 exec, -1")

def prog_wait(a, vD, base, target, sleep=1):
    lp = a.newlabel("lw"); dn = a.newlabel("lwd")
    a(f"s_mov_b32 s{sSPIN}, {SPIN_L}")
    a.label(lp)
    a(f"""
    ds_read_b32 v{vD}, v{vPR} offset:{base - CTL}
    s_waitcnt lgkmcnt(0)
    v_cmp_gt_u32 vcc, {target}, v{vD}
    s_cbranch_vccz {dn}
    s_sleep {sleep}
    s_sub_u32 s{sSPIN}, s{sSPIN}, 1
    s_cbranch_scc0 {lp}
    """)
    a.label(dn)
def prog_set(a, vD, base, val):
    a(f"v_mov_b32 v{vD}, {val}")
    a(f"ds_write_b32 v{vPW}, v{vD} offset:{base - CTL}")
def get_tag(a, vD):
    lp = a.newlabel("tg"); dn = a.newlabel("tgd")
    a(f"s_mov_b32 s{sSPIN}, {SPIN_G}")
    a.label(lp)
    a(f"""
    buffer_load_dwordx2 {vr(vD,2)}, v{vF0}, {sr(sCc,4)}, 0 offen sc1
    s_waitcnt vmcnt(0)
    v_readfirstlane_b32 s{sTAG}, v{vD}
    v_readfirstlane_b32 s{sTAG+1}, v{vD+1}
    s_cbranch_execz {dn}
    s_min_u32 s{sTMP}, s{sTAG}, s{sTAG+1}
    s_cmp_lg_u32 s{sTMP}, 0
    s_cbranch_scc1 {dn}
    s_sub_u32 s{sSPIN}, s{sSPIN}, 1
    s_cbranch_scc0 {lp}
    """)
    a.label(dn)
def poll_flags(a, vFA, vD):
    lp = a.newlabel("pf"); dn = a.newlabel("pfd")
    a(f"s_mov_b32 s{sSPIN}, {SPIN_G}")
    a.label(lp)
    a(f"""
    buffer_load_dwordx2 {vr(vD,2)}, v{vFA}, {sr(sWS,4)}, 0 offen sc1
    s_waitcnt vmcnt(0)
    v_cmp_ne_u64 vcc, {sr(sTAG,2)}, {vr(vD,2)}
    s_cbranch_vccz {dn}
    s_sleep {env('PSLEEP', 3)}
    s_sub_u32 s{sSPIN}, s{sSPIN}, 1
    s_cbranch_scc0 {lp}
    """)
    a.label(dn)
GC = CTL + 6208
def publish_flag(a, vD, vMB, gidx):
    sk = a.newlabel("pub")
    a(f"""
    s_lshl_b32 s{sSPIN}, s{sWAVE}, 2
    v_mov_b32 v{vD+1}, 1
    v_subrev_u32 v{vD}, s{sSPIN}, v{vPW}
    ds_add_rtn_u32 v{vD+1}, v{vD}, v{vD+1} offset:{GC + 4*gidx - CTL}
    v_mov_b32 v{vD}, s{sTAG}
    s_waitcnt lgkmcnt(0)
    v_readfirstlane_b32 s{sSPIN}, v{vD+1}
    v_mov_b32 v{vD+1}, s{sTAG+1}
    s_cmp_lg_u32 s{sSPIN}, 3
    s_cbranch_scc1 {sk}
    buffer_store_dwordx2 {vr(vD,2)}, v{vMB}, {sr(sWS,4)}, 0 offen sc1
    """)
    a.label(sk)
def mb23_addr(a, vMB, sBLK, sSLOT_, base):
    a(f"""
    s_mul_i32 s{sTMP}, s{sBLK}, {14*128}
    s_lshl_b32 s{sTMP2}, s{sSLOT_}, 3
    s_add_u32 s{sTMP}, s{sTMP}, s{sTMP2}
    s_add_u32 s{sTMP}, s{sTMP}, {base}
    v_lshlrev_b32 v{vMB}, 7, v{vLANE}
    v_add_u32 v{vMB}, s{sTMP}, v{vMB}
    v_cmp_lt_u32 vcc, 13, v{vLANE}
    v_mov_b32 v{vMB+1}, {OOB:#x}
    s_nop 0
    v_cndmask_b32 v{vMB}, v{vMB}, v{vMB+1}, vcc
    """)
def set_srd(a, srd, ptr, size):
    a(f"""
    s_mov_b32 s{srd}, s{ptr}
    s_mov_b32 s{srd+1}, s{ptr+1}
    s_mov_b32 s{srd+2}, {size}
    """)

def gen(a):
    KN = NAME + "_kernel"
    a.label(KN)
    a(f"""
    s_cmp_ge_u32 s2, 256
    s_cbranch_scc1 k_end
    """)
    stamp(a, 0)
    a(f"""
    s_load_dwordx4 s[4:7], s[0:1], 0
    s_load_dwordx2 s[8:9], s[0:1], 16
    s_load_dwordx8 s[12:19], s[0:1], 32
    s_load_dwordx2 s[{sWS}:{sWS+1}], s[0:1], 64
    v_lshlrev_b32 v7, 3, v0
    v_add_u32 v7, {CTL + 4096}, v7
    v_mov_b32 v4, 0
    v_mov_b32 v5, 0
    ds_write_b64 v7, v[4:5]
    v_and_b32 v{vLANE}, 63, v0
    v_lshrrev_b32 v7, 6, v0
    v_lshlrev_b32 v{vL16}, 4, v{vLANE}
    v_readfirstlane_b32 s{sW8}, v7
    s_and_b32 s{sXCD}, s2, 7
    s_lshr_b32 s{sSL}, s2, 3
    s_mov_b32 s{sWS+2}, {WS_SIZE:#x}
    s_mov_b32 s{sWS+3}, 0x00020000
    s_mov_b32 s{sA+3}, 0x00020000
    s_mov_b32 s{sB+3}, 0x00020000
    s_mov_b32 s{sCc+3}, 0x00020000
    s_and_b32 s{sWAVE}, s{sW8}, 3
    s_and_b32 s{sMT32}, s{sXCD}, 1
    s_lshl_b32 s{sMT32}, s{sMT32}, 3
    s_and_b32 s{sTMP}, s{sSL}, 7
    s_add_u32 s{sMT32}, s{sMT32}, s{sTMP}
    s_lshl_b32 s{sMT32}, s{sMT32}, 2
    s_add_u32 s{sMT32}, s{sMT32}, s{sWAVE}
    s_lshr_b32 s{sCOL}, s{sXCD}, 1
    s_lshl_b32 s{sCOL}, s{sCOL}, 2
    s_lshr_b32 s{sTMP}, s{sSL}, 3
    s_add_u32 s{sCOL}, s{sCOL}, s{sTMP}
    v_and_b32 v{vPR}, 3, v{vLANE}
    v_lshlrev_b32 v{vPR}, 2, v{vPR}
    v_add_u32 v{vPR}, {CTL}, v{vPR}
    s_lshl_b32 s{sTMP}, s{sWAVE}, 2
    s_add_u32 s{sTMP}, s{sTMP}, {CTL}
    v_min_u32 v{vF0}, 1, v{vLANE}
    v_lshlrev_b32 v{vPW}, 9, v{vF0}
    v_lshl_add_u32 v{vPW}, v{vLANE}, 2, v{vPW}
    v_add_u32 v{vPW}, s{sTMP}, v{vPW}
    v_lshlrev_b32 v{vF0}, 30, v{vF0}
    s_cmp_lt_u32 s{sW8}, 4
    s_cbranch_scc1 k_comp
    """)
    ROLE[0] = "Y"
    gen_loader(a)
    a("s_branch c_passb")
    a.label("k_comp")
    ROLE[0] = "X"
    gen_comp(a)
    gen_gemm2(a)
    a("s_endpgm")
    a.label("x_attn")
    ROLE[0] = "X"
    gen_attn(a)
    a.label("k_end")
    a("s_endpgm")
    if DRY:
        a.label("dry_ret")
        a(f"s_setpc_b64 s[{sRET}:{sRET+1}]")
    return dict(name=KN, grid=256, block=512, lds=LDS_TOTAL, nvgpr=256, accum=256)

def gen_loader(a):
    vXD, vXD2, vWQ, vB1, vT = 7, 8, 3, 13, 14
    vSX, vAX = 20, 22
    vRD = 40
    vXB = 144
    sXOFF, sQOFF, sSLW, sMX, sMQ, sBOFF, sROT, sSLS, sMB, sCK, sBR = [sR + i for i in range(11)]
    a(f"""
    v_lshrrev_b32 v{vT}, 3, v{vLANE}
    v_lshrrev_b32 v{vT+1}, 4, v{vLANE}
    v_and_b32 v{vT+2}, 7, v{vLANE}
    v_xor_b32 v{vT+2}, v{vT+2}, v{vT+1}
    v_lshlrev_b32 v{vT+2}, 4, v{vT+2}
    s_movk_i32 s{sTMP}, 896
    v_mad_u32_u24 v{vXD}, v{vT}, s{sTMP}, v{vT+2}
    v_xor_b32 v{vXD2}, 64, v{vXD}
    s_mul_i32 s{sXOFF}, s{sMT32}, {32*896}
    s_lshl_b32 s{sMX}, s{sWAVE}, 12
    s_mul_i32 s{sMQ}, s{sWAVE}, 3072
    s_add_u32 s{sMQ}, s{sMQ}, 16384
    s_mul_i32 s{sQOFF}, s{sWAVE}, {16*2688}
    s_mul_i32 s{sTMP}, s{sCOL}, 168
    s_and_b32 s{sTMP}, s{sTMP}, -16
    s_add_u32 s{sQOFF}, s{sQOFF}, s{sTMP}
    s_lshr_b32 s{sTMP}, s{sSL}, 3
    s_lshl_b32 s{sTMP}, s{sTMP}, 1
    s_and_b32 s{sROT}, s{sSL}, 7
    s_add_u32 s{sROT}, s{sROT}, s{sTMP}
    s_mul_i32 s{sROT}, s{sROT}, {env("ROT", 0)}
    s_cmp_ge_u32 s{sROT}, 7
    s_cselect_b32 s{sTMP}, 7, 0
    s_sub_u32 s{sROT}, s{sROT}, s{sTMP}
    s_mov_b32 s{sCK}, s{sROT}
    s_lshl_b32 s{sTMP}, s{sROT}, 7
    s_add_u32 s{sXOFF}, s{sXOFF}, s{sTMP}
    s_mul_i32 s{sTMP}, s{sROT}, {64*2688}
    s_add_u32 s{sQOFF}, s{sQOFF}, s{sTMP}
    s_movk_i32 s{sTMP}, 5462
    s_movk_i32 s{sTMP2}, 2688
    v_mov_b32 v{vT+4}, {OOB:#x}
    """)
    for i in range(3):
        a(f"""
        v_add_u32 v{vT}, {64*i}, v{vLANE}
        v_mul_u32_u24 v{vT+2}, s{sTMP}, v{vT}
        v_lshrrev_b32 v{vT+2}, 16, v{vT+2}
        v_mul_u32_u24 v{vT+3}, 12, v{vT+2}
        v_sub_u32 v{vT}, v{vT}, v{vT+3}
        v_cmp_eq_u32 vcc, 11, v{vT}
        v_lshlrev_b32 v{vT}, 4, v{vT}
        v_mad_u32_u24 v{vWQ+i}, v{vT+2}, s{sTMP2}, v{vT}
        v_cndmask_b32 v{vWQ+i}, v{vWQ+i}, v{vT+4}, vcc
        """)
    a(f"""
    v_mov_b32 v{vB1}, 0
    s_mov_b32 s{sSLW}, {SL0 + 4*SLOT}
    s_mov_b32 s{sSLS}, {SL0 + 4*SLOT}
    s_mov_b32 s{sIT}, 0
    s_waitcnt lgkmcnt(0)
    s_barrier
    """)
    set_srd(a, sA, pX, S*D*2)
    set_srd(a, sB, pWQ, D*3*D*2)
    set_srd(a, sCc, pW1, D*DFF*2)
    stamp(a, 1)
    LDD = env("LDD", 1)
    a.label("ld_loop")
    a(f"""
    s_cmp_lt_u32 s{sIT}, 5
    s_cbranch_scc1 ld_isa
    s_sub_u32 s{sTMP3}, s{sIT}, 4
    """)
    BT = env("BTHROT", 99)
    if BT < 11:
        a(f"s_cmp_eq_u32 s{sIT}, {BT}")
        a(f"s_cselect_b32 s{sTMP3}, 9, s{sTMP3}")
    a(f"""
    s_waitcnt lgkmcnt(5)
    s_cmp_lt_u32 s{sIT}, {8 + LDD}
    s_cbranch_scc1 ld_chk
    s_waitcnt lgkmcnt(1)
    """)
    a.label("ld_chk")
    a(f"""
    v_cmp_gt_u32 vcc, s{sTMP3}, v{vT+4}
    s_cbranch_vccz ld_free
    """)
    prog_wait(a, vT+1, CP, f"s{sTMP3}")
    a.label("ld_free")
    a(f"""
    s_cmp_ge_u32 s{sIT}, 7
    s_cbranch_scc1 ld_isb
    """)
    a.label("ld_isa")
    a(f"s_add_u32 m0, s{sSLW}, s{sMX}")
    for i in range(4):
        a(f"s_add_u32 s{sTMP}, s{sXOFF}, {8*896*i}")
        a(f"buffer_load_dwordx4 v{vXD if i % 2 == 0 else vXD2}, {sr(sA,4)}, s{sTMP} offen lds")
        if i < 3: a("s_add_u32 m0, m0, 1024")
    a(f"s_add_u32 m0, s{sSLW}, s{sMQ}")
    a(f"s_add_u32 s{sXOFF}, s{sXOFF}, 128")
    for i in range(3):
        a(f"buffer_load_dwordx4 v{vWQ+i}, {sr(sB,4)}, s{sQOFF} offen lds")
        if i < 2:
            a("s_add_u32 m0, m0, 1024")
            a("s_nop 0")
    a(f"""
    s_add_u32 s{sQOFF}, s{sQOFF}, {64*2688}
    s_add_u32 s{sCK}, s{sCK}, 1
    s_cmp_eq_u32 s{sCK}, 7
    s_cselect_b32 s{sTMP}, 896, 0
    s_cselect_b32 s{sTMP2}, {448*2688}, 0
    s_sub_u32 s{sXOFF}, s{sXOFF}, s{sTMP}
    s_sub_u32 s{sQOFF}, s{sQOFF}, s{sTMP2}
    s_cmp_lg_u32 s{sIT}, 1
    s_cbranch_scc1 ld_post
    """)
    a(f"""
    v_lshrrev_b32 v{vT+1}, 4, v{vLANE}
    v_lshlrev_b32 v{vT+3}, 2, v{vT+1}
    v_and_b32 v{vT+2}, 15, v{vLANE}
    v_xor_b32 v{vT+2}, v{vT+2}, v{vT+3}
    v_lshlrev_b32 v{vT+3}, 4, v{vT+2}
    s_movk_i32 s{sTMP}, 3584
    v_mad_u32_u24 v{vB1}, v{vT+1}, s{sTMP}, v{vT+3}
    s_and_b32 s{sTMP}, s{sCOL}, 1
    s_lshl_b32 s{sTMP}, s{sTMP}, 2
    v_cmp_gt_u32 vcc, s{sTMP}, v{vT+2}
    v_mov_b32 v{vT+3}, {OOB:#x}
    s_nop 0
    v_cndmask_b32 v{vB1}, v{vB1}, v{vT+3}, vcc
    s_lshr_b32 s{sTMP}, s{sCOL}, 1
    s_mul_i32 s{sBOFF}, s{sTMP}, 448
    s_and_b32 s{sTMP}, s{sCOL}, 1
    s_mul_i32 s{sTMP}, s{sTMP}, 192
    s_add_u32 s{sBOFF}, s{sBOFF}, s{sTMP}
    s_mul_i32 s{sBR}, s{sWAVE}, 28
    s_lshl_b32 s{sTMP}, s{sROT}, 6
    s_add_u32 s{sBR}, s{sBR}, s{sTMP}
    s_mul_i32 s{sMB}, s{sWAVE}, 7168
    v_and_b32 v{vT}, 31, v{vLANE}
    v_lshrrev_b32 v{vT+1}, 5, v{vLANE}
    v_bfe_u32 v{vT+2}, v{vLANE}, 1, 3
    v_xor_b32 v{vT+1}, v{vT+1}, v{vT+2}
    v_lshlrev_b32 v{vT+1}, 4, v{vT+1}
    v_lshl_add_u32 v{vSX}, v{vT}, 7, v{vT+1}
    v_add_u32 v{vSX}, s{sMX}, v{vSX}
    v_mov_b32 v{vT}, 0
    """)
    a("s_branch ld_post")
    a.label("ld_isb")
    a(f"s_add_u32 m0, s{sSLW}, s{sMB}")
    for i in range(7):
        a(f"""
        s_cmp_ge_u32 s{sBR}, 448
        s_cselect_b32 s{sTMP}, 448, 0
        s_sub_u32 s{sBR}, s{sBR}, s{sTMP}
        s_mul_i32 s{sTMP}, s{sBR}, 3584
        s_add_u32 s{sTMP}, s{sTMP}, s{sBOFF}
        buffer_load_dwordx4 v{vB1}, {sr(sCc,4)}, s{sTMP} offen lds
        s_add_u32 s{sBR}, s{sBR}, {4 if i < 6 else 88}
        """)
        if i < 6: a("s_add_u32 m0, m0, 1024")
    a.label("ld_post")
    a(f"""
    s_add_u32 s{sSLW}, s{sSLW}, {SLOT}
    s_cmp_ge_u32 s{sSLW}, {CTL}
    s_cselect_b32 s{sSLW}, {SL0}, s{sSLW}
    s_cmp_lt_u32 s{sIT}, {LDD}
    s_cbranch_scc1 ld_next
    ds_read_b32 v{vT+4}, v{vPR} offset:{CP - CTL}
    s_sub_u32 s{sTMP}, s{sIT}, {LDD}
    s_add_u32 s{sTMP2}, s{sTMP}, 1
    v_mov_b32 v{vT}, s{sTMP2}
    v_add_u32 v{vAX}, s{sSLS}, v{vSX}
    v_xor_b32 v{vAX+1}, 32, v{vAX}
    v_xor_b32 v{vAX+2}, 64, v{vAX}
    v_xor_b32 v{vAX+3}, 96, v{vAX}
    s_add_u32 s{sSLS}, s{sSLS}, {SLOT}
    s_cmp_ge_u32 s{sSLS}, {CTL}
    s_cselect_b32 s{sSLS}, {SL0}, s{sSLS}
    """)
    for c in range(7):
        a(f"s_cmp_lg_u32 s{sTMP}, {c}")
        a(f"s_cbranch_scc1 ld_sv{c+1}")
        a(f"s_waitcnt vmcnt({7*LDD})")
        for i in range(4):
            a(f"ds_read_b128 {vr(vXB+16*c+4*i,4)}, v{vAX+i}")
        a("s_branch ld_sig")
        a.label(f"ld_sv{c+1}")
    a(f"s_waitcnt vmcnt({7*LDD})")
    a.label("ld_sig")
    a(f"ds_write_b32 v{vPW}, v{vT} offset:{LP - CTL}")
    a.label("ld_next")
    if env("STL", 0) & 1: stamp_dyn(a, 20, sIT)
    a(f"""
    s_add_u32 s{sIT}, s{sIT}, 1
    s_cmp_lt_u32 s{sIT}, 11
    s_cbranch_scc1 ld_loop
    """)
    stamp(a, 4)
    for k in range(LDD - 1, 0, -1):
        a(f"s_waitcnt vmcnt({7*k})")
        prog_set(a, vT, LP, 11 - k)

def gen_comp(a):
    vHH, vHHI, vMASK, vCONST, vXR, vXRC = 3, 4, 5, 6, 7, 8
    vNM, vRSTD, vA = 12, 13, 14
    vPG = 15
    vTB = 17
    vTG = 18
    vTN = 20
    vCP = 33
    vTC = 21
    vS0 = 25
    vCSR, vT1, vSEL = 35, 16, 28
    vZ = 36
    vFR = [40, 60]
    vACC = 80
    vXB = 144
    sDST, sSCL, sCSO = sR, sR+4, sR+8
    sRELU, sPASS, sSLOT, sONE, sIDX = sR+12, sR+13, sR+14, sR+15, sR+16
    if env("CPF", 0):
        a(f"""
        s_cmp_ge_u32 s{sSL}, {env("CPF", 0)}
        s_cbranch_scc1 cpf_skip
        s_getpc_b64 s[72:73]
        """)
        a.label("cpf_base")
        a(f"""
        s_sub_u32 s72, s72, cpf_base-{NAME}_kernel
        s_subb_u32 s73, s73, 0
        v_lshlrev_b32 v3, 7, v{vLANE}
        s_lshl_b32 s{sTMP}, s{sWAVE}, 13
        v_add_u32 v3, s{sTMP}, v3
        v_min_u32 v3, k_end-{NAME}_kernel, v3
        global_load_dword v79, v3, s[72:73]
        """)
        a.label("cpf_skip")
    a("""
    s_waitcnt lgkmcnt(0)
    s_barrier
    """)
    set_srd(a, sCc, pDBG, 256)
    set_srd(a, sA, pX, S*D*2)
    set_srd(a, sB, pW2, DFF*D*2)
    stamp(a, 1)
    a(f"""
    s_or_b32 s{sTMP}, s2, s{sWAVE}
    s_cmp_lg_u32 s{sTMP}, 0
    s_cbranch_scc1 c_notag
    s_memrealtime s[{sTAG}:{sTAG+1}]
    s_waitcnt lgkmcnt(0)
    s_or_b32 s{sTAG}, s{sTAG}, 1
    s_or_b32 s{sTAG+1}, s{sTAG+1}, 0x40000000
    v_mov_b32 v{vTG}, s{sTAG}
    v_mov_b32 v{vTG+1}, s{sTAG+1}
    buffer_store_dwordx2 {vr(vTG,2)}, v{vF0}, {sr(sCc,4)}, 0 offen sc1
    """)
    a.label("c_notag")
    a(f"v_mov_b32 v{vTB}, {OOB:#x}")
    dry_by_wave(a, [["c_epi"], ["c_epi2"], ["c_posta", "c_epi_end"], ["c_passb"]], "dw1")
    stamp(a, 2)
    a(f"""
    v_lshrrev_b32 v{vHH}, 5, v{vLANE}
    v_bfe_u32 v{vS0+1}, v{vLANE}, 2, 2
    v_bfe_u32 v{vS0+2}, v{vLANE}, 4, 1
    v_and_b32 v{vS0+3}, 3, v{vLANE}
    v_lshlrev_b32 v{vS0+2}, 5, v{vS0+2}
    v_lshl_add_u32 v{vS0+2}, v{vS0+3}, 3, v{vS0+2}
    v_lshl_add_u32 v{vS0+4}, v{vHH}, 3, v{vS0+1}
    s_movk_i32 s{sTMP}, 192
    v_mad_u32_u24 v{vTB}, v{vS0+4}, s{sTMP}, v{vS0+2}
    s_and_b32 s{sTMP}, s{sCOL}, 1
    s_lshl_b32 s{sTMP}, s{sTMP}, 3
    s_add_u32 s{sTMP}, s{sTMP}, 16384
    v_add_u32 v{vTB}, s{sTMP}, v{vTB}
    v_mov_b32 v{vZ}, 0
    v_mov_b32 v{vZ+1}, 0
    v_mov_b32 v{vZ+2}, 0
    v_mov_b32 v{vZ+3}, 0
    v_and_b32 v{vS0+5}, 31, v{vLANE}
    v_bfe_u32 v{vS0+6}, v{vLANE}, 1, 3
    v_xor_b32 v{vS0+6}, v{vS0+6}, v{vHH}
    v_lshlrev_b32 v{vS0+6}, 4, v{vS0+6}
    v_mfma_f32_32x32x16_bf16 {vr(vACC,16)}, {vr(vZ,4)}, {vr(vZ,4)}, 0
    v_lshl_add_u32 v{vXR}, v{vS0+5}, 7, v{vS0+6}
    s_lshl_b32 s{sTMP}, s{sWAVE}, 12
    v_add_u32 v{vXR}, s{sTMP}, v{vXR}
    v_lshlrev_b32 v{vCSR}, 4, v{vHH}
    v_add_u32 v{vCSR}, {CSA}, v{vCSR}
    v_lshlrev_b32 v{vT1}, 8, v{vS0+4}
    v_mfma_f32_32x32x16_bf16 {vr(vACC+16,16)}, {vr(vZ,4)}, {vr(vZ,4)}, 0
    v_add_u32 v{vT1}, v{vT1}, v{vS0+2}
    v_lshlrev_b32 v{vS0+7}, 6, v{vS0+1}
    v_or_b32 v{vT1}, v{vT1}, v{vS0+7}
    v_mfma_f32_32x32x16_bf16 {vr(vACC+32,16)}, {vr(vZ,4)}, {vr(vZ,4)}, 0
    v_sub_u32 v{vHHI}, v{vHH}, 1
    v_sub_u32 v{vHH}, 0, v{vHH}
    v_mov_b32 v{vMASK}, v{vHHI}
    v_and_b32 v{vCONST}, 0x3f80, v{vHH}
    s_mov_b32 s{sRELU}, 0x80008000
    s_mov_b32 s{sONE}, 0x3f803f80
    s_mov_b32 s{sIT}, 1
    s_mov_b32 s{sSLOT}, {SL0 + 4*SLOT}
    s_mov_b32 s{sIDX}, 0
    s_mul_i32 s{sTMP2}, s{sCOL}, 3
    s_cmp_eq_u32 s{sWAVE}, 3
    s_cselect_b32 s{sTMP3}, 0, s{sWAVE}
    v_mov_b32 v{vS0}, v{vTB}
    """)
    for j in range(3):
        a(f"""
        s_add_u32 s{sTMP}, s{sTMP2}, s{sTMP3}
        s_cmp_lt_u32 s{sTMP}, 16
        s_cselect_b32 s{sSCL+j}, {f32bits(QSCALE):#x}, 1.0
        s_cselect_b32 s{sIDX}, 11, 12
        s_cselect_b32 s{sSPIN}, 0, {KF_OFF}
        s_cmp_ge_u32 s{sTMP}, 32
        s_cselect_b32 s{sSPIN}, {KF_OFF + 2048}, s{sSPIN}
        s_and_b32 s{sTMP}, s{sTMP}, 15
        s_lshl_b32 s{sTMP}, s{sTMP}, 6
        s_add_u32 s{sTMP}, s{sTMP}, s{sMT32}
        s_lshl_b32 s{sTMP}, s{sTMP}, s{sIDX}
        s_add_u32 s{sDST+j}, s{sTMP}, s{sSPIN}
        s_lshl_b32 s{sCSO+j}, s{sTMP3}, 7
        s_mul_i32 s{sTMP}, s{sTMP3}, 56
        v_add_u32 v{vTB+j}, s{sTMP}, v{vS0}
        s_add_u32 s{sTMP3}, s{sTMP3}, 1
        s_cmp_eq_u32 s{sTMP3}, 3
        s_cselect_b32 s{sTMP3}, 0, s{sTMP3}
        v_add_u32 v{vTC+j}, s{sSLOT}, v{vTB+j}
        """)
    a(f"""
    s_mov_b32 s{sCSO+3}, 0
    s_mov_b32 s{sPASS}, 1
    v_add_u32 v{vXRC}, s{sSLOT}, v{vXR}
    v_mov_b32 v{vCP}, 0
    v_mov_b32 v{vCP+1}, 0
    v_and_b32 v{vS0}, 0x13, v{vLANE}
    v_cmp_ne_u32 vcc, 0x13, v{vS0}
    v_and_b32 v{vS0+1}, 7, v{vLANE}
    v_mul_u32_u24 v{vS0+1}, {4*192}, v{vS0+1}
    v_cndmask_b32 v{vSEL}, 0, 1, vcc
    v_lshrrev_b32 v{vS0+2}, 1, v{vLANE}
    v_and_b32 v{vS0+2}, 3, v{vS0+2}
    v_mul_u32_u24 v{vS0+2}, {8*192}, v{vS0+2}
    v_add_u32 v{vS0+1}, v{vS0+1}, v{vS0+2}
    v_mov_b32 v{vS0+5}, s{sONE}
    v_mov_b32 v{vS0+6}, s{sONE}
    ds_write_b64 v{vS0+1}, {vr(vS0+5,2)}
    v_mul_u32_u24 v{vTB+1}, v{vSEL}, v{vTB+1}
    v_mad_u32_u24 v{vTC+1}, v{vSEL}, s{sSLOT}, v{vTB+1}
    """)
    for i in range(4, 8):
        a(f"v_mov_b32 v{vS0+i}, 0")
    prog_wait(a, vPG, LP, env("AWAIT", 1))
    a(f"s_setprio {env('XPRIO', 3)}")
    stamp(a, 3)
    vCB = [128, 192]
    def reads(st):
        ops = []
        for q in range(4):
            f = vCB[st] + 16*q
            if q == 0:
                ops.append(f"ds_read_b128 {vr(f+12,4)}, v{vXRC}")
            else:
                ops.append(f"v_xor_b32 v{vTN}, {32*q}, v{vXRC}\nds_read_b128 {vr(f+12,4)}, v{vTN}")
            for j in range(3):
                for p in range(2):
                    ops.append(f"ds_read_b64_tr_b16 {vr(f+4*j+2*p,2)}, v{vTC+j} offset:{(16*q+4*p)*192}")
        return ops
    r0 = reads(0)
    for i, op in enumerate(r0):
        a(op)
        if i == 13: a("s_waitcnt lgkmcnt(0)")
    a.raw(".p2align 6")
    a.label("c_loopa")
    def half(st):
        a("s_waitcnt lgkmcnt(0)")
        if env("STL", 0) & 2: stamp_dyn(a, 22, sIT)
        a(f"""
        v_mov_b32 v{vTC+3}, s{sIT}
        s_add_u32 s{sSLOT}, s{sSLOT}, {SLOT}
        ds_write_b32 v{vPW}, v{vTC+3} offset:{CP - CTL}
        s_cmp_ge_u32 s{sSLOT}, {CTL}
        s_cselect_b32 s{sSLOT}, {SL0}, s{sSLOT}
        v_add_u32 v{vXRC}, s{sSLOT}, v{vXR}
        v_add_u32 v{vTC}, s{sSLOT}, v{vTB}
        v_mad_u32_u24 v{vTC+1}, v{vSEL}, s{sSLOT}, v{vTB+1}
        v_add_u32 v{vTC+2}, s{sSLOT}, v{vTB+2}
        ds_read_b32 v{vPG}, v{vPR} offset:{LP - CTL}
        """)
        for q in range(4):
            f = vCB[st] + 16*q
            for i in range(4):
                a(f"v_dot2c_f32_bf16 v{vCP+(i&1)}, s{sONE}, v{f+i}")
                a(f"v_dot2c_f32_bf16 v{vS0+4+i}, v{f+12+i}, v{f+12+i}")
        f0 = vCB[st]
        a(f"v_mfma_f32_32x32x16_bf16 {vr(vACC,16)}, {vr(f0,4)}, {vr(f0+12,4)}, {vr(vACC,16)}")
        a(f"""
        s_waitcnt lgkmcnt(0)
        v_cmp_ge_u32 vcc, s{sIT}, v{vPG}
        s_cbranch_vccnz c_la_slow{st}
        """)
        a.label(f"c_la_back{st}")
        nx = reads(1 - st)
        for _ in range(2): a(nx.pop(0))
        k = 0
        for q in range(4):
            f = vCB[st] + 16*q
            for j in range(3):
                if q == 0 and j == 0: continue
                a(f"v_mfma_f32_32x32x16_bf16 {vr(vACC+16*j,16)}, {vr(f+4*j,4)}, {vr(f+12,4)}, {vr(vACC+16*j,16)}")
                if k == 4 or k == 7: a("s_waitcnt lgkmcnt(5)")
                for _ in range(3):
                    if nx: a(nx.pop(0))
                k += 1
        assert not nx
        a(f"s_add_u32 s{sIT}, s{sIT}, 1")
    half(0)
    if DRY: a("s_cbranch_execz c_loopa2")
    a(f"""
    s_cmp_eq_u32 s{sIT}, 8
    s_cbranch_scc1 c_posta
    """)
    a.label("c_loopa2")
    half(1)
    dry_end(a)
    a("s_branch c_loopa")
    a.label("c_posta")
    stamp(a, 4)
    a(f"buffer_load_dwordx2 {vr(vTG,2)}, v{vF0}, {sr(sCc,4)}, 0 offen sc1")
    a(f"""
    v_add_f32 v{vCP}, v{vCP}, v{vCP+1}
    v_add_f32 v{vS0+4}, v{vS0+4}, v{vS0+5}
    v_add_f32 v{vS0+6}, v{vS0+6}, v{vS0+7}
    v_mov_b32 v{vCP+1}, v{vCP}
    v_and_b32 v{vS0+2}, 31, v{vLANE}
    v_lshlrev_b32 v{vS0+2}, 2, v{vS0+2}
    v_permlane32_swap_b32 v{vCP}, v{vCP+1}
    v_add_f32 v{vS0+4}, v{vS0+4}, v{vS0+6}
    v_add_u32 v{vS0+2}, s{sCSO}, v{vS0+2}
    v_add_f32 v{vCP}, v{vCP}, v{vCP+1}
    v_add_u32 v{vS0+2}, {CSA}, v{vS0+2}
    v_mov_b32 v{vS0+5}, v{vS0+4}
    ds_write_b32 v{vS0+2}, v{vCP}
    v_mov_b32 v{vS0+6}, 8
    ds_write_b32 v{vPW}, v{vS0+6} offset:{CP - CTL}
    v_mov_b32 v{vS0}, v{vACC+16+12}
    v_mov_b32 v{vS0+1}, v{vACC+16+12}
    v_permlane32_swap_b32 v{vS0+4}, v{vS0+5}
    s_nop 0
    v_permlane32_swap_b32 v{vS0}, v{vS0+1}
    v_add_f32 v{vS0+4}, v{vS0+4}, v{vS0+5}
    v_mul_f32 v{vS0+4}, {f32bits(1.0/D):#x}, v{vS0+4}
    v_mul_f32 v{vNM}, {f32bits(-1.0/D):#x}, v{vS0+1}
    v_fma_f32 v{vS0+4}, -v{vNM}, v{vNM}, v{vS0+4}
    v_max_f32 v{vS0+4}, 0, v{vS0+4}
    v_add_f32 v{vS0+4}, {f32bits(1e-5):#x}, v{vS0+4}
    v_rsq_f32 v{vRSTD}, v{vS0+4}
    s_lshl_b32 s{sTMP}, s{sWAVE}, 8
    s_add_u32 s{sTMP}, s{sTMP}, {STA}
    v_and_b32 v{vS0+2}, 31, v{vLANE}
    v_lshlrev_b32 v{vS0+2}, 3, v{vS0+2}
    v_add_u32 v{vS0+2}, s{sTMP}, v{vS0+2}
    ds_write_b64 v{vS0+2}, {vr(vNM,2)}
    """)
    prog_wait(a, vPG, CP, 8, sleep=0)
    dry_end(a)
    a.label("c_epi")
    vCS2 = [vFR[0], vFR[0] + 16]
    def cs_read(j):
        a(f"v_add_u32 v{vXRC}, s{sCSO+j}, v{vCSR}")
        for g in range(4):
            a(f"ds_read_b128 {vr(vCS2[j%2]+4*g,4)}, v{vXRC} offset:{32*g}")
    cs_read(0)
    for j in range(4):
        acc = vACC + 16*j
        cs = vCS2[j % 2]
        if j == 2:
            dry_end(a)
            a.label("c_epi2")
        if j < 3:
            cs_read(j + 1)
            a("s_waitcnt lgkmcnt(4)")
        else:
            a("s_waitcnt lgkmcnt(0)")
        if env("STL", 0) & 4 and j < 3: stamp(a, 10 + j)
        a(f"v_mul_f32 v{vA}, s{sSCL+j}, v{vRSTD}")
        for i in range(16):
            a(f"v_fmac_f32 v{acc+i}, v{cs+i}, v{vNM}")
        for i in range(16):
            a(f"v_mul_f32 v{acc+i}, v{vA}, v{acc+i}")
        for i in range(8):
            a(f"v_cvt_pk_bf16_f32 v{acc+i}, v{acc+2*i}, v{acc+2*i+1}")
        for i in range(8):
            a(f"v_pk_max_i16 v{acc+i}, v{acc+i}, s{sRELU}")
            if i == 5:
                a(f"buffer_store_dwordx4 {vr(acc,4)}, v{vL16}, {sr(sWS,4)}, s{sDST+j} offen sc1")
        a(f"v_and_or_b32 v{acc+6}, v{acc+6}, v{vMASK}, v{vCONST}")
        a(f"v_and_b32 v{acc+7}, v{acc+7}, v{vMASK}")
        a(f"buffer_store_dwordx4 {vr(acc+4,4)}, v{vL16}, {sr(sWS,4)}, s{sDST+j} offen offset:1024 sc1")
        if j == 2:
            if DRY: a("s_cbranch_execz c_epi3")
            a(f"s_cmp_eq_u32 s{sPASS}, 1")
            a("s_cbranch_scc1 c_epi_end")
            a.label("c_epi3")
    a("s_nop 1")
    for j in range(4):
        a(f"v_mfma_f32_32x32x16_bf16 {vr(vACC+16*j,16)}, {vr(vZ,4)}, {vr(vZ,4)}, 0")
    dry_end(a)
    a("s_branch c_done")
    a.label("c_epi_end")
    prog_set(a, vS0, CP, 9)
    stamp(a, 5)
    a(f"""
    s_mul_i32 s{sTMP}, s{sCOL}, 3
    s_lshr_b32 s{sTMP2}, s{sMT32}, 2
    v_lshrrev_b32 v{vS0+1}, 4, v{vLANE}
    v_add_u32 v{vS0+1}, s{sTMP}, v{vS0+1}
    v_and_b32 v{vS0+2}, 15, v{vS0+1}
    v_lshrrev_b32 v{vS0+1}, 4, v{vS0+1}
    v_and_b32 v{vS0+3}, 15, v{vLANE}
    v_lshl_add_u32 v{vS0+2}, v{vS0+2}, 4, v{vS0+3}
    v_lshlrev_b32 v{vS0+2}, 9, v{vS0+2}
    v_lshlrev_b32 v{vTB}, 4, v{vS0+1}
    v_add_u32 v{vTB}, s{sTMP2}, v{vTB}
    v_lshl_add_u32 v{vTB}, v{vTB}, 3, v{vS0+2}
    v_add_u32 v{vTB}, {F1_OFF}, v{vTB}
    v_cmp_eq_u32 vcc, 0, v{vS0+1}
    v_cmp_ne_u32 s[72:73], s{sTMP2}, v{vS0+3}
    s_and_b64 vcc, vcc, s[72:73]
    v_cmp_lt_u32 s[72:73], 47, v{vLANE}
    s_or_b64 vcc, vcc, s[72:73]
    v_mov_b32 v{vS0+1}, {OOB:#x}
    s_nop 0
    v_cndmask_b32 v{vTB}, v{vTB}, v{vS0+1}, vcc
    """)
    dry_end(a)
    a("s_branch x_attn")
    ROLE[0] = "Y"
    a.label("c_passb")
    a(f"s_setprio {env('CPRIO', 2)}")
    set_srd(a, sCc, pDBG, 256)
    a(f"""
    s_waitcnt lgkmcnt(0)
    buffer_load_dwordx2 {vr(vTG,2)}, v{vF0}, {sr(sCc,4)}, 0 offen sc1
    v_lshrrev_b32 v{vHH}, 5, v{vLANE}
    v_bfe_u32 v{vS0+1}, v{vLANE}, 2, 2
    v_bfe_u32 v{vS0+2}, v{vLANE}, 4, 1
    v_and_b32 v{vS0+3}, 3, v{vLANE}
    v_lshlrev_b32 v{vS0+2}, 5, v{vS0+2}
    v_lshl_add_u32 v{vS0+2}, v{vS0+3}, 3, v{vS0+2}
    v_lshl_add_u32 v{vS0+4}, v{vHH}, 3, v{vS0+1}
    v_mov_b32 v{vZ}, 0
    v_mov_b32 v{vZ+1}, 0
    v_mov_b32 v{vZ+2}, 0
    v_mov_b32 v{vZ+3}, 0
    v_lshlrev_b32 v{vCSR}, 4, v{vHH}
    v_add_u32 v{vCSR}, {CSA}, v{vCSR}
    v_lshlrev_b32 v{vT1}, 8, v{vS0+4}
    v_add_u32 v{vT1}, v{vT1}, v{vS0+2}
    v_lshlrev_b32 v{vS0+7}, 6, v{vS0+1}
    v_or_b32 v{vT1}, v{vT1}, v{vS0+7}
    s_lshl_b32 s{sTMP}, s{sWAVE}, 6
    v_xor_b32 v{vT1}, s{sTMP}, v{vT1}
    s_mov_b32 s{sONE}, 0x3f803f80
    """)
    for b in range(4):
        a(f"v_mfma_f32_32x32x16_bf16 {vr(vACC+16*b,16)}, {vr(vZ,4)}, {vr(vZ,4)}, 0")
        a(f"v_mov_b32 v{vS0+4+b}, 0")
        a(f"v_xor_b32 v{vTC+b}, {b << 6}, v{vT1}")
        a(f"v_add_u32 v{vTC+b}, {WB}, v{vTC+b}")
    prog_wait(a, vPG, LP, 10)
    stamp(a, 7)
    def rdB(step, b):
        f = vFR[step % 2]
        for p in range(2):
            a(f"ds_read_b64_tr_b16 {vr(f+4*b+2*p,2)}, v{vTC+b} offset:{4096*step + 1024*p}")
    def fetchx(step, i0):
        f = vFR[step % 2]
        a(f"s_set_gpr_idx_on s{sIDX}, gpr_idx(SRC0)")
        for i in range(i0, i0 + 2):
            a(f"v_mov_b32 v{f+16+i}, v{vXB+4*(step%4)+i}")
        a("s_set_gpr_idx_off")
    a(f"""
    s_mov_b32 s{sIT}, 0
    s_mov_b32 s{sIDX}, 0
    """)
    for b in range(4): rdB(0, b)
    a("s_waitcnt lgkmcnt(4)")
    for b in range(4): rdB(1, b)
    fetchx(0, 0); fetchx(0, 2)
    a.raw(".p2align 6")
    a.label("c_loopb")
    a(f"""
    s_bitcmp1_b32 {(1<<2)|(1<<4):#x}, s{sIT}
    s_cbranch_scc1 c_lb_rare
    """)
    a.label("c_lb_go")
    for k in range(4):
        f = vFR[k % 2]
        for b in range(4):
            if b % 2 == 0:
                a("s_waitcnt lgkmcnt(11)")
            if b == 0:
                for i in range(4):
                    a(f"v_dot2c_f32_bf16 v{vS0+4+i}, s{sONE}, v{f+i}")
            a(f"v_mfma_f32_32x32x16_bf16 {vr(vACC+16*b,16)}, {vr(f+4*b,4)}, {vr(f+16,4)}, {vr(vACC+16*b,16)}")
            rdB(k + 2, b)
            if k == 2 and b == 3:
                a(f"s_add_u32 s{sIDX}, s{sIDX}, 16")
                a(f"s_min_u32 s{sIDX}, s{sIDX}, 96")
            if b == 0: fetchx(k + 1, 0)
            if b == 2: fetchx(k + 1, 2)
            if k == 3:
                a(f"v_add_u32 v{vTC+b}, 16384, v{vTC+b}")
    dry_end(a)
    a(f"""
    s_add_u32 s{sIT}, s{sIT}, 1
    s_cmp_lt_u32 s{sIT}, 7
    s_cbranch_scc1 c_loopb
    s_waitcnt lgkmcnt(0)
    """)
    stamp(a, 6)
    a(f"""
    v_add_f32 v{vS0+4}, v{vS0+4}, v{vS0+5}
    v_add_f32 v{vS0+6}, v{vS0+6}, v{vS0+7}
    v_and_b32 v{vS0+2}, 31, v{vLANE}
    v_add_f32 v{vS0+4}, v{vS0+4}, v{vS0+6}
    v_lshlrev_b32 v{vS0+2}, 2, v{vS0+2}
    v_mov_b32 v{vS0+5}, v{vS0+4}
    s_lshl_b32 s{sTMP}, s{sWAVE}, 7
    s_add_u32 s{sTMP}, s{sTMP}, {CSB_}
    v_permlane32_swap_b32 v{vS0+4}, v{vS0+5}
    v_add_u32 v{vS0+2}, s{sTMP}, v{vS0+2}
    s_nop 0
    v_add_f32 v{vS0+4}, v{vS0+4}, v{vS0+5}
    ds_write_b32 v{vS0+2}, v{vS0+4}
    """)
    prog_set(a, vS0, SP, 2)
    a(f"""
    s_lshr_b32 s{sTMP}, s{sCOL}, 1
    s_mul_i32 s{sTMP}, s{sTMP}, 7
    s_and_b32 s{sTMP2}, s{sCOL}, 1
    s_mul_i32 s{sTMP2}, s{sTMP2}, 3
    s_add_u32 s{sTMP}, s{sTMP}, s{sTMP2}
    s_mul_i32 s{sTMP2}, s{sMT32}, 72
    s_add_u32 s{sTMP}, s{sTMP}, s{sTMP2}
    s_lshl_b32 s{sTMP}, s{sTMP}, 11
    s_add_u32 s{sTMP}, s{sTMP}, {HF_OFF}
    s_and_b32 s{sIDX}, s{sCOL}, 1
    s_sub_u32 s{sIDX}, s{sIDX}, 1
    s_mov_b32 s{sRELU}, 0
    v_mov_b32 v{vMASK}, -1
    v_mov_b32 v{vCONST}, 0
    s_mov_b32 s{sPASS}, 2
    """)
    for j in range(4):
        a(f"""
        s_mov_b32 s{sSCL+j}, 1.0
        s_xor_b32 s{sTMP2}, s{sWAVE}, {j}
        s_lshl_b32 s{sTMP3}, s{sTMP2}, 7
        s_add_u32 s{sCSO+j}, s{sTMP3}, 512
        s_lshl_b32 s{sTMP2}, s{sTMP2}, 11
        s_add_u32 s{sDST+j}, s{sTMP}, s{sTMP2}
        s_cmp_eq_u32 s{sTMP2}, s{sIDX}
        s_cselect_b32 s{sDST+j}, {OOB:#x}, s{sDST+j}
        """)
    a(f"""
    v_readfirstlane_b32 s{sTAG}, v{vTG}
    v_readfirstlane_b32 s{sTAG+1}, v{vTG+1}
    s_min_u32 s{sTMP}, s{sTAG}, s{sTAG+1}
    s_cmp_lg_u32 s{sTMP}, 0
    s_cbranch_scc1 c_lb_tag2
    """)
    get_tag(a, vS0+1)
    a.label("c_lb_tag2")
    prog_wait(a, vPG, CP, 9)
    a(f"""
    s_lshl_b32 s{sTMP}, s{sWAVE}, 8
    s_add_u32 s{sTMP}, s{sTMP}, {STA}
    v_and_b32 v{vS0+2}, 31, v{vLANE}
    v_lshlrev_b32 v{vS0+2}, 3, v{vS0+2}
    v_add_u32 v{vS0+2}, s{sTMP}, v{vS0+2}
    ds_read_b64 {vr(vNM,2)}, v{vS0+2}
    """)
    prog_wait(a, vPG, SP, 2, sleep=0)
    stamp(a, 11)
    a("s_branch c_epi")
    for st in range(2):
        a.label(f"c_la_slow{st}")
        a(f"""
        s_cmp_eq_u32 s{sIT}, 7
        s_cbranch_scc1 c_la_back{st}
        s_add_u32 s{sTMP3}, s{sIT}, 1
        """)
        prog_wait(a, vPG, LP, f"s{sTMP3}", sleep=env("ASLEEP", 1))
        a(f"s_branch c_la_back{st}")
    a.label("c_lb_rare")
    a(f"""
    s_cmp_lg_u32 s{sIT}, 2
    s_cbranch_scc1 c_lb_r1
    """)
    prog_set(a, vS0, SP, 1)
    a("s_waitcnt vmcnt(0)")
    prog_set(a, vS0+1, LP, 11)
    a("s_waitcnt lgkmcnt(0)")
    a("s_branch c_lb_go")
    a.label("c_lb_r1")
    prog_wait(a, vPG, LP, 11)
    stamp(a, 10)
    a("s_branch c_lb_go")
    a.label("c_done")
    stamp(a, 12)

from mk2 import gen_attn, gen_gemm2

def build():
    hdr = open("cdna_kernels/" + NAME + ".s.ref").read().split("\n")
    out = [l for l in hdr if l.startswith(";") and "@launch" not in l]
    body = Asm()
    body.raw(".p2align 8")
    d = gen(body)
    out.append(f"; @launch grid=({d['grid']},1,1) block=({d['block']},1,1) lds={d['lds']}")
    out.append('.amdgcn_target "amdgcn-amd-amdhsa--gfx950"')
    out.append("""; One persistent kernel, 256 workgroups x 8 waves (generated by a python script, hand-scheduled).
;  per-consumer mailboxes in d_ws; consumers poll and read the data with sc1 loads.""")
    out.append(".text")
    out.append(f".globl {d['name']}")
    out.append(f".type {d['name']},@function")
    txt = "\n".join(out) + "\n" + body.text()
    txt += '.section .rodata,"a"\n.p2align 6\n' + kernel_desc(d['name'], d['nvgpr'], d['accum'])
    return txt
```
